```python
import torch

def _softmax(x, axis=-1):
    return torch.softmax(x, dim=axis)

def _gelu(x):
    return torch.nn.functional.gelu(x, approximate='tanh')

def _silu(x):
    return torch.nn.functional.silu(x)

def _sigmoid(x):
    return torch.sigmoid(x)

def _layernorm(x, axis=-1, eps=1e-05):
    m = x.mean(dim=axis, keepdim=True)
    v = x.var(dim=axis, keepdim=True, unbiased=False)
    return (x - m) / torch.sqrt(v + eps)

def _scatter_add(tgt, idx, src, axis=0):
    return tgt.clone().index_add_(axis, idx, src)

def _segment_sum(src, seg, n):
    out = torch.zeros((n,) + src.shape[1:], dtype=src.dtype)
    return out.index_add_(0, seg, src)

def _pad(x, pw):
    flat = tuple((v for pair in reversed(pw) for v in pair))
    return torch.nn.functional.pad(x, flat)
kernel_name = 'standalone__autoregressive_conv_wavenet__speech'

def setup_inputs():

    _w = lambda a: (lambda t: t.to(torch.bfloat16) if t.is_floating_point() else t)(torch.as_tensor(a))
    B, T, D, K = (2, 16000, 144, 15)
    return {'x': _w((lambda *s: torch.randn(*s, dtype=torch.bfloat16) * 0.1)(B, T, D)), 'w': _w((lambda *s: torch.randn(*s, dtype=torch.bfloat16) * 0.1)(K, D, 2 * D)), 'w_o': _w((lambda *s: torch.randn(*s, dtype=torch.bfloat16) * 0.05)(D, D))}

def reference(x, w, w_o):
    B, T, D = x.shape
    K = w.shape[0]
    dil = 2
    pad = (K - 1) * dil
    xp = _pad(x, ((0, 0), (pad, 0), (0, 0)))
    h = torch.einsum('btc,cd->btd', xp[:, pad:pad + T, :], w[0])
    for i in range(1, K):
        off = pad - i * dil
        h = h + torch.einsum('btc,cd->btd', xp[:, off:off + T, :], w[i])
    f = h[..., :D].clone()
    g = h[..., D:].clone()
    z = torch.tanh(f) * _sigmoid(g)
    return z @ w_o
```

```python
import re

TRANS = ("v_exp_f32", "v_log_f32", "v_rcp_f32", "v_rsq_f32", "v_sqrt_f32", "v_sin_f32", "v_cos_f32")


def regs_of(tok):
    tok = tok.strip()
    tok = tok.lstrip("-").strip("|")
    m = re.fullmatch(r"([vs])(\d+)", tok)
    if m:
        return {(m.group(1), int(m.group(2)))}
    m = re.fullmatch(r"([vs])\[(\d+):(\d+)\]", tok)
    if m:
        return {(m.group(1), i) for i in range(int(m.group(2)), int(m.group(3)) + 1)}
    if tok in ("vcc", "m0", "exec"):
        return {("x", tok)}
    return set()


class Ins:
    def __init__(self, text):
        self.text = text
        t = text.split(";")[0].strip()
        self.label = t.endswith(":")
        self.directive = t.startswith(".") or t == ""
        self.op = t.split()[0] if t and not self.label else ""
        rest = t[len(self.op):].strip() if not self.label else ""
        ops = [o.strip() for o in rest.split(",")] if rest else []
        if ops:
            last = ops[-1].split()
            ops[-1] = last[0] if last else ""
            self.mods = " ".join(last[1:])
        else:
            self.mods = ""
        self.ops = ops
        op = self.op
        self.w = set(); self.r = set(); self.cls = "other"
        R = [regs_of(o) for o in ops]
        if op.startswith("v_mfma"):
            self.cls = "mfma"; self.w = R[0]; self.a = R[1] | R[2]; self.c = R[3]; self.r = self.a | self.c
        elif op.startswith("v_cmp"):
            self.cls = "valu"; self.w = R[0]; self.r = set().union(*R[1:])
        elif op.startswith("v_readfirstlane") or op.startswith("v_readlane"):
            self.cls = "valu"; self.w = R[0]; self.r = set().union(*R[1:]); self.rfl = True
        elif op.startswith("v_"):
            self.cls = "valu"; self.w = R[0]; self.r = set().union(*R[1:]) if len(R) > 1 else set()
            if op.startswith("v_cndmask") and len(ops) == 3:
                self.r |= {("x", "vcc")}
            if op.startswith("v_fmac") or op.startswith("v_mac"):
                self.r |= R[0]
        elif op.startswith("ds_read"):
            self.cls = "ds"; self.w = R[0]; self.r = R[1]
        elif op.startswith("ds_write"):
            self.cls = "ds"; self.r = set().union(*R)
        elif op.startswith("buffer_load") or op.startswith("global_load"):
            self.cls = "vmem"
            if "lds" in self.mods.split():
                self.r = set().union(*R) | {("x", "m0")}; self.dma = True
            else:
                self.w = R[0]; self.r = set().union(*R[1:])
        elif op.startswith("buffer_store") or op.startswith("global_store") or op.startswith("global_atomic") or op.startswith("buffer_atomic"):
            self.cls = "vmem"; self.r = set().union(*R)
            if op.startswith("buffer_store_dwordx4") or op.startswith("buffer_store_dwordx3"):
                self.wide = R[0]
            if op.startswith("global_store_dwordx4"):
                self.wide = R[1]
        elif op.startswith("s_"):
            self.cls = "salu"
            if op in ("s_nop", "s_waitcnt", "s_barrier", "s_endpgm", "s_setprio", "s_branch") or op.startswith("s_cbranch") or op.startswith("s_cmp") or op.startswith("s_bitcmp"):
                self.r = set().union(*R) if R else set()
            else:
                self.w = R[0] if R else set(); self.r = set().union(*R[1:]) if len(R) > 1 else set()
                if "saveexec" in op:
                    self.w = self.w | {("x", "exec")}
        self.trans = op.replace("_e32", "").replace("_e64", "") in TRANS

    def states(self):
        if self.label or self.directive:
            return 0
        if self.op == "s_nop":
            return int(self.ops[0]) + 1
        return 1


def need(p, c):
    n = 0
    pv = {x for x in p.w if x[0] == "v"}
    ps = {x for x in p.w if x[0] != "v"}
    if p.cls == "valu":
        if c.cls == "mfma" and pv & c.r: n = max(n, 2)
        if p.trans and c.cls == "valu" and not c.trans and pv & c.r: n = max(n, 1)
        if getattr(c, "rfl", False) and pv & c.r: n = max(n, 1)
        if ps:
            if c.cls == "vmem" and ps & c.r: n = max(n, 5)
            if c.cls == "valu" and ps & c.r: n = max(n, 2)
            if c.cls == "salu" and ps & c.r: n = max(n, 1)
    if p.cls == "mfma":
        if c.cls == "mfma":
            if p.w & c.a: n = max(n, 8)
            if p.w & c.c and p.w != c.c: n = max(n, 6)
            if p.w & c.c and p.op != c.op: n = max(n, 6)
            if p.w & c.w and p.w != c.c: n = max(n, 8)
        elif c.cls in ("valu", "ds", "vmem"):
            if p.w & (c.r | c.w): n = max(n, 8)
            if c.cls == "valu" and p.c & c.w: n = max(n, 3)
    if p.cls == "salu":
        if ("x", "m0") in p.w and getattr(c, "dma", False): n = max(n, 1)
    if hasattr(p, "wide") and c.cls in ("valu", "ds", "vmem", "mfma") and p.wide & c.w: n = max(n, 2)
    return n


class Asm:
    def __init__(self):
        self.L = []

    def __call__(self, s):
        for ln in s.split("\n"):
            self.L.append(ln)

    def fix(self, verbose=True):
        out = []
        hist = []
        nins = 0
        for ln in self.L:
            c = Ins(ln)
            if c.label or c.directive:
                out.append(ln)
                continue
            req = 0
            d = 0
            for p in reversed(hist):
                k = need(p, c)
                if k > d: req = max(req, k - d)
                d += p.states()
                if d > 12: break
            if req:
                nop = f"s_nop {req-1}"
                out.append(nop + " ; hz")
                hist.append(Ins(nop)); nins += 1
                if verbose: print("hazard nop", req, "before:", ln)
            out.append(ln)
            hist.append(c)
            if c.op in ("s_branch", "s_endpgm"):
                hist = []
            hist = hist[-16:]
        self.L = out
        return nins

    def text(self):
        return "\n".join(x if (x.endswith(":") or x.startswith(".") or x.startswith(";")) else "    " + x for x in self.L) + "\n"
```

```python
import sys, struct
from asmlib import Asm

KN = "standalone__autoregressive_conv_wavenet__speech_kernel"
NPROD, NMAIN = 51, 200
SLOT, MAT = 18432, 82944
UB1, UB0 = 92160, 111616
UXOR = UB0 ^ UB1
WO, LDS = 121856, 163840
ST, STROW, STBUF, EX = 46080, 304, 9728, 65536
OOB = 0x80000000
LOG2E = 1.4426950408889634


def f2u(f):
    return struct.unpack("<I", struct.pack("<f", f))[0]


def vr(b, n=4):
    return f"v[{b}:{b+n-1}]"


def build_steps():
    S = []
    for c in range(4):
        for s in range(10):
            S.append(dict(kind="full", src="W", soff=(s if s < 5 else s + 5) * MAT + c * SLOT, acc="Q" if s < 5 else "P",
                          kap=c, idx=[10 - (q - s + 5) for q in range(5)]))
    for kind, mat, acc, e0 in [("pair", 0, "Q", 5), ("pair", 2, "Q", 3), ("k16", 4, "Q", 1), ("pair", 10, "P", 0), ("pair", 12, "P", -2), ("k16", 14, "P", -4)]:
        S.append(dict(kind=kind, src="W", soff=mat * MAT, acc=acc, kap=4, idx=[10 - (q + e0) for q in range(5)]))
    for c in range(4):
        for s in range(10):
            S.append(dict(kind="full", src="G", soff=s * MAT + c * SLOT, acc="P" if s < 5 else "Q",
                          kap=5 + c, idx=[(5 if s < 5 else 14) - (q - s % 5) for q in range(5)]))
    for kind, mat, acc, e0 in [("pair", 0, "P", 0), ("pair", 2, "P", -2), ("k16", 4, "P", -4), ("pair", 5, "Q", 0), ("pair", 7, "Q", -2), ("k16", 9, "Q", -4)]:
        S.append(dict(kind=kind, src="G", soff=mat * MAT, acc=acc, kap=9, idx=[(5 if acc == "P" else 14) - (q + e0) for q in range(5)]))
    for n, s in enumerate(S):
        s["n"] = n; s["slot"] = n % 5
        s["keys"] = [(s["kap"], i, s["kind"] == "k16") for i in s["idx"]]
    return S


STEPS = build_steps()

sX, sW, sG, sO, sWO = 16, 20, 24, 28, 32
sWV, sGI, sLW = 36, 37, 38
sCNT, sT0, sT1, sT2, sT3 = 40, 41, 42, 43, 44
sM4, sM5, sHALF, sOFF = 46, 47, 48, 49
sCF, sCG, sCX, sONE, sM2, sTWO = 50, 52, 54, 56, 58, 60
sPC = 62
sCLAMP, sMASK = 64, 65
sTS = 68


def srd(r):
    return f"s[{r}:{r+3}]"


vE, vO, vEh, vOh, vUA, vU16, vT = 1, 2, 3, 4, 5, 6, 7
WB = dict(Fa=20, Ga=24, F8=28, G8=32, Fb=36, Gb=40)
UBUF = [44 + 4 * i for i in range(7)]
COL = dict(Fa=0, Ga=1, Fb=2, Gb=3)


def acc(name, q, which):
    t = COL[name] * 5 + q if name in COL else dict(F8=20, G8=21, X=22)[name]
    return 72 + 8 * t + (0 if which == "P" else 4)


class Gen:
    def __init__(self, prof=False, cfg=None):
        self.a = Asm(); self.prof = prof; self.cfg = cfg or {}
        self.nst = 0

    def stamp(self, i, real=False):
        if self.prof:
            self.a(f"s_memtime s[{sTS+2*i}:{sTS+2*i+1}]" if not real else f"s_memrealtime s[{sTS+2*i}:{sTS+2*i+1}]")
            self.a("s_waitcnt lgkmcnt(0)")

    def dump_stamps(self, off):
        if not self.prof: return
        a = self.a
        a(f"s_add_u32 s{sT0}, s14, 0x100000"); a(f"s_addc_u32 s{sT1}, s15, 0")
        a(f"s_mov_b32 s{sG}, s{sT0}"); a(f"s_mov_b32 s{sG+1}, s{sT1}"); a(f"s_mov_b32 s{sG+2}, 0x100000"); a(f"s_mov_b32 s{sG+3}, 0x20000")
        a(f"s_lshl_b32 s{sT0}, s2, 7"); a(f"s_add_u32 s{sT0}, s{sT0}, {off}")
        for i in range(16): a(f"v_mov_b32 v{8+i}, s{sTS+i}")
        a(f"v_mov_b32 v1, s{sT0}")
        a("s_mov_b64 exec, 1")
        for i in range(4): a(f"buffer_store_dwordx4 {vr(8+4*i)}, v1, {srd(sG)}, 0 offen offset:{16*i}")
        a("s_waitcnt vmcnt(0)")

    def wread(self, w, name, st):
        T = dict(Fa=2 * w, Fb=2 * w + 1, Ga=9 + 2 * w, Gb=10 + 2 * w, F8=8, G8=17)[name]
        hi = st["slot"] >= 3
        base = (vO if T & 1 else vE) + (2 if hi else 0)
        off = st["slot"] * SLOT - (3 * SLOT if hi else 0) + 32 * T
        b = WB[name]
        L = [f"ds_read_b64_tr_b16 {vr(b,2)}, v{base} offset:{off}"]
        if st["kind"] != "k16":
            L.append(f"ds_read_b64_tr_b16 {vr(b+2,2)}, v{base} offset:{off+2304}")
        return [(x, ("W", name, st["n"])) for x in L]

    def uread(self, key, buf):
        kap, idx, k16 = key
        if k16:
            ub = UB1 if kap & 1 else UB0
            return (f"ds_read_b64 {vr(UBUF[buf],2)}, v{vU16} offset:{ub-UB1+idx*1024}", ("U", key))
        return (f"ds_read_b128 {vr(UBUF[buf])}, v{vUA} offset:{idx*1024}", ("U", key))

    def emit_step(self, w, st, nxt, S, force=None, extra_gb=None, out=None):
        e = out.append
        Q = S["queue"]; umap = S["umap"]
        k16 = st["kind"] == "k16"
        n2 = 2 if k16 else 4
        opn = "v_mfma_f32_16x16x16_bf16" if k16 else "v_mfma_f32_16x16x32_bf16"

        def waitfor(keys):
            pos = -1
            for i, k in enumerate(Q):
                if k in keys: pos = i
            if pos < 0: return None
            return len(Q) - 1 - pos, pos

        def dowait(keys):
            r = waitfor(keys)
            if r is None: return
            e(f"s_waitcnt lgkmcnt({min(15, r[0])})")
            del Q[:r[1] + 1]

        def run(ms, loads, first_cap=2):
            loads = list(loads)
            for i, (an, q, wn) in enumerate(ms):
                uk = st["keys"][q]
                dowait({("W", wn, st["n"]), ("U", uk)})
                d = acc(an, q, st["acc"])
                e(f"{opn} {vr(d)}, {vr(WB[wn], n2)}, {vr(UBUF[umap[uk]], n2)}, {vr(d)}")
                cap = 2
                if i + 1 < len(ms):
                    an2, q2, wn2 = ms[i + 1]
                    if waitfor({("W", wn2, st["n"]), ("U", st["keys"][q2])}) is not None: cap -= 1
                else:
                    cap -= 1
                j = 0
                while cap > 0 and j < len(loads):
                    if loads[j][2] <= i:
                        t, k, _ = loads.pop(j)
                        e(t)
                        if k is not None: Q.append(k)
                        cap -= 1
                    else:
                        j += 1
            for t, k, _ in loads:
                e(t)
                if k is not None: Q.append(k)

        ga = [(c, q, c) for q in (4, 3, 2, 1, 0) for c in ("Fa", "Ga")]
        gs = [("F8", w, "F8"), ("G8", w, "G8")]
        if w == 0: gs.append(("X", 4, "F8"))
        if w == 1: gs.append(("X", 4, "G8"))
        gb = [(c, q, c) for q in (4, 3, 2, 1, 0) for c in ("Fb", "Gb")]
        la = [(t, k, 0) for nm in ("F8", "G8") for t, k in self.wread(w, nm, st)]
        la += [(t, k, 2) for nm in ("Fb", "Gb") for t, k in self.wread(w, nm, st)]
        run(ga + gs, la)
        dowait({("W", "Fb", st["n"]), ("W", "Gb", st["n"])})
        assert not Q
        e("s_barrier")
        lb = []
        if nxt is not None:
            if nxt["kap"] != st["kap"]:
                e(f"v_xor_b32 v{vUA}, {UXOR:#x}, v{vUA}")
            cur = st["keys"]
            keep = set(cur) | set(nxt["keys"])
            for k in list(umap):
                if k not in keep: del umap[k]
            freeat = {b: 0 for b in range(7) if b not in umap.values()}
            for q in range(5):
                if cur[q] not in nxt["keys"]:
                    freeat[umap[cur[q]]] = 2 * (4 - q) + 1
            newm = {}
            ul = []
            for q in (4, 3, 2, 1, 0):
                k = nxt["keys"][q]
                if k in umap: continue
                if force is not None:
                    b = force(k)
                    assert b in freeat, (st["n"], k, b, umap, freeat)
                else:
                    b = min(freeat, key=lambda x: (freeat[x], x))
                t, kk = self.uread(k, b)
                ul.append((2 * (4 - q), t, kk, freeat.pop(b)))
                newm[k] = b
            fa = self.wread(w, "Fa", nxt); gaa = self.wread(w, "Ga", nxt)
            allr = [(0, t, k, 0) for t, k in fa] + [(1, t, k, 0) for t, k in gaa] + ul
            allr.sort(key=lambda x: x[0])
            lb = [(t, k, g) for _, t, k, g in allr]
        if extra_gb:
            lb += [(t, None, 6) for t in extra_gb]
        run(gb, lb)
        if nxt is not None:
            for k in list(umap):
                if k not in nxt["keys"]: del umap[k]
            umap.update(newm)

    @staticmethod
    def shift_state(S, dn, dk):
        q = []
        for k in S["queue"]:
            if k[0] == "W": q.append(("W", k[1], k[2] + dn))
            else: q.append(("U", (k[1][0] + dk, k[1][1], k[1][2])))
        return dict(queue=q, umap={(k[0] + dk, k[1], k[2]): b for k, b in S["umap"].items()})

    def phase(self, w, n0, force, S0, hooks):
        a = self.a
        lab = f"L_c{w}_{n0}"
        S = dict(queue=[], umap=dict(S0))
        tmp = []
        for n in range(n0, n0 + 10):
            self.emit_step(w, STEPS[n], STEPS[n + 1], S, force, None, tmp)
        Send = self.shift_state(S, -10, -1)
        assert Send["umap"] == S0, (Send, S0)
        S = dict(queue=list(Send["queue"]), umap=dict(Send["umap"]))
        body = []
        for n in range(n0, n0 + 10):
            ex = [f"s_add_u32 s{sCNT}, s{sCNT}, 1", f"s_cmp_lt_u32 s{sCNT}, {3 if hooks else 4}"] if n == n0 + 9 else None
            self.emit_step(w, STEPS[n], STEPS[n + 1], S, force, ex, body)
        chk = self.shift_state(S, -10, -1)
        assert chk == Send
        a(f"s_mov_b32 s{sCNT}, 0")
        a(".p2align 3")
        a(lab + ":")
        for x in body: a(x)
        if hooks:
            a(f"s_cbranch_scc1 {lab}_hook")
            a(f"s_cmp_lt_u32 s{sCNT}, 4")
        a(f"s_cbranch_scc1 {lab}")
        S = self.shift_state(S, 30, 3)
        return S, lab

    def compute_main(self, w):
        a = self.a
        a(".p2align 6")
        a(f"L_cw{w}:")
        fA = lambda k: (k[1] - 1) % 7
        fB = lambda k: (k[1] - 1) % 6
        st0 = STEPS[0]
        S0 = {k: fA(k) for k in st0["keys"]}
        a("s_barrier")
        self.stamp(1)
        for nm in ("Fa", "Ga"):
            for t, _ in self.wread(w, nm, st0): a(t)
        for q in (4, 3, 2, 1, 0):
            a(self.uread(st0["keys"][q], S0[st0["keys"][q]])[0])
        a("s_waitcnt lgkmcnt(0)")
        S, labA = self.phase(w, 0, fA, S0, w == 0)
        out = []
        for n in range(40, 46):
            self.emit_step(w, STEPS[n], STEPS[n + 1], S, fB if n == 45 else None, None, out)
        for x in out: a(x)
        self.stamp(2)
        tiles = [COL["Fa"] * 5 + q for q in (4, 3, 2, 1, 0)] + [COL["Ga"] * 5 + q for q in (4, 3, 2, 1, 0)] + [20, 21] + ([22] if w < 2 else [])
        tiles += [COL[c] * 5 + q for q in (4, 3, 2, 1, 0) for c in ("Fb", "Gb")]
        prs = [(72 + 8 * t + h, 76 + 8 * t + h) for t in tiles for h in (0, 2)]
        for i in range(0, len(prs), 4):
            for p, q in prs[i:i + 4]: a(f"v_pk_add_f32 {vr(p,2)}, {vr(p,2)}, {vr(q,2)} neg_lo:[0,1] neg_hi:[0,1]")
            for p, q in prs[i:i + 4]: a(f"v_pk_fma_f32 {vr(q,2)}, {vr(q,2)}, s[{sTWO}:{sTWO+1}], {vr(p,2)}")
        a("s_waitcnt lgkmcnt(0)")
        S0 = {k: fB(k) for k in STEPS[46]["keys"]}
        assert S["umap"] == S0
        S, labB = self.phase(w, 46, fB, S0, False)
        out = []
        for n in range(86, 92):
            self.emit_step(w, STEPS[n], STEPS[n + 1] if n < 91 else None, S, None, None, out)
        for x in out: a(x)
        a("s_branch L_cepi")
        if w == 0:
            a(f"{labA}_hook:")
            a(f"s_cmp_eq_u32 s{sCNT}, 2")
            a("s_cbranch_scc1 L_spin")
            a("v_mov_b32 v9, 0")
            if self.cfg.get("spinmax"): a(f"s_mov_b32 s{sT1}, 0")
            a("global_load_dword v8, v9, s[12:13] sc1")
            a(f"s_branch {labA}")
            a("L_spin:")
            if self.cfg.get("spinmax"):
                a(f"s_add_u32 s{sT1}, s{sT1}, 1"); a(f"s_cmp_ge_u32 s{sT1}, {self.cfg['spinmax']}"); a("s_cbranch_scc1 L_gok")
            a("s_waitcnt vmcnt(0)")
            a(f"v_readfirstlane_b32 s{sT0}, v8")
            a(f"s_cmp_ge_u32 s{sT0}, {NPROD}")
            a("s_cbranch_scc1 L_gok")
            a("global_load_dword v8, v9, s[12:13] sc1")
            a("s_branch L_spin")
            a("L_gok:")
            for c in range(5):
                a(f"s_mov_b32 s{sT0}, {c*SLOT}")
                a(f"buffer_load_dword v10, v{vT}, {srd(sG)}, s{sT0} offen sc1")
            a(f"s_branch {labA}")

    def bfly(self, prs):
        a = self.a
        L = [(p + h, q + h, c) for p, q, c in prs for h in (0, 2)]
        for p, q, c in L: a(f"v_pk_mul_f32 {vr(q,2)}, {vr(q,2)}, s[{c}:{c+1}]")
        for p, q, c in L: a(f"v_pk_fma_f32 {vr(p,2)}, {vr(p,2)}, s[{c}:{c+1}], {vr(q,2)}")
        for p, q, c in L: a(f"v_pk_fma_f32 {vr(q,2)}, {vr(q,2)}, s[{sM2}:{sM2+1}], {vr(p,2)}")

    def act(self, tiles, tmp):
        a = self.a
        for f, g, o in tiles:
            for r in range(4): a(f"v_min_f32 v{f+r}, s{sCLAMP}, v{f+r}")
        for f, g, o in tiles:
            for r in range(4): a(f"v_exp_f32 v{g+r}, v{g+r}")
        for f, g, o in tiles:
            for r in range(4): a(f"v_exp_f32 v{f+r}, v{f+r}")
        for i, (f, g, o) in enumerate(tiles):
            for h in (0, 2): a(f"v_pk_add_f32 {vr(tmp+4*i+h,2)}, {vr(f+h,2)}, s[{sONE}:{sONE+1}]")
        for i, (f, g, o) in enumerate(tiles):
            for h in (0, 2): a(f"v_pk_fma_f32 {vr(g+h,2)}, {vr(tmp+4*i+h,2)}, {vr(g+h,2)}, {vr(tmp+4*i+h,2)}")
        for f, g, o in tiles:
            for r in range(4): a(f"v_rcp_f32 v{g+r}, v{g+r}")
        for f, g, o in tiles:
            for h in (0, 2): a(f"v_pk_fma_f32 {vr(f+h,2)}, {vr(f+h,2)}, {vr(g+h,2)}, {vr(g+h,2)} neg_lo:[1,0,0] neg_hi:[1,0,0]")
        for f, g, o in tiles:
            for h in (0, 1): a(f"v_cvt_pk_bf16_f32 v{o+h}, v{f+2*h}, v{f+2*h+1}")

    def compute_epilogue(self):
        a = self.a
        a(".p2align 6")
        a("L_cepi:")
        self.stamp(3)
        a("s_waitcnt vmcnt(0)")
        a("v_lshlrev_b32 v2, 3, v0"); a("v_lshlrev_b32 v3, 4, v0")
        a(f"s_lshl_b32 s{sT0}, s{sWV}, 10"); a(f"v_add_u32 v1, s{sT0}, v3")
        a(f"s_mul_i32 s{sT1}, s{sWV}, 4608")
        a(f"s_add_u32 s{sT2}, s{sT1}, {4096+6*4608}"); a(f"v_add_u32 v4, s{sT2}, v2")
        a(f"s_lshl_b32 s{sT1}, s{sT1}, 1"); a(f"s_add_u32 s{sT1}, s{sT1}, 4096"); a(f"v_add_u32 v2, s{sT1}, v2")
        a(f"s_lshl_b32 s{sT1}, s{sWV}, 11"); a(f"s_sub_u32 s{sT2}, s{sT0}, 2048")
        a(f"s_cmp_lt_u32 s{sWV}, 2"); a(f"s_cselect_b32 s{sT1}, s{sT1}, s{sT2}")
        a(f"s_add_u32 s{sT1}, s{sT1}, {EX}"); a(f"v_add_u32 v3, s{sT1}, v3")
        a(f"s_cmp_ge_u32 s{sWV}, 2"); a("s_cbranch_scc1 L_nox")
        self.bfly([(acc("X", 0, "P"), acc("X", 0, "Q"), sCX)])
        a(f"ds_write_b128 v3, {vr(acc('X',0,'P'))}")
        a(f"ds_write_b128 v3, {vr(acc('X',0,'Q'))} offset:1024")
        a("L_nox:")
        self.bfly([(acc("F8", 0, "P"), acc("F8", 0, "Q"), sCF), (acc("G8", 0, "P"), acc("G8", 0, "Q"), sCG)])
        self.act([(acc("F8", 0, "P"), acc("G8", 0, "P"), 8), (acc("F8", 0, "Q"), acc("G8", 0, "Q"), 10)], 20)
        a("ds_write_b64 v2, v[8:9]")
        a("ds_write_b64 v2, v[10:11] offset:4608")
        for q in range(5):
            if q == 1:
                a(f"s_cmp_lt_u32 s{sWV}, 2"); a("s_cbranch_scc1 L_nox2")
                a("ds_read_b128 v[44:47], v3"); a("ds_read_b128 v[48:51], v3 offset:2048")
                a("s_waitcnt lgkmcnt(0)")
                self.act([(44, 48, 8)], 20)
                a("ds_write_b64 v4, v[8:9]")
                a("L_nox2:")
            self.bfly([(acc(c, q, "P"), acc(c, q, "Q"), sCF if c[0] == "F" else sCG) for c in ("Fa", "Ga", "Fb", "Gb")])
            for y, wh in enumerate("PQ"):
                o = 12 + 4 * y
                self.act([(acc("Fa", q, wh), acc("Ga", q, wh), o), (acc("Fb", q, wh), acc("Gb", q, wh), o + 2)], 20 + 8 * y)
                a(f"ds_write_b128 v1, {vr(o)} offset:{(2*q+y)*4608}")
            a("s_waitcnt lgkmcnt(0)")
            a("s_barrier")
        self.stamp(4)
        if self.prof:
            a(f"s_cmp_lg_u32 s{sWV}, 0"); a("s_cbranch_scc1 L_cend")
            self.stamp(7, True)
            self.dump_stamps(0)
            a("L_cend:")
        a("s_endpgm")

    def compute_prologue(self):
        a = self.a
        a("L_compute:")
        ncode = self.cfg.get("ncode", 3)
        a(f"s_mul_i32 s{sT0}, s{sWV}, {8192*ncode}")
        a(f"v_lshlrev_b32 v12, 7, v0"); a(f"v_add_u32 v12, s{sT0}, v12")
        for i in range(ncode):
            a(f"v_min_u32 v13, L_code_end-{KN}-4, v12")
            a(f"global_load_dword v8, v13, s[{sPC}:{sPC+1}]")
            a("v_add_u32 v12, 0x2000, v12")
        a(f"s_lshr_b32 s{sT0}, s{sGI}, 3"); a(f"s_mul_i32 s{sT1}, s{sT0}, 58")
        a(f"v_add_u32 v12, s{sT1}, v0")
        a("v_mul_u32_u24 v13, 29128, v12"); a("v_lshrrev_b32 v13, 22, v13")
        a("v_mul_u32_u24 v14, 64512, v13")
        a(f"v_lshl_add_u32 v{vT}, v12, 7, v14")
        a("v_cmp_le_u32 vcc, 5, v13")
        a("v_mov_b32 v14, 0"); a(f"v_mov_b32 v15, {5*MAT}")
        a("v_cndmask_b32 v14, v14, v15, vcc")
        a(f"v_add_u32 v14, v{vT}, v14")
        a(f"s_mul_i32 s{sT2}, s{sT0}, 13"); a(f"v_add_u32 v15, s{sT2}, v0"); a("v_lshlrev_b32 v15, 7, v15")
        a("s_waitcnt lgkmcnt(0)")
        self.mk_srd(sW, 6, 0, 15 * MAT); self.mk_srd(sG, 14, 0, 10 * MAT); self.mk_srd(sWO, 8, 0, 41472)
        a(f"s_mul_i32 s{sT0}, s{sWV}, {SLOT}")
        a(f"buffer_load_dword v9, v14, {srd(sW)}, s{sT0} offen")
        a(f"s_cmp_lg_u32 s{sWV}, 3"); a("s_cbranch_scc1 L_notouch")
        a(f"s_mov_b32 s{sT0}, {4*SLOT}")
        a(f"buffer_load_dword v10, v14, {srd(sW)}, s{sT0} offen")
        a("s_mov_b64 exec, 0xffff")
        a(f"buffer_load_dword v11, v15, {srd(sWO)}, 0 offen")
        a("s_mov_b64 exec, -1")
        a("L_notouch:")
        a("v_lshrrev_b32 v12, 4, v0")
        a("v_bfe_u32 v13, v0, 2, 2")
        a("v_lshl_add_u32 v13, v12, 3, v13")
        a("v_mul_u32_u24 v13, 576, v13")
        a("v_and_b32 v14, 3, v0"); a("v_lshl_add_u32 v13, v14, 3, v13")
        a("v_and_b32 v14, 1, v12"); a("v_lshlrev_b32 v15, 5, v14")
        a(f"v_add_u32 v{vE}, v13, v15"); a(f"v_sub_u32 v{vO}, v13, v15")
        a(f"v_add_u32 v{vEh}, {3*SLOT}, v{vE}"); a(f"v_add_u32 v{vOh}, {3*SLOT}, v{vO}")
        a("v_and_b32 v13, 15, v0")
        a("v_lshlrev_b32 v15, 1, v14"); a("v_xor_b32 v15, v15, v13")
        a("v_lshl_add_u32 v15, v12, 4, v15"); a("v_lshlrev_b32 v15, 4, v15")
        a(f"v_add_u32 v{vUA}, {UB0}, v15")
        a("v_lshrrev_b32 v12, 1, v12")
        a("v_lshlrev_b32 v15, 1, v12"); a("v_xor_b32 v15, v15, v13")
        a("v_lshl_add_u32 v15, v12, 4, v15"); a("v_lshlrev_b32 v15, 4, v15")
        a("v_lshl_add_u32 v15, v14, 3, v15")
        a(f"v_add_u32 v{vU16}, {UB1}, v15")
        cF, cG = f2u(-LOG2E), f2u(-LOG2E / 2)
        for r, v in ((sCF, cF), (sCG, cG), (sONE, f2u(1.0)), (sM2, f2u(-2.0)), (sTWO, f2u(2.0))):
            a(f"s_mov_b32 s{r}, {v:#x}"); a(f"s_mov_b32 s{r+1}, {v:#x}")
        a(f"s_cmp_eq_u32 s{sWV}, 0"); a(f"s_cselect_b32 s{sCX}, s{sCF}, s{sCG}"); a(f"s_mov_b32 s{sCX+1}, s{sCX}")
        a(f"s_mov_b32 s{sCLAMP}, {f2u(30.0):#x}")
        for r in range(72, 256): a(f"v_mov_b32 v{r}, 0")
        for w in (1, 2, 3):
            a(f"s_cmp_eq_u32 s{sWV}, {w}"); a(f"s_cbranch_scc1 L_cw{w}")
        a("s_branch L_cw0")

    def mk_srd(self, r, p, off, n):
        a = self.a
        if off == 0:
            a(f"s_mov_b32 s{r}, s{p}"); a(f"s_mov_b32 s{r+1}, s{p+1}")
        else:
            a(f"s_add_u32 s{r}, s{p}, {off}"); a(f"s_addc_u32 s{r+1}, s{p+1}, 0")
        a(f"s_mov_b32 s{r+2}, {n}"); a(f"s_mov_b32 s{r+3}, 0x20000")

    def loader(self):
        a = self.a
        VF, VP, VK, XR, XR0 = 1, 6, 11, 16, 20
        UWR, UWRH, UW0, UW0H = 25, 26, 27, 28
        X = lambda c, i: 32 + 20 * c + 4 * i
        X0 = lambda c, i: (132 if c < 4 else 148) + 4 * (i - 1)
        owner = lambda c: c if c < 4 else 0
        TM = 164
        Q = []
        self.nlab = 0

        def wait(tag):
            pos = max([i for i, (t, o) in enumerate(Q) if t == tag], default=-1)
            if pos < 0: return
            n = sum(1 for t, o in Q[pos + 1:] if not o)
            a(f"s_waitcnt vmcnt({n})")
            del Q[:pos + 1]

        def xload(c, i):
            a(f"buffer_load_dwordx4 {vr(X(c,i))}, v{XR+i}, {srd(sX)}, 0 offen offset:{64*c}")
            Q.append((("x", c), False))

        def skip_unless(cond_reg, val):
            self.nlab += 1
            a(f"s_cmp_eq_u32 s{cond_reg}, {val}"); a(f"s_cbranch_scc0 L_sk{self.nlab}")
            return f"L_sk{self.nlab}:"

        def xload0(c):
            l = skip_unless(sLW, owner(c))
            for i in range(1, 5):
                a(f"buffer_load_dwordx4 {vr(X0(c,i))}, v{XR0+i}, {srd(sX)}, 0 offen offset:{64*c}")
                Q.append((("x", c), True))
            a(l)

        def dma(n):
            st = STEPS[n]
            vs = dict(full=VF, pair=VP, k16=VK)[st["kind"]]
            d = srd(sW) if st["src"] == "W" else srd(sG)
            sc = "" if st["src"] == "W" else " sc1"
            a(f"s_add_u32 m0, s{sM4}, {st['slot']*SLOT}")
            a(f"s_mov_b32 s{sOFF}, {st['soff']}")
            for i in range(4):
                a(f"buffer_load_dwordx4 v{vs+i}, {d}, s{sOFF} offen offset:{1024*i}{sc} lds")
                Q.append((("w", n), False))
            a(f"s_add_u32 m0, s{sM5}, {st['slot']*SLOT}")
            l = skip_unless(sHALF, n & 1)
            a(f"buffer_load_dwordx4 v{vs+4}, {d}, s{sOFF} offen{sc} lds")
            Q.append((("w", n), True))
            a(l)
            assert len(Q) <= 60

        def unpack(L, dst, src):
            L.append(f"v_lshlrev_b32 v{dst}, 16, v{src}"); L.append(f"v_and_b32 v{dst+1}, s{sMASK}, v{src}")

        def comb(L, op, o, t, x, y):
            L.append(f"{op} v{t}, v{x}, v{y}"); L.append(f"{op} v{t+1}, v{x+1}, v{y+1}")
            L.append(f"v_cvt_pk_bf16_f32 v{o}, v{t}, v{t+1}")

        def prod(kap):
            c = kap % 5; ub = (UB1 if kap & 1 else UB0) - UB1
            wr, w0 = (UWRH, UW0H) if c == 4 else (UWR, UW0)
            O = TM + 16
            L = []; B = []
            if kap < 5:
                for d in range(4):
                    unpack(L, TM, X(c, 2) + d); unpack(L, TM + 2, X(c, 4) + d); unpack(L, TM + 4, X(c, 0) + d)
                    comb(L, "v_sub_f32", O + d, TM + 6, TM, TM + 2); comb(L, "v_sub_f32", O + 4 + d, TM + 8, TM + 4, TM)
                L.append(f"ds_write_b128 v{wr}, {vr(O)} offset:{ub+5*1024}"); L.append(f"ds_write_b128 v{wr}, {vr(O+4)} offset:{ub+15*1024}")
                for d in range(4):
                    unpack(L, TM, X(c, 1) + d); unpack(L, TM + 2, X(c, 3) + d)
                    comb(L, "v_sub_f32", O + 8 + d, TM + 6, TM, TM + 2)
                L.append(f"ds_write_b128 v{wr}, {vr(O+8)} offset:{ub+10*1024}")
                for i, idx in ((2, 5), (1, 10)):
                    b = []
                    for d in range(4):
                        unpack(b, TM, X0(c, i) + d); unpack(b, TM + 2, X0(c, i + 2) + d)
                        comb(b, "v_sub_f32", O + 12 + d, TM + 6, TM, TM + 2)
                    b.append(f"ds_write_b128 v{w0}, {vr(O+12)} offset:{ub+idx*1024}")
                    B.append(b)
            else:
                for d in range(4):
                    unpack(L, TM, X(c, 1) + d); unpack(L, TM + 2, X(c, 2) + d); unpack(L, TM + 4, X(c, 3) + d)
                    comb(L, "v_add_f32", O + d, TM + 6, TM + 2, TM + 4); comb(L, "v_add_f32", O + 4 + d, TM + 8, TM, TM + 2)
                    comb(L, "v_sub_f32", O + 8 + d, TM + 10, TM + 4, TM + 2); comb(L, "v_sub_f32", O + 12 + d, TM + 12, TM + 2, TM)
                for o, idx in ((0, 5), (4, 10), (8, 14), (12, 19)):
                    L.append(f"ds_write_b128 v{wr}, {vr(O+o)} offset:{ub+idx*1024}")
                for half in range(2):
                    b = []
                    for d in (2 * half, 2 * half + 1):
                        unpack(b, TM, X0(c, 2) + d); unpack(b, TM + 2, X0(c, 3) + d)
                        comb(b, "v_add_f32", O + 16 + d, TM + 6, TM, TM + 2); comb(b, "v_sub_f32", O + 20 + d, TM + 8, TM + 2, TM)
                    if half:
                        b.append(f"ds_write_b128 v{w0}, {vr(O+16)} offset:{ub+5*1024}"); b.append(f"ds_write_b128 v{w0}, {vr(O+20)} offset:{ub+14*1024}")
                    B.append(b)
            return L, B

        a(".p2align 6")
        a("L_loader:")
        a(f"s_sub_u32 s{sLW}, s{sWV}, 4")
        a(f"s_cmp_ge_u32 s{sGI}, 100"); a(f"s_cselect_b32 s{sT0}, 100, 0"); a(f"s_cselect_b32 s{sT3}, 4608000, 0")
        a(f"s_sub_u32 s{sT0}, s{sGI}, s{sT0}"); a(f"s_mul_i32 s{sT0}, s{sT0}, 160")
        a(f"s_sub_u32 s{sT1}, s{sT0}, 30")
        a(f"s_lshl_b32 s{sT2}, s{sLW}, 1"); a(f"s_add_u32 s{sT2}, s{sT2}, s{sT1}"); a(f"s_add_u32 s{sT2}, s{sT2}, 2")
        a("v_lshrrev_b32 v29, 3, v0"); a("v_mul_u32_u24 v29, 20, v29")
        a("v_bfe_u32 v30, v0, 2, 1"); a("v_add_u32 v29, v29, v30")
        a("v_and_b32 v30, 3, v0"); a("v_lshlrev_b32 v31, 4, v30")
        a(f"v_mov_b32 v165, {OOB:#x}")
        for (base, sreg, rng) in ((XR, sT2, range(5)), (XR0, sT1, range(1, 5))):
            for i in rng:
                a(f"s_add_u32 s{sOFF}, s{sreg}, {10*i}")
                a(f"v_add_u32 v164, s{sOFF}, v29")
                a("v_cmp_gt_i32 vcc, 0, v164")
                a(f"v_mul_u32_u24 v164, 288, v164")
                a(f"v_add_u32 v164, v164, v31")
                a(f"v_cndmask_b32 v{base+i}, v164, v165, vcc")
        a("s_waitcnt lgkmcnt(0)")
        a(f"s_add_u32 s{sX}, s4, s{sT3}"); a(f"s_addc_u32 s{sX+1}, s5, 0"); a(f"s_mov_b32 s{sX+2}, 4608000"); a(f"s_mov_b32 s{sX+3}, 0x20000")
        for i in (2, 4, 0, 1, 3): xload(0, i)
        xload0(0)
        self.mk_srd(sW, 6, 0, 15 * MAT)
        a(f"s_lshl_b32 s{sM4}, s{sLW}, 12")
        a(f"s_and_b32 s{sM5}, s{sLW}, 1"); a(f"s_lshl_b32 s{sM5}, s{sM5}, 10"); a(f"s_add_u32 s{sM5}, s{sM5}, 16384")
        a(f"s_lshr_b32 s{sHALF}, s{sLW}, 1")

        def piece(i, kinds):
            if i < 4: a(f"s_lshr_b32 s{sT0}, s{sM4}, 4"); a(f"s_add_u32 s{sT0}, s{sT0}, {64*i}")
            else: a(f"s_lshr_b32 s{sT0}, s{sM5}, 4")
            sub = 1024 * i if i < 4 else 0
            a(f"v_add_u32 v166, s{sT0}, v0")
            a("v_mul_u32_u24 v167, 1821, v166"); a("v_lshrrev_b32 v167, 16, v167")
            a("v_mul_u32_u24 v168, 576, v167")
            a("v_lshlrev_b32 v166, 4, v166"); a("v_sub_u32 v166, v166, v168")
            a("v_lshlrev_b32 v169, 2, v167"); a("v_and_b32 v169, 32, v169"); a("v_xor_b32 v166, v166, v169")
            if "f" in kinds:
                a(f"v_add_u32 v{VF+i}, v166, v168")
                if sub: a(f"v_subrev_u32 v{VF+i}, {sub}, v{VF+i}")
            if "p" in kinds:
                a("v_lshrrev_b32 v169, 4, v167"); a("v_add_u32 v169, 1, v169"); a("v_mul_u32_u24 v169, 73728, v169")
                a(f"v_add_u32 v{VP+i}, v{VF+i}, v169")
                a("v_lshrrev_b32 v169, 3, v167"); a("v_and_b32 v168, 3, v167"); a("v_lshl_add_u32 v169, v169, 2, v168")
                a("v_mul_u32_u24 v169, 576, v169"); a("v_add_u32 v169, v169, v166"); a(f"v_add_u32 v169, {73728-sub}, v169")
                a("v_and_b32 v168, 4, v167"); a("v_cmp_eq_u32 vcc, 0, v168")
                a(f"v_cndmask_b32 v{VK+i}, v165, v169, vcc")
        for i in range(5): piece(i, "f")
        dma(0); dma(1)
        for i in (2, 4, 0, 1, 3): xload(1, i)
        xload0(1)
        dma(2); dma(3); dma(4)
        a(f"s_mov_b32 s{sMASK}, 0xffff0000")
        a("v_lshrrev_b32 v166, 2, v0"); a("v_and_b32 v167, 1, v30"); a("v_lshlrev_b32 v167, 1, v167"); a("v_xor_b32 v166, v166, v167")
        a("v_lshl_add_u32 v166, v30, 4, v166"); a("v_lshlrev_b32 v166, 4, v166")
        a(f"v_add_u32 v{UW0}, {UB1}, v166")
        a(f"s_lshl_b32 s{sT0}, s{sLW}, 10"); a(f"s_add_u32 s{sT0}, s{sT0}, 1024")
        a(f"v_subrev_u32 v{UWR}, s{sT0}, v{UW0}")
        a("v_and_b32 v167, 2, v30"); a("v_lshlrev_b32 v167, 9, v167")
        a(f"v_sub_u32 v{UW0H}, v{UW0}, v167"); a(f"v_sub_u32 v{UWRH}, v{UWR}, v167")
        self.mk_srd(sG, 14, 0, 10 * MAT); self.mk_srd(sWO, 8, 0, 41472)
        a(f"s_mul_i32 s{sT0}, s{sGI}, 46080")
        a(f"s_add_u32 s{sO}, s10, s{sT0}"); a(f"s_addc_u32 s{sO+1}, s11, 0"); a(f"s_mov_b32 s{sO+2}, 46080"); a(f"s_mov_b32 s{sO+3}, 0x20000")
        wait(("x", 0))
        L, B = prod(0)
        for x in L: a(x)
        l = skip_unless(sLW, owner(0))
        for b in B:
            for x in b: a(x)
        a(l)
        wait(("w", 0))
        a("s_waitcnt lgkmcnt(0)")
        a("s_barrier")
        work = {n: [] for n in range(92)}
        first = lambda k: min(s["n"] for s in STEPS if s["kap"] == k)
        last = lambda k: max(s["n"] for s in STEPS if s["kap"] == k)
        lgk = set()
        for kap in range(1, 10):
            f, l_ = first(kap - 1), last(kap - 1)
            L, B = prod(kap)
            iv = list(range(f + (3 if kap == 1 else 1 if l_ - f == 9 else 0), l_ + 1))
            bi = iv[-2:]; ri = iv[:-2]
            per = -(-len(L) // len(ri))
            if kap < 5:
                work[ri[0]].append(lambda k=kap: wait(("x", k)))
            for j, n in enumerate(ri):
                work[n].append(lambda P=L[j * per:(j + 1) * per]: [a(x) for x in P])
            for n, b in zip(bi, B):
                def blk(b=b, c=kap % 5):
                    l = skip_unless(sLW, owner(c))
                    for x in b: a(x)
                    a(l)
                work[n].append(blk)
            lgk.add(l_)
        for c in (2, 3, 4):
            f = first(c - 2)
            if c == 4:
                def adj():
                    a("v_and_b32 v166, 2, v0"); a("v_lshlrev_b32 v166, 4, v166")
                    for r in range(XR, XR + 9): a(f"v_sub_u32 v{r}, v{r}, v166")
                work[f].insert(0, adj)
            for j, i in enumerate((2, 4, 0, 1, 3)):
                work[f + 1 + j].insert(0, lambda c=c, i=i: xload(c, i))
            work[f + 6].insert(0, lambda c=c: xload0(c))
        for i in range(5):
            work[10 + 2 * i].append(lambda i=i: piece(i, "p"))

        def wo_dma(js):
            for j in js:
                a(f"s_add_u32 m0, s{sT3}, {WO+4096*j}")
                a(f"s_add_u32 s{sOFF}, s{sT3}, {4096*j}")
                if j == 10: l = skip_unless(sLW, 0)
                a(f"buffer_load_dwordx4 v29, {srd(sWO)}, s{sOFF} offen lds")
                Q.append(("wo", j == 10))
                if j == 10: a(l)
        work[86].append(lambda: (a("v_lshlrev_b32 v29, 4, v0"), a(f"s_lshl_b32 s{sT3}, s{sLW}, 10")))
        work[87].append(lambda: wo_dma(range(0, 3)))
        work[88].append(lambda: wo_dma(range(3, 7)))
        work[89].append(lambda: wo_dma(range(7, 11)))
        ZA, Z16, WA, SA, SR, GO = 200, 201, 202, 203, 204, 207

        def epi_addr():
            a(f"s_lshr_b32 s{sT0}, s{sLW}, 1"); a(f"s_and_b32 s{sT1}, s{sLW}, 1")
            a(f"s_mul_i32 s{sT2}, s{sT0}, 4608")
            a(f"v_lshlrev_b32 v166, 4, v0"); a(f"v_add_u32 v{ZA}, s{sT2}, v166")
            a(f"s_add_u32 s{sT2}, s{sT2}, 4096"); a(f"v_lshlrev_b32 v166, 3, v0"); a(f"v_add_u32 v{Z16}, s{sT2}, v166")
            a(f"s_mul_i32 s{sT1}, s{sT1}, 160")
            a("v_lshrrev_b32 v166, 2, v0"); a("v_mul_u32_u24 v166, 288, v166")
            a("v_and_b32 v167, 3, v0"); a("v_lshl_add_u32 v166, v167, 3, v166")
            a(f"s_add_u32 s{sT2}, s{sT1}, {WO}"); a(f"v_add_u32 v{WA}, s{sT2}, v166")
            a("v_and_b32 v166, 15, v0"); a(f"v_mul_u32_u24 v166, {STROW}, v166")
            a("v_lshrrev_b32 v167, 4, v0"); a("v_lshl_add_u32 v166, v167, 3, v166")
            a(f"s_mul_i32 s{sT2}, s{sT0}, {16*STROW}"); a(f"s_add_u32 s{sT2}, s{sT2}, s{sT1}"); a(f"s_add_u32 s{sT2}, s{sT2}, {ST}")
            a(f"v_add_u32 v{SA}, s{sT2}, v166")

        def epi_addr2(m):
            if m < 2: a(f"s_lshl_b32 s{sT0}, s{sLW}, 6"); a(f"s_add_u32 s{sT0}, s{sT0}, {256*m}")
            else: a(f"s_mov_b32 s{sT0}, 512")
            a(f"v_add_u32 v166, s{sT0}, v0")
            a("v_mul_u32_u24 v167, 3641, v166"); a("v_lshrrev_b32 v167, 16, v167")
            a("v_mul_u32_u24 v168, 18, v167"); a("v_sub_u32 v166, v166, v168"); a("v_lshlrev_b32 v166, 4, v166")
            a(f"v_mul_u32_u24 v168, {STROW}, v167"); a("v_add_u32 v168, v168, v166"); a(f"v_add_u32 v{SR+m}, {ST}, v168")
            a("v_bfe_u32 v168, v167, 1, 3"); a("v_mul_u32_u24 v168, 20, v168")
            a("v_lshrrev_b32 v169, 4, v167"); a("v_mul_u32_u24 v169, 10, v169"); a("v_add_u32 v168, v168, v169")
            a("v_and_b32 v169, 1, v167"); a("v_add_u32 v168, v168, v169")
            a("v_mul_u32_u24 v168, 288, v168"); a(f"v_add_u32 v{GO+m}, v168, v166")
        work[86].append(epi_addr)
        for m in range(3): work[88 + m].append(lambda m=m: epi_addr2(m))
        for n in range(92):
            if 1 <= n and n + 4 <= 91: dma(n + 4)
            for f in work[n]: f()
            if n + 1 <= 91: wait(("w", n + 1))
            if n == 91: wait("wo"); assert not Q
            if n in lgk: a("s_waitcnt lgkmcnt(0)")
            a("s_barrier")
        self.stamp(3)
        AF = lambda i, k: 32 + 18 * i + 4 * k
        AC, BF, CV, SD = 124, 144, 164, 176
        for i in range(5):
            for k in range(5):
                a(f"ds_read_b64_tr_b16 {vr(AF(i,k),2)}, v{WA} offset:{k*9216+i*32}")
                if k < 4: a(f"ds_read_b64_tr_b16 {vr(AF(i,k)+2,2)}, v{WA} offset:{k*9216+4608+i*32}")
        a(f"s_and_b32 s{sHALF}, s{sLW}, 1")

        def stage_out(q):
            a(f"ds_read_b128 {vr(SD)}, v{SR} offset:{(q&1)*STBUF}")
            a(f"ds_read_b128 {vr(SD+4)}, v{SR+1} offset:{(q&1)*STBUF}")
            a(f"ds_read_b128 {vr(SD+8)}, v{SR+2} offset:{(q&1)*STBUF}")

        def stage_store(q):
            sm = self.cfg.get("stmod", "")
            a(f"buffer_store_dwordx4 {vr(SD)}, v{GO}, {srd(sO)}, 0 offen offset:{576*q}{sm}")
            a(f"buffer_store_dwordx4 {vr(SD+4)}, v{GO+1}, {srd(sO)}, 0 offen offset:{576*q}{sm}")
            l = skip_unless(sLW, 0)
            a(f"buffer_store_dwordx4 {vr(SD+8)}, v{GO+2}, {srd(sO)}, 0 offen offset:{576*q}{sm}")
            a(l)

        def mm(i, k):
            n2 = 4 if k < 4 else 2
            opn = "v_mfma_f32_16x16x32_bf16" if k < 4 else "v_mfma_f32_16x16x16_bf16"
            a(f"{opn} {vr(AC+4*i)}, {vr(AF(i,k),n2)}, {vr(BF+4*k,n2)}, {vr(AC+4*i) if k != 4 else 0}")

        def fin(i, q):
            a(f"v_cvt_pk_bf16_f32 v{CV+2*i}, v{AC+4*i}, v{AC+4*i+1}"); a(f"v_cvt_pk_bf16_f32 v{CV+2*i+1}, v{AC+4*i+2}, v{AC+4*i+3}")
            a(f"ds_write_b64 v{SA}, {vr(CV+2*i,2)} offset:{(q&1)*STBUF+32*i}")
        for q in range(5):
            a("s_waitcnt lgkmcnt(0)")
            a("s_barrier")
            a(f"ds_read_b64 {vr(BF+16,2)}, v{Z16} offset:{q*9216}")
            for k in range(4): a(f"ds_read_b128 {vr(BF+4*k)}, v{ZA} offset:{q*9216+k*1024}")
            if q: stage_out(q - 1)
            nx = 3 if q else 0
            for j, k in enumerate((4, 0, 1, 2, 3)):
                a(f"s_waitcnt lgkmcnt({4-j+nx})")
                for i in range(5): mm(i, k)
            if q:
                a("s_waitcnt lgkmcnt(0)")
                stage_store(q - 1)
            for i in range(4): fin(i, q)
            l = skip_unless(sHALF, 0)
            fin(4, q)
            a(l)
        a("s_waitcnt lgkmcnt(0)")
        a("s_barrier")
        stage_out(4)
        a("s_waitcnt lgkmcnt(0)")
        stage_store(4)
        if self.prof:
            self.stamp(4)
            a("s_waitcnt vmcnt(0)")
            self.stamp(5)
            self.stamp(7, True)
            a(f"s_cmp_lg_u32 s{sLW}, 0"); a("s_cbranch_scc1 L_lend")
            self.dump_stamps(64)
            a("L_lend:")
        a("s_endpgm")

    def producer(self):
        a = self.a
        a("L_prod:")
        a("s_lshl_b32 s3, s2, 9"); a(f"s_lshl_b32 s{sT0}, s{sWV}, 6"); a(f"s_add_u32 s3, s3, s{sT0}")
        a("v_add_u32 v1, s3, v0")
        a("v_cmp_gt_u32 vcc, 25920, v1")
        a("v_lshlrev_b32 v1, 4, v1"); a(f"v_mov_b32 v2, {OOB:#x}")
        a("v_cndmask_b32 v1, v2, v1, vcc")
        a(f"s_mov_b32 s{sMASK}, 0xffff0000")
        a(f"s_mov_b32 s{sT0}, {5*MAT}"); a(f"s_mov_b32 s{sT1}, {10*MAT}")
        a("s_waitcnt lgkmcnt(0)")
        self.mk_srd(sW, 6, 0, 15 * MAT); self.mk_srd(sG, 14, 0, 10 * MAT)
        a(f"buffer_load_dwordx4 v[4:7], v1, {srd(sW)}, 0 offen")
        a(f"buffer_load_dwordx4 v[8:11], v1, {srd(sW)}, s{sT0} offen")
        a(f"buffer_load_dwordx4 v[12:15], v1, {srd(sW)}, s{sT1} offen")
        a("s_waitcnt vmcnt(0)")
        for d in range(4):
            for j, s in enumerate((4, 8, 12)):
                a(f"v_lshlrev_b32 v{24+2*j}, 16, v{s+d}"); a(f"v_and_b32 v{25+2*j}, s{sMASK}, v{s+d}")
            a("v_add_f32 v24, v24, v28"); a("v_add_f32 v25, v25, v29")
            a("v_add_f32 v28, v24, v26"); a("v_add_f32 v29, v25, v27")
            a("v_sub_f32 v24, v24, v26"); a("v_sub_f32 v25, v25, v27")
            a(f"v_cvt_pk_bf16_f32 v{16+d}, v28, v29"); a(f"v_cvt_pk_bf16_f32 v{20+d}, v24, v25")
        a(f"buffer_store_dwordx4 v[16:19], v1, {srd(sG)}, 0 offen sc1")
        a(f"buffer_store_dwordx4 v[20:23], v1, {srd(sG)}, s{sT0} offen sc1")
        a("s_waitcnt vmcnt(0)")
        a("s_barrier")
        a(f"s_cmp_lg_u32 s{sWV}, 0"); a("s_cbranch_scc1 L_exit")
        a("v_mov_b32 v1, 0"); a("v_mov_b32 v2, 1")
        a("s_mov_b64 exec, 1")
        a("global_atomic_add v1, v2, s[12:13] sc1")
        a("s_waitcnt vmcnt(0)")
        a("L_exit:")
        a("s_endpgm")

    def build(self):
        a = self.a
        a(f"s_getpc_b64 s[{sPC}:{sPC+1}]")
        a("s_load_dwordx8 s[4:11], s[0:1], 0")
        a("s_load_dwordx4 s[12:15], s[0:1], 32")
        a(f"s_sub_u32 s{sPC}, s{sPC}, 4"); a(f"s_subb_u32 s{sPC+1}, s{sPC+1}, 0")
        a("v_lshrrev_b32 v1, 6, v0")
        a(f"s_sub_u32 s{sGI}, s2, {NPROD}")
        a(f"v_readfirstlane_b32 s{sWV}, v1")
        a("v_and_b32 v0, 63, v0")
        if self.prof:
            a(f"s_memtime s[{sTS}:{sTS+1}]"); a(f"s_memrealtime s[{sTS+12}:{sTS+13}]")
        a(f"s_cmp_lt_u32 s2, {NPROD}"); a("s_cbranch_scc1 L_prod")
        a(f"s_cmp_ge_u32 s2, {NPROD+NMAIN}"); a("s_cbranch_scc1 L_exit")
        a(f"s_cmp_ge_u32 s{sWV}, 4"); a("s_cbranch_scc1 L_loader")
        self.compute_prologue()
        self.producer()
        self.loader()
        for w in range(4): self.compute_main(w)
        self.compute_epilogue()
        a("L_code_end:")
        nn = a.fix(verbose=self.cfg.get("verbose", False))
        hdr = open("standalone__autoregressive_conv_wavenet__speech.s.ref").read().split("\n")
        i0 = next(i for i, x in enumerate(hdr) if x.startswith("; @launch"))
        i1 = next(i for i, x in enumerate(hdr) if x.startswith(KN + ":"))
        i2 = next(i for i, x in enumerate(hdr) if x.startswith(".section .rodata"))
        hdr[i0] = f"; @launch grid=({NPROD+NMAIN},1,1) block=(512,1,1) lds={LDS}"
        txt = "\n".join(hdr[:i1 + 1]) + "\n" + a.text() + "\n".join(hdr[i2:]) + "\n"
        return txt, nn


if __name__ == "__main__":
    assert all((i * 1821) >> 16 == i // 36 for i in range(1152))
    assert all((i * 3641) >> 16 == i // 18 for i in range(640))
    assert all((i * 29128) >> 22 == i // 144 for i in range(1500))
    out = sys.argv[1]
    cfg = {}
    for x in sys.argv[2:]:
        k, v = x.split("=", 1)
        try: v = int(v)
        except ValueError: pass
        cfg[k] = v
    txt, nn = Gen(prof=bool(cfg.get("prof", 0)), cfg=cfg).build()
    open(out, "w").write(txt)
    print(out, "lines", txt.count("\n"), "hazard nops", nn)
```

```python
import sys, struct
from asmlib import Asm

KN = "standalone__autoregressive_conv_wavenet__speech_kernel"
NPROD, NHELP, NMAIN = 56, 56, 200
SLOT, MAT = 18432, 82944
UB1, UB0 = 92160, 111616
UXOR = UB0 ^ UB1
WO, LDS = 121856, 163840
ST, STROW, STBUF, EX = 46080, 304, 9728, 65536
OOB = 0x80000000
STG, STGB = 131072, 12288
LOG2E = 1.4426950408889634


def f2u(f):
    return struct.unpack("<I", struct.pack("<f", f))[0]


def vr(b, n=4):
    return f"v[{b}:{b+n-1}]"


def build_steps():
    S = []
    for c in range(4):
        for s in range(10):
            S.append(dict(kind="full", src="W", soff=(s if s < 5 else s + 5) * MAT + c * SLOT, acc="Q" if s < 5 else "P",
                          kap=c, idx=[10 - (q - s + 5) for q in range(5)]))
    for kind, mat, acc, e0 in [("pair", 0, "Q", 5), ("pair", 2, "Q", 3), ("k16", 4, "Q", 1), ("pair", 10, "P", 0), ("pair", 12, "P", -2), ("k16", 14, "P", -4)]:
        S.append(dict(kind=kind, src="W", soff=mat * MAT, acc=acc, kap=4, idx=[10 - (q + e0) for q in range(5)]))
    for c in range(4):
        for s in range(10):
            S.append(dict(kind="full", src="G", soff=s * MAT + c * SLOT, acc="P" if s < 5 else "Q",
                          kap=5 + c, idx=[(5 if s < 5 else 14) - (q - s % 5) for q in range(5)]))
    for kind, mat, acc, e0 in [("pair", 0, "P", 0), ("pair", 2, "P", -2), ("k16", 4, "P", -4), ("pair", 5, "Q", 0), ("pair", 7, "Q", -2), ("k16", 9, "Q", -4)]:
        S.append(dict(kind=kind, src="G", soff=mat * MAT, acc=acc, kap=9, idx=[(5 if acc == "P" else 14) - (q + e0) for q in range(5)]))
    for n, s in enumerate(S):
        s["n"] = n; s["slot"] = n % 5
        s["keys"] = [(s["kap"], i, s["kind"] == "k16") for i in s["idx"]]
    return S


STEPS = build_steps()

sX, sW, sG, sO, sWO = 16, 20, 24, 28, 32
sWV, sGI, sLW = 36, 37, 38
sCNT, sT0, sT1, sT2, sT3 = 40, 41, 42, 43, 44
sM4, sM5, sHALF, sOFF = 46, 47, 48, 49
sCF, sCG, sCX, sONE, sM2, sTWO = 50, 52, 54, 56, 58, 60
sPC = 62
sCLAMP, sMASK = 64, 65
sTS = 68


def srd(r):
    return f"s[{r}:{r+3}]"


vE, vO, vEh, vOh, vUA, vU16, vT, vE16, vO16 = 1, 2, 3, 4, 5, 6, 7, 18, 19
WB = dict(Fa=20, Ga=24, F8=28, G8=32, Fb=36, Gb=40)
UBUF = [44 + 4 * i for i in range(7)]
COL = dict(Fa=0, Ga=1, Fb=2, Gb=3)


def acc(name, q, which):
    t = COL[name] * 5 + q if name in COL else dict(F8=20, G8=21, X=22)[name]
    return 72 + 8 * t + (0 if which == "P" else 4)


class Gen:
    def __init__(self, prof=False, cfg=None):
        self.a = Asm(); self.prof = prof; self.cfg = cfg or {}
        self.nst = 0

    def stamp(self, i, real=False):
        if self.prof:
            self.a(f"s_memtime s[96:97]" if not real else f"s_memrealtime s[96:97]")
            self.a("s_waitcnt lgkmcnt(0)")
            self.a(f"s_mov_b32 s{sTS+i}, s96")

    def dump_stamps(self, off):
        if not self.prof: return
        a = self.a
        a(f"s_add_u32 s{sT0}, s14, 0x100000"); a(f"s_addc_u32 s{sT1}, s15, 0")
        a(f"s_mov_b32 s{sG}, s{sT0}"); a(f"s_mov_b32 s{sG+1}, s{sT1}"); a(f"s_mov_b32 s{sG+2}, 0x100000"); a(f"s_mov_b32 s{sG+3}, 0x20000")
        a(f"s_lshl_b32 s{sT0}, s2, 7"); a(f"s_add_u32 s{sT0}, s{sT0}, {off}")
        for i in range(16): a(f"v_mov_b32 v{8+i}, s{sTS+i}")
        a(f"v_mov_b32 v1, s{sT0}")
        a("s_mov_b64 exec, 1")
        for i in range(4): a(f"buffer_store_dwordx4 {vr(8+4*i)}, v1, {srd(sG)}, 0 offen offset:{16*i}")
        a("s_waitcnt vmcnt(0)")

    def wread(self, w, name, st):
        T = dict(Fa=2 * w, Fb=2 * w + 1, Ga=9 + 2 * w, Gb=10 + 2 * w, F8=8, G8=17)[name]
        hi = st["slot"] >= 3
        base = (vO if T & 1 else vE) + (2 if hi else 0)
        off = st["slot"] * SLOT - (3 * SLOT if hi else 0) + 32 * T
        b = WB[name]
        if st["kind"] == "k16":
            assert st["slot"] <= 3
            base = vO16 if T & 1 else vE16
            off = st["slot"] * SLOT + 32 * T
        L = [f"ds_read_b64_tr_b16 {vr(b,2)}, v{base} offset:{off}"]
        if st["kind"] != "k16":
            L.append(f"ds_read_b64_tr_b16 {vr(b+2,2)}, v{base} offset:{off+2304}")
        return [(x, ("W", name, st["n"])) for x in L]

    def uread(self, key, buf):
        kap, idx, k16 = key
        if k16:
            ub = UB1 if kap & 1 else UB0
            return (f"ds_read_b64 {vr(UBUF[buf],2)}, v{vU16} offset:{ub-UB1+idx*1024}", ("U", key))
        return (f"ds_read_b128 {vr(UBUF[buf])}, v{vUA} offset:{idx*1024}", ("U", key))

    def emit_step(self, w, st, nxt, S, force=None, extra_gb=None, out=None):
        e = out.append
        Q = S["queue"]; umap = S["umap"]
        k16 = st["kind"] == "k16"
        n2 = 2 if k16 else 4
        opn = "v_mfma_f32_16x16x16_bf16" if k16 else "v_mfma_f32_16x16x32_bf16"

        def waitfor(keys):
            pos = -1
            for i, k in enumerate(Q):
                if k in keys: pos = i
            if pos < 0: return None
            return len(Q) - 1 - pos, pos

        def dowait(keys):
            r = waitfor(keys)
            if r is None: return
            e(f"s_waitcnt lgkmcnt({min(15, r[0])})")
            del Q[:r[1] + 1]

        def run(ms, loads, first_cap=2):
            loads = list(loads)
            for i, (an, q, wn) in enumerate(ms):
                uk = st["keys"][q]
                dowait({("W", wn, st["n"]), ("U", uk)})
                d = acc(an, q, st["acc"])
                e(f"{opn} {vr(d)}, {vr(WB[wn], n2)}, {vr(UBUF[umap[uk]], n2)}, {vr(d)}")
                cap = 2
                if i + 1 < len(ms):
                    an2, q2, wn2 = ms[i + 1]
                    if waitfor({("W", wn2, st["n"]), ("U", st["keys"][q2])}) is not None: cap -= 1
                else:
                    cap -= 1
                j = 0
                while cap > 0 and j < len(loads):
                    if loads[j][2] <= i:
                        t, k, _ = loads.pop(j)
                        e(t)
                        if k is not None: Q.append(k)
                        cap -= 1
                    else:
                        j += 1
            for t, k, _ in loads:
                e(t)
                if k is not None: Q.append(k)

        ga = [(c, q, c) for q in (4, 3, 2, 1, 0) for c in ("Fa", "Ga")]
        gs = [("F8", w, "F8"), ("G8", w, "G8")]
        if w == 0: gs.append(("X", 4, "F8"))
        if w == 1: gs.append(("X", 4, "G8"))
        gb = [(c, q, c) for q in (4, 3, 2, 1, 0) for c in ("Fb", "Gb")]
        la = [(t, k, 0) for nm in ("F8", "G8") for t, k in self.wread(w, nm, st)]
        la += [(t, k, 2) for nm in ("Fb", "Gb") for t, k in self.wread(w, nm, st)]
        run(ga + gs, la)
        dowait({("W", "Fb", st["n"]), ("W", "Gb", st["n"])})
        assert not Q
        e("s_barrier")
        lb = []
        if nxt is not None:
            if nxt["kap"] != st["kap"]:
                e(f"v_xor_b32 v{vUA}, {UXOR:#x}, v{vUA}")
            cur = st["keys"]
            keep = set(cur) | set(nxt["keys"])
            for k in list(umap):
                if k not in keep: del umap[k]
            freeat = {b: 0 for b in range(7) if b not in umap.values()}
            for q in range(5):
                if cur[q] not in nxt["keys"]:
                    freeat[umap[cur[q]]] = 2 * (4 - q) + 1
            newm = {}
            ul = []
            for q in (4, 3, 2, 1, 0):
                k = nxt["keys"][q]
                if k in umap: continue
                if force is not None:
                    b = force(k)
                    assert b in freeat, (st["n"], k, b, umap, freeat)
                else:
                    b = min(freeat, key=lambda x: (freeat[x], x))
                t, kk = self.uread(k, b)
                ul.append((2 * (4 - q), t, kk, freeat.pop(b)))
                newm[k] = b
            fa = self.wread(w, "Fa", nxt); gaa = self.wread(w, "Ga", nxt)
            allr = [(0, t, k, 0) for t, k in fa] + [(1, t, k, 0) for t, k in gaa] + ul
            allr.sort(key=lambda x: x[0])
            lb = [(t, k, g) for _, t, k, g in allr]
        if extra_gb:
            lb += [(t, None, 6) for t in extra_gb]
        run(gb, lb)
        if nxt is not None:
            for k in list(umap):
                if k not in nxt["keys"]: del umap[k]
            umap.update(newm)

    @staticmethod
    def shift_state(S, dn, dk):
        q = []
        for k in S["queue"]:
            if k[0] == "W": q.append(("W", k[1], k[2] + dn))
            else: q.append(("U", (k[1][0] + dk, k[1][1], k[1][2])))
        return dict(queue=q, umap={(k[0] + dk, k[1], k[2]): b for k, b in S["umap"].items()})

    def al8(self, L):
        m = self.cfg.get("al8", 0)
        if not m: return L
        out = []; par = 0
        for x in L:
            sz = 4 if x.startswith("s_") else 8
            if sz == 8 and par != (m - 1) * 4:
                out.append("s_nop 0"); par ^= 4
            out.append(x); par = (par + sz) % 8
        if par: out.append("s_nop 0")
        return out

    def phase(self, w, n0, force, S0, hooks):
        a = self.a
        lab = f"L_c{w}_{n0}"
        S = dict(queue=[], umap=dict(S0))
        tmp = []
        for n in range(n0, n0 + 10):
            self.emit_step(w, STEPS[n], STEPS[n + 1], S, force, None, tmp)
        Send = self.shift_state(S, -10, -1)
        assert Send["umap"] == S0, (Send, S0)
        S = dict(queue=list(Send["queue"]), umap=dict(Send["umap"]))
        body = []
        for n in range(n0, n0 + 10):
            ex = [f"s_add_u32 s{sCNT}, s{sCNT}, 1", f"s_cmp_lt_u32 s{sCNT}, {3 if hooks else 4}"] if n == n0 + 9 else None
            self.emit_step(w, STEPS[n], STEPS[n + 1], S, force, ex, body)
        chk = self.shift_state(S, -10, -1)
        assert chk == Send
        a(f"s_mov_b32 s{sCNT}, 0")
        a(".p2align 3")
        a(lab + ":")
        for x in self.al8(body): a(x)
        if hooks:
            a(f"s_cbranch_scc1 {lab}_hook")
            a(f"s_cmp_lt_u32 s{sCNT}, 4")
        a(f"s_cbranch_scc1 {lab}")
        S = self.shift_state(S, 30, 3)
        return S, lab

    def compute_main(self, w):
        a = self.a
        a(".p2align 6")
        a(f"L_cw{w}:")
        fA = lambda k: (k[1] - 1) % 7
        fB = lambda k: (k[1] - 1) % 6
        st0 = STEPS[0]
        S0 = {k: fA(k) for k in st0["keys"]}
        a("s_barrier")
        self.stamp(1)
        for nm in ("Fa", "Ga"):
            for t, _ in self.wread(w, nm, st0): a(t)
        for q in (4, 3, 2, 1, 0):
            a(self.uread(st0["keys"][q], S0[st0["keys"][q]])[0])
        a("s_waitcnt lgkmcnt(0)")
        S, labA = self.phase(w, 0, fA, S0, False)
        out = []
        for n in range(40, 46):
            self.emit_step(w, STEPS[n], STEPS[n + 1], S, fB if n == 45 else None, None, out)
        if self.cfg.get("al8"): a("s_nop 0")
        for x in self.al8(out): a(x)
        self.stamp(2)
        tiles = [COL["Fa"] * 5 + q for q in (4, 3, 2, 1, 0)] + [COL["Ga"] * 5 + q for q in (4, 3, 2, 1, 0)] + [20, 21] + ([22] if w < 2 else [])
        tiles += [COL[c] * 5 + q for q in (4, 3, 2, 1, 0) for c in ("Fb", "Gb")]
        prs = [(72 + 8 * t + h, 76 + 8 * t + h) for t in tiles for h in (0, 2)]
        for i in range(0, len(prs), 4):
            for p, q in prs[i:i + 4]: a(f"v_pk_add_f32 {vr(p,2)}, {vr(p,2)}, {vr(q,2)} neg_lo:[0,1] neg_hi:[0,1]")
            for p, q in prs[i:i + 4]: a(f"v_pk_fma_f32 {vr(q,2)}, {vr(q,2)}, s[{sTWO}:{sTWO+1}], {vr(p,2)}")
        a("s_waitcnt lgkmcnt(0)")
        S0 = {k: fB(k) for k in STEPS[46]["keys"]}
        assert S["umap"] == S0
        S, labB = self.phase(w, 46, fB, S0, False)
        out = []
        for n in range(86, 92):
            self.emit_step(w, STEPS[n], STEPS[n + 1] if n < 91 else None, S, None, None, out)
        if self.cfg.get("al8"): a("s_nop 0")
        for x in self.al8(out): a(x)
        a("s_branch L_cepi")

    def bfly(self, prs):
        a = self.a
        L = [(p + h, q + h, c) for p, q, c in prs for h in (0, 2)]
        for p, q, c in L: a(f"v_pk_mul_f32 {vr(q,2)}, {vr(q,2)}, s[{c}:{c+1}]")
        for p, q, c in L: a(f"v_pk_fma_f32 {vr(p,2)}, {vr(p,2)}, s[{c}:{c+1}], {vr(q,2)}")
        for p, q, c in L: a(f"v_pk_fma_f32 {vr(q,2)}, {vr(q,2)}, s[{sM2}:{sM2+1}], {vr(p,2)}")

    def act(self, tiles, tmp):
        a = self.a
        for f, g, o in tiles:
            for r in range(4): a(f"v_min_f32 v{f+r}, s{sCLAMP}, v{f+r}")
        for f, g, o in tiles:
            for r in range(4): a(f"v_exp_f32 v{g+r}, v{g+r}")
        for f, g, o in tiles:
            for r in range(4): a(f"v_exp_f32 v{f+r}, v{f+r}")
        for i, (f, g, o) in enumerate(tiles):
            for h in (0, 2): a(f"v_pk_add_f32 {vr(tmp+4*i+h,2)}, {vr(f+h,2)}, s[{sONE}:{sONE+1}]")
        for i, (f, g, o) in enumerate(tiles):
            for h in (0, 2): a(f"v_pk_fma_f32 {vr(g+h,2)}, {vr(tmp+4*i+h,2)}, {vr(g+h,2)}, {vr(tmp+4*i+h,2)}")
        for f, g, o in tiles:
            for r in range(4): a(f"v_rcp_f32 v{g+r}, v{g+r}")
        for f, g, o in tiles:
            for h in (0, 2): a(f"v_pk_fma_f32 {vr(f+h,2)}, {vr(f+h,2)}, {vr(g+h,2)}, {vr(g+h,2)} neg_lo:[1,0,0] neg_hi:[1,0,0]")
        for f, g, o in tiles:
            for h in (0, 1): a(f"v_cvt_pk_bf16_f32 v{o+h}, v{f+2*h}, v{f+2*h+1}")

    def compute_epilogue(self):
        a = self.a
        a(".p2align 6")
        a("L_cepi:")
        self.stamp(3)
        a("v_lshlrev_b32 v2, 3, v0"); a("v_lshlrev_b32 v3, 4, v0")
        a(f"s_lshl_b32 s{sT0}, s{sWV}, 10"); a(f"v_add_u32 v1, s{sT0}, v3")
        a(f"s_mul_i32 s{sT1}, s{sWV}, 4608")
        a(f"s_add_u32 s{sT2}, s{sT1}, {4096+6*4608}"); a(f"v_add_u32 v4, s{sT2}, v2")
        a(f"s_lshl_b32 s{sT1}, s{sT1}, 1"); a(f"s_add_u32 s{sT1}, s{sT1}, 4096"); a(f"v_add_u32 v2, s{sT1}, v2")
        a(f"s_lshl_b32 s{sT1}, s{sWV}, 11"); a(f"s_sub_u32 s{sT2}, s{sT0}, 2048")
        a(f"s_cmp_lt_u32 s{sWV}, 2"); a(f"s_cselect_b32 s{sT1}, s{sT1}, s{sT2}")
        a(f"s_add_u32 s{sT1}, s{sT1}, {EX}"); a(f"v_add_u32 v3, s{sT1}, v3")
        a(f"s_cmp_ge_u32 s{sWV}, 2"); a("s_cbranch_scc1 L_nox")
        self.bfly([(acc("X", 0, "P"), acc("X", 0, "Q"), sCX)])
        a(f"ds_write_b128 v3, {vr(acc('X',0,'P'))}")
        a(f"ds_write_b128 v3, {vr(acc('X',0,'Q'))} offset:1024")
        a("L_nox:")
        self.bfly([(acc("F8", 0, "P"), acc("F8", 0, "Q"), sCF), (acc("G8", 0, "P"), acc("G8", 0, "Q"), sCG)])
        self.act([(acc("F8", 0, "P"), acc("G8", 0, "P"), 8), (acc("F8", 0, "Q"), acc("G8", 0, "Q"), 10)], 20)
        a("ds_write_b64 v2, v[8:9]")
        a("ds_write_b64 v2, v[10:11] offset:4608")
        for q in range(5):
            if q == 1:
                a(f"s_cmp_lt_u32 s{sWV}, 2"); a("s_cbranch_scc1 L_nox2")
                a("ds_read_b128 v[44:47], v3"); a("ds_read_b128 v[48:51], v3 offset:2048")
                a("s_waitcnt lgkmcnt(0)")
                self.act([(44, 48, 8)], 20)
                a("ds_write_b64 v4, v[8:9]")
                a("L_nox2:")
            self.bfly([(acc(c, q, "P"), acc(c, q, "Q"), sCF if c[0] == "F" else sCG) for c in ("Fa", "Ga", "Fb", "Gb")])
            for y, wh in enumerate("PQ"):
                o = 12 + 4 * y
                self.act([(acc("Fa", q, wh), acc("Ga", q, wh), o), (acc("Fb", q, wh), acc("Gb", q, wh), o + 2)], 20 + 8 * y)
                a(f"ds_write_b128 v1, {vr(o)} offset:{(2*q+y)*4608}")
            a("s_waitcnt lgkmcnt(0)")
            self.stamp(9 + q)
            a("s_barrier")
        self.stamp(4)
        if self.prof:
            a(f"s_cmp_lg_u32 s{sWV}, 0"); a("s_cbranch_scc1 L_cend")
            self.stamp(15, True)
            self.dump_stamps(0)
            a("L_cend:")
        a("s_endpgm")

    def compute_prologue(self):
        a = self.a
        a("L_compute:")
        a("v_lshrrev_b32 v12, 4, v0")
        a("v_bfe_u32 v13, v0, 2, 2")
        a("v_lshl_add_u32 v17, v12, 2, v13")
        a("v_lshl_add_u32 v13, v12, 3, v13")
        a("v_mul_u32_u24 v13, 576, v13"); a("v_mul_u32_u24 v17, 576, v17")
        a("v_and_b32 v14, 3, v0"); a("v_lshl_add_u32 v13, v14, 3, v13"); a("v_lshl_add_u32 v17, v14, 3, v17")
        a("v_and_b32 v14, 1, v12"); a("v_lshlrev_b32 v15, 5, v14")
        a(f"v_add_u32 v{vE}, v13, v15"); a(f"v_sub_u32 v{vO}, v13, v15")
        a(f"v_add_u32 v{vEh}, {3*SLOT}, v{vE}"); a(f"v_add_u32 v{vOh}, {3*SLOT}, v{vO}")
        a("v_and_b32 v15, 32, v0")
        a(f"v_add_u32 v{vE16}, v17, v15"); a(f"v_sub_u32 v{vO16}, v17, v15")
        a("v_and_b32 v13, 15, v0")
        a("v_lshlrev_b32 v15, 1, v12"); a("v_xor_b32 v15, v15, v13")
        a("v_lshl_add_u32 v15, v12, 4, v15"); a("v_lshlrev_b32 v15, 4, v15")
        a(f"v_add_u32 v{vUA}, {UB0}, v15")
        a("v_lshrrev_b32 v12, 1, v12")
        a("v_lshlrev_b32 v15, 1, v12"); a("v_xor_b32 v15, v15, v13")
        a("v_lshl_add_u32 v15, v12, 4, v15"); a("v_lshlrev_b32 v15, 4, v15")
        a("v_lshl_add_u32 v15, v14, 3, v15")
        a(f"v_add_u32 v{vU16}, {UB1}, v15")
        cF, cG = f2u(-LOG2E), f2u(-LOG2E / 2)
        for r, v in ((sCF, cF), (sCG, cG), (sONE, f2u(1.0)), (sM2, f2u(-2.0)), (sTWO, f2u(2.0))):
            a(f"s_mov_b32 s{r}, {v:#x}"); a(f"s_mov_b32 s{r+1}, {v:#x}")
        a(f"s_cmp_eq_u32 s{sWV}, 0"); a(f"s_cselect_b32 s{sCX}, s{sCF}, s{sCG}"); a(f"s_mov_b32 s{sCX+1}, s{sCX}")
        a(f"s_mov_b32 s{sCLAMP}, {f2u(30.0):#x}")
        self.stamp(7)
        for r in range(72, 256): a(f"v_mov_b32 v{r}, 0")
        for x in self.xaddr(sWV, 36, [(1, 0, 30), (3, 0, 31), (1, 1, 8), (2, 1, 9), (3, 1, 10), (4, 1, 11)]): a(x)
        a("v_lshrrev_b32 v36, 2, v0"); a("v_and_b32 v37, 3, v0")
        a("v_lshlrev_b32 v38, 1, v37"); a("v_xor_b32 v36, v36, v38"); a("v_lshl_add_u32 v36, v37, 4, v36"); a("v_lshlrev_b32 v36, 4, v36")
        a(f"s_lshl_b32 s{sT0}, s{sWV}, 10"); a(f"s_sub_u32 s{sT0}, {UB0+9*1024}, s{sT0}"); a(f"v_add_u32 v34, s{sT0}, v36")
        a(f"s_lshl_b32 s{sT0}, s{sWV}, 2"); a(f"s_add_u32 s{sT0}, s{sT0}, {UB0}"); a(f"v_add_u32 v35, s{sT0}, v36")
        a(f"s_mov_b32 s{sMASK}, 0xffff0000")
        self.stamp(8)
        if self.prof: a("s_waitcnt lgkmcnt(0)")
        a("s_barrier")
        a("ds_read_b32 v28, v9 offset:1280"); a("ds_read_b32 v29, v11 offset:2560")
        a("ds_read_b32 v32, v8 offset:640"); a("ds_read_b32 v33, v10 offset:1920")
        a("ds_read_b128 v[20:23], v30 offset:640"); a("ds_read_b128 v[24:27], v31 offset:1920")
        U = lambda t, p, q: [f"v_lshlrev_b32 v{t}, 16, v{p}", f"v_and_b32 v{t+1}, s{sMASK}, v{p}", f"v_lshlrev_b32 v{t+2}, 16, v{q}", f"v_and_b32 v{t+3}, s{sMASK}, v{q}"]
        S = lambda t: [f"v_sub_f32 v{t}, v{t}, v{t+2}", f"v_sub_f32 v{t+1}, v{t+1}, v{t+3}"]
        a("s_waitcnt lgkmcnt(4)")
        for x in U(40, 28, 29): a(x)
        a("s_waitcnt lgkmcnt(2)")
        for x in U(64, 32, 33) + S(40) + S(64): a(x)
        a("v_cvt_pk_bf16_f32 v40, v40, v41"); a("v_cvt_pk_bf16_f32 v41, v64, v65")
        a("s_waitcnt lgkmcnt(0)")
        for d in range(4):
            for x in U(44 + 4 * d, 20 + d, 24 + d): a(x)
            if d == 0: a("ds_write2st64_b32 v35, v40, v41 offset0:20 offset1:40")
        for d in range(4):
            for x in S(44 + 4 * d): a(x)
        for d in range(4): a(f"v_cvt_pk_bf16_f32 v{60+d}, v{44+4*d}, v{45+4*d}")
        a("ds_write_b128 v34, v[60:63]")
        a("s_waitcnt lgkmcnt(0)")
        for w in (1, 2, 3):
            a(f"s_cmp_eq_u32 s{sWV}, {w}"); a(f"s_cbranch_scc1 L_cw{w}")
        a("s_branch L_cw0")

    def x_srd(self):
        a = self.a
        a(f"s_cmp_ge_u32 s{sGI}, 100"); a(f"s_cselect_b32 s{sT0}, 100, 0"); a(f"s_cselect_b32 s{sT1}, 4608000, 0")
        a(f"s_sub_u32 s{sT0}, s{sGI}, s{sT0}"); a(f"s_mul_i32 s{sT0}, s{sT0}, 160"); a(f"s_sub_u32 s{sT0}, s{sT0}, 30")
        a(f"s_add_u32 s{sX}, s4, s{sT1}"); a(f"s_addc_u32 s{sX+1}, s5, 0"); a(f"s_mov_b32 s{sX+2}, 4608000"); a(f"s_mov_b32 s{sX+3}, 0x20000")

    def xaddr(self, sw, t, regs):
        L = [f"v_lshrrev_b32 v{t}, 3, v0", f"v_mul_u32_u24 v{t+1}, 1280, v{t}", f"v_and_b32 v{t+2}, 7, v0", f"v_lshl_add_u32 v{t+1}, v{t+2}, 4, v{t+1}",
             f"v_and_b32 v{t}, 1, v{t}", f"v_lshlrev_b32 v{t}, 7, v{t}", f"v_xor_b32 v{t+2}, 0x80, v{t}"]
        if any(g0 for _, g0, _ in regs):
            L += [f"s_lshl_b32 s{sT0}, s{sw}, 2", f"s_add_u32 s{sT0}, s{sT0}, {STG}", f"v_add_u32 v{t+3}, s{sT0}, v{t+1}"]
            for i, g0, r in regs:
                if g0: L.append(f"{'v_sub_u32' if i & 1 else 'v_add_u32'} v{r}, v{t+3}, v{t if i in (1, 4) else t+2}")
        L += [f"s_lshl_b32 s{sT0}, s{sw}, 7", f"s_add_u32 s{sT0}, s{sT0}, {STG+128}", f"v_add_u32 v{t+3}, s{sT0}, v{t+1}",
              f"s_and_b32 s{sT0}, s{sw}, 1", f"s_lshl_b32 s{sT0}, s{sT0}, 1", f"s_sub_u32 s{sT0}, s{sT0}, 1",
              f"v_mul_i32_i24 v{t}, s{sT0}, v{t}", f"v_mul_i32_i24 v{t+2}, s{sT0}, v{t+2}"]
        for i, g0, r in regs:
            if not g0: L.append(f"{'v_sub_u32' if i & 1 else 'v_add_u32'} v{r}, v{t+3}, v{t if i in (0, 1, 4) else t+2}")
        return L

    def mk_srd(self, r, p, off, n):
        a = self.a
        if off == 0:
            a(f"s_mov_b32 s{r}, s{p}"); a(f"s_mov_b32 s{r+1}, s{p+1}")
        else:
            a(f"s_add_u32 s{r}, s{p}, {off}"); a(f"s_addc_u32 s{r+1}, s{p+1}, 0")
        a(f"s_mov_b32 s{r+2}, {n}"); a(f"s_mov_b32 s{r+3}, 0x20000")

    def loader(self):
        a = self.a; cfg = self.cfg
        VF, XG = 1, 16
        XAr = lambda i, g0: (10 + i - 1) if g0 else 6 + (0, 1, 2, 3, 0)[i]
        UWR, UWRH, UW0, UW0H = 25, 26, 27, 28
        X = lambda c, i: 32 + 20 * c + 4 * i
        X0 = lambda c, i: 132 + 4 * c + (i - 1)
        TU, TA, O = 152, 170, 186
        sP, sXM = 90, 95
        cur = [-1]
        Q = []
        D = []
        self.nlab = 0
        st8 = dict(m0=None, soff=None)

        def wait(tag):
            pos = max([i for i, (t, o) in enumerate(Q) if t == tag], default=-1)
            if pos < 0: return
            n = sum(1 for t, o in Q[pos + 1:] if not o)
            a(f"s_waitcnt vmcnt({n})")
            del Q[:pos + 1]

        def dwait(pred):
            pos = max([i for i, t in enumerate(D) if pred(t)], default=-1)
            if pos < 0: return
            a(f"s_waitcnt lgkmcnt({len(D)-1-pos})")
            for t in D[:pos + 1]:
                if t[0] == "xr": xdone[t[1]] = cur[0]
            del D[:pos + 1]
        xdone = {}

        def skip_unless(cond_reg, val, op="eq"):
            self.nlab += 1
            a(f"s_cmp_{op}_u32 s{cond_reg}, {val}"); a(f"s_cbranch_scc0 L_sk{self.nlab}")
            return f"L_sk{self.nlab}:"

        def xdma(c, j, lw=None):
            if c >= 2: assert xdone[c - 2] < cur[0] and not any(t[0] == "xr" and t[1] == c - 2 for t in D)
            a(f"s_add_u32 m0, s{sXM}, {(c&1)*STGB+1024*j}"); st8["m0"] = None
            if c and st8["soff"] != ("x", c): a(f"s_movk_i32 s{sOFF}, {64*c}"); st8["soff"] = ("x", c)
            if cfg.get("nox"): return
            if lw is not None: l = skip_unless(sLW, lw)
            a(f"buffer_load_dwordx4 v{XG+j}, {srd(sX)}, {'s%d' % sOFF if c else 0} offen lds")
            Q.append((("x", c), lw is not None))
            if lw is not None: a(l)

        def xread(c, i, g0):
            if g0: a(f"ds_read_b32 v{X0(c,i)}, v{XAr(i,1)} offset:{(c&1)*STGB+640*i}")
            else: a(f"ds_read_b128 {vr(X(c,i))}, v{XAr(i,0)} offset:{(c&1)*STGB+640*i}")
            D.append(("xr", c, i, g0))
        XRD = [(2, 0), (4, 0), (0, 0), (2, 1), (4, 1), (1, 1), (3, 1), (1, 0), (3, 0)]
        xw = lambda g0, *ii: (lambda: dwait(lambda t: t[0] == "xr" and t[3] == g0 and t[2] in ii))

        def piece(n, i):
            st = STEPS[n]; kind = st["kind"]
            d = srd(sW) if st["src"] == "W" else srd(sG)
            sc = "" if st["src"] == "W" else " sc1"
            m0 = (n, i == 4)
            if st8["m0"] != m0:
                a(f"s_add_u32 m0, s{sM5 if i == 4 else sM4}, {st['slot']*SLOT}"); st8["m0"] = m0
            if kind == "pair":
                a(f"s_add_u32 s{sOFF}, s{sP+i}, {st['soff']}"); st8["soff"] = None
            elif st8["soff"] != n:
                a(f"s_mov_b32 s{sOFF}, {st['soff'] + (73728 if kind == 'k16' else 0)}"); st8["soff"] = n
            l = None
            if i == 4: l = skip_unless(sHALF, n & 1)
            elif kind == "k16": l = skip_unless(sLW, 2 if i == 0 else 1, "le")
            off = f" offset:{1024*i}" if 0 < i < 4 else ""
            a(f"buffer_load_dwordx4 v{VF+i}, {d}, s{sOFF} offen{off}{sc} lds")
            Q.append((("w", n), l is not None))
            if l: a(l)
            assert len(Q) <= 60
        pieces = [(n, i) for n in range(92) for i in range(4 if STEPS[n]["kind"] == "k16" else 5)]

        def frag_job(srcs, outs, nd=4, ob=0):
            U = []; A = []; C = []
            for d in range(nd):
                tu = TU + 6 * (d % 3); ta = TA + 8 * (d % 2)
                u = []
                for k, r in enumerate(srcs):
                    u += [f"v_lshlrev_b32 v{tu+2*k}, 16, v{r+d}", f"v_and_b32 v{tu+2*k+1}, s{sMASK}, v{r+d}"]
                ad = []; cv = []
                for k, (op, i, j, _) in enumerate(outs):
                    ad += [f"{op} v{ta+2*k+h}, v{tu+2*i+h}, v{tu+2*j+h}" for h in (0, 1)]
                    cv.append(f"v_cvt_pk_bf16_f32 v{O+ob+nd*k+d}, v{ta+2*k}, v{ta+2*k+1}")
                U.append(u); A.append(ad); C.append(cv)
            L = list(U[0])
            for d in range(nd):
                if d + 1 < nd: L += U[d + 1]
                L += A[d]
                if d: L += C[d - 1]
            L += C[nd - 1]
            return L, [wt(O + ob + nd * k) for k, (_, _, _, wt) in enumerate(outs)]
        SUB, ADD = "v_sub_f32", "v_add_f32"
        first = lambda k: min(s["n"] for s in STEPS if s["kap"] == k)
        last = lambda k: max(s["n"] for s in STEPS if s["kap"] == k)

        def mid(L, x):
            return L[:len(L) // 2] + x + L[len(L) // 2:]

        def jobs_of(kap):
            c = kap % 5; ub = (UB1 if kap & 1 else UB0) - UB1
            f = first(kap); l = f - 1
            e0 = first(kap - 1) if kap else -1
            half = c == 4
            wr, w0 = (UWRH, UW0H) if half else (UWR, UW0)
            W4 = lambda idx, dl: (lambda o: (f"ds_write_b128 v{wr}, {vr(o)} offset:{ub+idx*1024}", dl, e0))
            W2 = lambda i0, i1: (f"ds_write2st64_b32 v{w0}, v{O+16}, v{O+17} offset0:{(ub+i0*1024)//256} offset1:{(ub+i1*1024)//256}", l, e0)
            no = lambda o: None
            if kap == 0:
                La, Wa = frag_job([X(c, 2), X(c, 4)], [(SUB, 0, 1, W4(5, l))])
                Lb, Wb = frag_job([X(c, 0), X(c, 2)], [(SUB, 0, 1, W4(15, f + 5))], 4, 4)
                return [[xw(0, 2, 4)] + La + Wa, [xw(0, 0)] + Lb + Wb]
            if kap < 5:
                d10, d15 = (l, l) if half else (f, f + 5)
                La, Wa = frag_job([X(c, 0), X(c, 2), X(c, 4)], [(SUB, 1, 2, W4(5, l)), (SUB, 0, 1, W4(15, d15))])
                Lg, _ = frag_job([X0(c, 2), X0(c, 4), X0(c, 1), X0(c, 3)], [(SUB, 0, 1, no), (SUB, 2, 3, no)], 1, 16)
                Lb, Wb = frag_job([X(c, 1), X(c, 3)], [(SUB, 0, 1, W4(10, d10))], 4, 8)
                return [[xw(0, 0, 2, 4)] + La + Wa, [xw(1, 1, 2, 3, 4)] + Lg + [W2(5, 10)], [xw(0, 1, 3)] + Lb + Wb]
            d10, d14, d19 = (l, f + 2, f + 2) if half else (f, f + 4, f + 5)
            La, Wa = frag_job([X(c, 2), X(c, 3)], [(ADD, 0, 1, W4(5, l)), (SUB, 1, 0, W4(14, d14))])
            Lb, Wb = frag_job([X(c, 1), X(c, 2)], [(ADD, 0, 1, W4(10, d10)), (SUB, 1, 0, W4(19, d19))], 4, 8)
            Lg, _ = frag_job([X0(c, 2), X0(c, 3)], [(ADD, 0, 1, no), (SUB, 1, 0, no)], 1, 16)
            return [La + Wa, Lg + [W2(5, 14)], Lb + Wb]
        pend = []; wat = set()

        def emit(x):
            if callable(x): x()
            elif isinstance(x, tuple): a(x[0]); D.append(("w", x[1]))
            else: a(x)

        def mix(ents, ops, head=(), defer=False):
            from asmlib import Ins
            k = max(1, len(ents) - 1)
            early = list(head)
            if defer:
                run = sum(1 for k in (1, 2) if all(cur[0] - m in wat for m in range(1, k + 1)))
                ok = pend and pend[0][2] <= cur[0] and (run < cfg.get("wrun", 2) or 35 <= cur[0] <= 39)
                nw = max([1 if ok else 0] + [1 for i, x in enumerate(pend) if x[1] - 1 - i <= cur[0]] + [i + 1 for i, x in enumerate(pend) if x[1] <= cur[0]])
                if nw: wat.add(cur[0])
                assert all(x[2] <= cur[0] for x in pend[:nw])
                if cfg.get("verbose") and nw: print("   writes", [(x[0][:40], x[1]) for x in pend[:nw]])
                early = early + pend[:nw]; del pend[:nw]
                for x in ops:
                    if isinstance(x, tuple): pend.append(x)
                    elif not callable(x):
                        for y in pend: assert not (Ins(x).w & Ins(y[0]).r), (x, y)
                ops = [x for x in ops if not isinstance(x, tuple)]
            j = 0
            for i, e in enumerate(ents or [lambda: None]):
                e()
                if i == 0:
                    for x in early: emit(x)
                if i < k:
                    j2 = (len(ops) * (i + 1) + k - 1) // k
                    for x in ops[j:j2]: emit(x)
                    j = j2
            for x in ops[j:]: emit(x)

        a("L_loader:")
        if cfg.get("lprio0", 3): a(f"s_setprio {cfg.get('lprio0', 3)}")
        a(f"s_sub_u32 s{sLW}, s{sWV}, 4")
        a("v_lshrrev_b32 v29, 2, v0"); a("v_and_b32 v31, 3, v0")
        a(f"s_mul_i32 s{sT2}, s{sLW}, 48"); a(f"v_add_u32 v{XG}, s{sT2}, v29")
        for j in (1, 2): a(f"v_add_u32 v{XG+j}, {16*j}, v{XG}")
        for j in range(3): a(f"v_mul_u32_u24 v{152+j}, 6554, v{XG+j}")
        for j in range(3): a(f"v_lshrrev_b32 v{152+j}, 16, v{152+j}")
        for j in range(3): a(f"v_and_b32 v{152+j}, 2, v{152+j}")
        for j in range(3): a(f"v_xor_b32 v{XG+j}, v{XG+j}, v{152+j}")
        for j in range(3): a(f"v_mul_u32_u24 v{XG+j}, 288, v{XG+j}")
        for j in range(3): a(f"v_lshl_add_u32 v{XG+j}, v31, 4, v{XG+j}")
        a(f"s_mul_i32 s{sXM}, s{sLW}, 3072"); a(f"s_add_u32 s{sXM}, s{sXM}, {STG}")
        a(f"s_lshl_b32 s{sM4}, s{sLW}, 12")
        a("s_waitcnt lgkmcnt(0)")
        self.stamp(6)
        self.x_srd()
        a(f"s_mul_i32 s{sT0}, s{sT0}, 288")
        for j in range(3): a(f"v_add_u32 v{XG+j}, s{sT0}, v{XG+j}")
        for j in range(3): xdma(0, j)
        self.stamp(7)
        self.mk_srd(sW, 6, 0, 15 * MAT)
        a(f"v_lshl_add_u32 v{VF+4}, v0, 4, s{sM4}")
        a(f"s_mul_i32 s{sT0}, s{sLW}, {256*3641}"); a(f"s_movk_i32 s{sT1}, 3641")
        a(f"v_mov_b32 v152, s{sT0}"); a(f"v_mad_u32_u24 v152, v0, s{sT1}, v152")
        for i in range(4):
            if i: a(f"v_add_u32 v{152+i}, {64*3641*i}, v152")
        for i in range(4): a(f"v_lshrrev_b32 v{152+i}, 15, v{152+i}")
        for i in range(4): a(f"v_and_b32 v{152+i}, 32, v{152+i}")
        for i in range(4): a(f"v_xor_b32 v{VF+i}, v{VF+4}, v{152+i}")
        a(f"s_and_b32 s{sM5}, s{sLW}, 1"); a(f"s_lshl_b32 s{sM5}, s{sM5}, 10"); a(f"s_add_u32 s{sM5}, s{sM5}, 16384")
        a(f"s_lshr_b32 s{sHALF}, s{sLW}, 1")
        a(f"v_lshl_add_u32 v{VF+4}, v0, 4, s{sM5}"); a(f"v_xor_b32 v{VF+4}, 32, v{VF+4}")
        self.stamp(8)
        ops = [f"s_mov_b32 s{sMASK}, 0xffff0000",
               "v_lshlrev_b32 v167, 1, v31", "v_xor_b32 v166, v29, v167",
               "v_lshl_add_u32 v166, v31, 4, v166", "v_lshlrev_b32 v166, 4, v166",
               f"s_lshl_b32 s{sT0}, s{sLW}, 10", f"s_sub_u32 s{sT0}, {UB1-1024}, s{sT0}", f"v_add_u32 v{UWR}, s{sT0}, v166",
               f"s_lshl_b32 s{sT0}, s{sLW}, 2", f"s_add_u32 s{sT1}, s{sT0}, {UB1}", f"v_add_u32 v{UW0}, s{sT1}, v166",
               "v_and_b32 v167, 2, v31", "v_lshlrev_b32 v167, 9, v167",
               f"v_sub_u32 v{UW0H}, v{UW0}, v167", f"v_sub_u32 v{UWRH}, v{UWR}, v167",
               ]
        ops += self.xaddr(sLW, 166, [(i, g0, XAr(i, g0)) for g0 in (0, 1) for i in ((1, 2, 3, 4) if g0 else (0, 1, 2, 3))])
        npro, nearly = cfg.get("npro", 3), cfg.get("nearly", 2)
        pp = 5 * nearly
        mix([lambda p=p: piece(*p) for p in pieces[:pp]], ops)
        if cfg.get("x1pro", 1):
            for j in range(3): xdma(1, j)
        self.stamp(9)
        wait(("x", 0))
        self.stamp(10)
        a("s_barrier")
        J0 = jobs_of(0)
        for i in (2, 4, 0): xread(0, i, 0)
        mix([lambda p=p: piece(*p) for p in pieces[pp:5 * npro]], J0[0] + J0[1]); pp = max(pp, 5 * npro)
        XR0 = [(1, 0), (3, 0), (2, 1), (3, 1)]
        self.stamp(11)
        wait(("w", 0))
        dwait(lambda t: t[0] == "w" and t[1] < 0)
        self.stamp(12)
        if cfg.get("lprio0", 3) != cfg.get("lprio", 0): a(f"s_setprio {cfg.get('lprio', 0)}")
        a("s_barrier")
        self.stamp(1)
        jobs = []
        misc = [f"s_mov_b32 s{sP+4}, 73728"]
        for r, p, n in ((sG, 14, 10 * MAT), (sWO, 8, 41472)):
            misc += [f"s_mov_b32 s{r}, s{p}", f"s_mov_b32 s{r+1}, s{p+1}", f"s_mov_b32 s{r+2}, {n}", f"s_mov_b32 s{r+3}, 0x20000"]
        misc += [f"s_mul_i32 s{sT0}, s{sGI}, 46080", (lambda: (a(f"s_add_u32 s{sO}, s10, s{sT0}"), a(f"s_addc_u32 s{sO+1}, s11, 0"))),
                 f"s_mov_b32 s{sO+2}, 46080", f"s_mov_b32 s{sO+3}, 0x20000"]
        for i in range(4): misc.append(lambda i=i: (a(f"s_cmp_ge_u32 s{sLW}, {3 if i == 0 else 2}"), a(f"s_cselect_b32 s{sP+i}, {2*73728}, s{sP+4}")))
        misc.append(f"s_mov_b32 s{sP+4}, {2*73728}")
        misc.append("v_mov_b32 v21, 0")
        xl = {n: [] for n in range(92)}; head = {n: [] for n in range(92)}; tail = {n: [] for n in range(92)}
        x1 = cfg.get("x1at", 1 if cfg.get("x1pro", 1) else 3)
        for j, (i, g0) in enumerate(XR0): head[j // 2].append(lambda i=i, g0=g0: xread(0, i, g0))
        jobs.append((misc, 0, x1 + 1))
        x2 = cfg.get("x2at", 5)
        tail[x2 - 1].append(lambda: dwait(lambda t: t[0] == "xr" and t[1] == 0))
        for kap in range(1, 10):
            f = first(kap - 1)
            if kap < 5:
                r = x1 + 1 if kap == 1 else f
                if kap > 1 and cfg.get("xthin", 0):
                    n0, n1 = (x2, cfg.get("x2end", 8)) if kap == 2 else (f - 10 + cfg.get("xs", 3), f - 10 + cfg.get("xe", 8))
                    if kap > 2: tail[n0 - 1].append(lambda c=kap: dwait(lambda t: t[0] == "xr" and t[1] == c - 2))
                    for m in range(12): xl[n0 + m * (n1 - n0 + 1) // 12].append(lambda c=kap, m=m: xdma(c, m // 4, m % 4))
                elif kap > 1 or not cfg.get("x1pro", 1):
                    for j in range(3): xl[(0 if kap == 1 else x2 if kap == 2 else f - 10) + j].append(lambda c=kap, j=j: xdma(c, j))
                tail[r - 1].append(lambda c=kap: wait(("x", c)))
                if kap == 4: jobs.append((["v_and_b32 v204, 2, v0", "v_lshlrev_b32 v204, 4, v204"] + [f"v_sub_u32 v{r}, v{r}, v204" for r in range(6, 14)], 23, 29))
                for j, (i, g0) in enumerate(XRD): head[r + j // 3].append(lambda c=kap, i=i, g0=g0: xread(c, i, g0))
                st_ = r + 1
                tg = {1: (5, 6, 8), 4: (34, 35, 37)}.get(kap, (f + 4, f + 6, f + 8))
            elif kap == 5: st_, tg = 38, (40, 41, 44)
            elif kap == 6: st_, tg = 46, (49, 50, 54)
            else: st_, tg = f - 1, (f + 3, f + cfg.get("tg1", 4), f + 7)
            for L, t in zip(jobs_of(kap), tg): jobs.append((L, st_, t))
        npoll = cfg.get("npoll", 33)

        def poll():
            a("global_load_dword v22, v21, s[12:13] sc1"); Q.append(("poll", False))

        def check():
            wait("poll")
            a(f"v_readfirstlane_b32 s{sT0}, v22"); a(f"s_cmp_lt_u32 s{sT0}, {NPROD}"); a("s_cbranch_scc1 L_spin"); a("L_gok:")
        if cfg.get("nopoll"): tail[npoll + 4].append(lambda: a("L_gok:"))
        else: xl[npoll].append(poll); tail[npoll + 4].append(check)

        def wo_dma(j):
            a(f"s_add_u32 m0, s{sT3}, {WO+4096*j}"); st8["m0"] = None
            a(f"s_add_u32 s{sOFF}, s{sT3}, {4096*j}"); st8["soff"] = None
            if j == 10: l = skip_unless(sLW, 0)
            a(f"buffer_load_dwordx4 v29, {srd(sWO)}, s{sOFF} offen lds")
            Q.append(("wo", j == 10))
            if j == 10: a(l)
        for j in range(11): xl[87 + (j + 1) // 4].append(lambda j=j: wo_dma(j))
        ZA, Z16, WA, SA, SR, GO = 216, 217, 218, 219, 220, 223
        E = ["v_lshlrev_b32 v29, 4, v0", f"s_lshl_b32 s{sT3}, s{sLW}, 10"]
        E2 = []
        b = E2.append
        b(f"s_lshr_b32 s{sT0}, s{sLW}, 1"); b(f"s_and_b32 s{sT1}, s{sLW}, 1")
        b(f"s_mul_i32 s{sT2}, s{sT0}, 4608")
        b(f"v_lshlrev_b32 v166, 4, v0"); b(f"v_add_u32 v{ZA}, s{sT2}, v166")
        b(f"s_add_u32 s{sT2}, s{sT2}, 4096"); b(f"v_lshlrev_b32 v166, 3, v0"); b(f"v_add_u32 v{Z16}, s{sT2}, v166")
        b(f"s_mul_i32 s{sT1}, s{sT1}, 160")
        b("v_lshrrev_b32 v166, 2, v0"); b("v_mul_u32_u24 v166, 288, v166")
        b("v_and_b32 v167, 3, v0"); b("v_lshl_add_u32 v166, v167, 3, v166")
        b(f"s_add_u32 s{sT2}, s{sT1}, {WO}"); b(f"v_add_u32 v{WA}, s{sT2}, v166")
        b("v_and_b32 v166, 15, v0"); b(f"v_mul_u32_u24 v166, {STROW}, v166")
        b("v_lshrrev_b32 v167, 4, v0"); b("v_lshl_add_u32 v166, v167, 3, v166")
        b(f"s_mul_i32 s{sT2}, s{sT0}, {16*STROW}"); b(f"s_add_u32 s{sT2}, s{sT2}, s{sT1}"); b(f"s_add_u32 s{sT2}, s{sT2}, {ST}")
        b(f"v_add_u32 v{SA}, s{sT2}, v166")
        for m in range(3):
            if m < 2: b(f"s_lshl_b32 s{sT0}, s{sLW}, 6"); b(f"s_add_u32 s{sT0}, s{sT0}, {256*m}")
            else: b(f"s_mov_b32 s{sT0}, 512")
            b(f"v_add_u32 v166, s{sT0}, v0")
            b("v_mul_u32_u24 v167, 3641, v166"); b("v_lshrrev_b32 v167, 16, v167")
            b("v_mul_u32_u24 v168, 18, v167"); b("v_sub_u32 v166, v166, v168"); b("v_lshlrev_b32 v166, 4, v166")
            b(f"v_mul_u32_u24 v168, {STROW}, v167"); b("v_add_u32 v168, v168, v166"); b(f"v_add_u32 v{SR+m}, {ST}, v168")
            b("v_bfe_u32 v168, v167, 1, 3"); b("v_mul_u32_u24 v168, 20, v168")
            b("v_lshrrev_b32 v169, 4, v167"); b("v_mul_u32_u24 v169, 10, v169"); b("v_add_u32 v168, v168, v169")
            b("v_and_b32 v169, 1, v167"); b("v_add_u32 v168, v168, v169")
            b("v_mul_u32_u24 v168, 288, v168"); b(f"v_add_u32 v{GO+m}, v168, v166")
        jobs.append((E, 85, 86)); jobs.append((E2, 86, 91))
        flat = [(x, j) for j, jb in enumerate(jobs) for x in jb[0]]
        p2 = cfg.get("prof2")

        def st2(n, k):
            if p2:
                r = 50 + 6 * (n & 1) + 2 * k
                a(f"s_memtime s[{r}:{r+1}]")

        def sv2(n):
            if p2 and n >= 0:
                for k in range(3): a(f"v_writelane_b32 v{210+2*k+n//64}, s{50+6*(n&1)+2*k}, {n%64}")
        fp = 0
        rate = cfg.get("rate", 6)
        for n in range(92):
            st2(n, 0)
            ents = []
            while pp < len(pieces) and pieces[pp][0] <= n + cfg.get('dist', 4) and len(ents) < rate:
                ents.append(lambda p=pieces[pp]: piece(*p)); pp += 1
            ents += xl[n]
            cur[0] = n
            need_ = 0; cum = 0
            for j, jb in enumerate(jobs):
                rem = sum(1 for x, jj in flat[fp:] if jj == j)
                if not rem: continue
                cum += rem
                need_ = max(need_, -(-cum // max(1, jb[2] - n + 1)))
            ops = []
            while len(ops) < need_ and fp < len(flat) and jobs[flat[fp][1]][1] <= n:
                ops.append(flat[fp][0]); fp += 1
            if cfg.get("drop") and n < 85:
                dr = dict(w=["ds_write"], v=["v_cvt", "v_sub_f32", "v_add_f32", "v_lshlrev_b32 v15", "v_lshlrev_b32 v16", "v_and_b32 v15", "v_and_b32 v16"])[cfg["drop"]]
                ops = [x for x in ops if callable(x) or not any((x[0] if isinstance(x, tuple) else x).startswith(p) for p in dr)]
            if cfg.get("verbose"): print("interval", n, "ents", len(ents), "ops", len(ops))
            mix(ents, ops, head[n], True)
            assert all(x[1] > n for x in pend), (n, pend)
            for j, jb in enumerate(jobs):
                if jb[2] <= n: assert not any(jj == j for x, jj in flat[fp:]), (n, j)
            sv2(n - 1)
            st2(n, 1)
            if n + 1 <= 91:
                assert pp == len(pieces) or pieces[pp][0] > n + 1
                wait(("w", n + 1))
            for f in tail[n]: f()
            if n == 91: wait("wo"); assert not Q and not pend
            dwait(lambda t: t[0] == "w" and t[1] <= n)
            st2(n, 2)
            a("s_barrier")
        if p2:
            a("s_waitcnt lgkmcnt(0)"); sv2(91)
            a(f"s_add_u32 s{sG}, s14, 0x200000"); a(f"s_addc_u32 s{sG+1}, s15, 0"); a(f"s_mov_b32 s{sG+2}, 0x200000")
            a(f"s_lshl_b32 s{sT0}, s2, 2"); a(f"s_add_u32 s{sT0}, s{sT0}, s{sLW}"); a(f"s_lshl_b32 s{sT0}, s{sT0}, 11")
            a("v_lshlrev_b32 v166, 2, v0")
            for k in range(6): a(f"buffer_store_dword v{210+k}, v166, {srd(sG)}, s{sT0} offen offset:{256*k}")
        self.stamp(3)
        AF = lambda i, k: 32 + 18 * i + 4 * k
        AC, BF, CV, SD = 124, 144, 164, 176
        for i in range(5):
            for k in range(5):
                a(f"ds_read_b64_tr_b16 {vr(AF(i,k),2)}, v{WA} offset:{k*9216+i*32}")
                if k < 4: a(f"ds_read_b64_tr_b16 {vr(AF(i,k)+2,2)}, v{WA} offset:{k*9216+4608+i*32}")
        a(f"s_and_b32 s{sHALF}, s{sLW}, 1")

        def stage_out(q):
            a(f"ds_read_b128 {vr(SD)}, v{SR} offset:{(q&1)*STBUF}")
            a(f"ds_read_b128 {vr(SD+4)}, v{SR+1} offset:{(q&1)*STBUF}")
            a(f"ds_read_b128 {vr(SD+8)}, v{SR+2} offset:{(q&1)*STBUF}")

        def stage_store(q):
            sm = self.cfg.get("stmod", "")
            a(f"buffer_store_dwordx4 {vr(SD)}, v{GO}, {srd(sO)}, 0 offen offset:{576*q}{sm}")
            a(f"buffer_store_dwordx4 {vr(SD+4)}, v{GO+1}, {srd(sO)}, 0 offen offset:{576*q}{sm}")
            l = skip_unless(sLW, 0)
            a(f"buffer_store_dwordx4 {vr(SD+8)}, v{GO+2}, {srd(sO)}, 0 offen offset:{576*q}{sm}")
            a(l)

        def mm(i, k):
            n2 = 4 if k < 4 else 2
            opn = "v_mfma_f32_16x16x32_bf16" if k < 4 else "v_mfma_f32_16x16x16_bf16"
            a(f"{opn} {vr(AC+4*i)}, {vr(AF(i,k),n2)}, {vr(BF+4*k,n2)}, {vr(AC+4*i) if k != 4 else 0}")

        def fin(i, q):
            a(f"v_cvt_pk_bf16_f32 v{CV+2*i}, v{AC+4*i}, v{AC+4*i+1}"); a(f"v_cvt_pk_bf16_f32 v{CV+2*i+1}, v{AC+4*i+2}, v{AC+4*i+3}")
            a(f"ds_write_b64 v{SA}, {vr(CV+2*i,2)} offset:{(q&1)*STBUF+32*i}")
        for q in range(5):
            a("s_waitcnt lgkmcnt(0)")
            a("s_barrier")
            a(f"ds_read_b64 {vr(BF+16,2)}, v{Z16} offset:{q*9216}")
            for k in range(4): a(f"ds_read_b128 {vr(BF+4*k)}, v{ZA} offset:{q*9216+k*1024}")
            if q: stage_out(q - 1)
            nx = 3 if q else 0
            for j, k in enumerate((4, 0, 1, 2, 3)):
                a(f"s_waitcnt lgkmcnt({4-j+nx})")
                for i in range(5): mm(i, k)
            if q:
                a("s_waitcnt lgkmcnt(0)")
                stage_store(q - 1)
            for i in range(4): fin(i, q)
            l = skip_unless(sHALF, 0)
            fin(4, q)
            a(l)
        a("s_waitcnt lgkmcnt(0)")
        a("s_barrier")
        stage_out(4)
        a("s_waitcnt lgkmcnt(0)")
        stage_store(4)
        if self.prof:
            self.stamp(4)
            a("s_waitcnt vmcnt(0)")
            self.stamp(5)
            self.stamp(15, True)
            a(f"s_cmp_lg_u32 s{sLW}, 0"); a("s_cbranch_scc1 L_lend")
            self.dump_stamps(64)
            a("L_lend:")
        a("s_endpgm")
        a("L_spin:")
        if cfg.get("spinmax"): a(f"s_mov_b32 s{sT1}, 0")
        a("L_spin2:")
        if cfg.get("spinmax"):
            a(f"s_add_u32 s{sT1}, s{sT1}, 1"); a(f"s_cmp_ge_u32 s{sT1}, {cfg['spinmax']}"); a("s_cbranch_scc1 L_gok")
        a("global_load_dword v22, v21, s[12:13] sc1")
        a("s_waitcnt vmcnt(0)")
        a(f"v_readfirstlane_b32 s{sT0}, v22"); a(f"s_cmp_lt_u32 s{sT0}, {NPROD}"); a("s_cbranch_scc1 L_spin2")
        a("s_branch L_gok")

    def producer(self):
        a = self.a; cfg = self.cfg
        a("L_prod:")
        if cfg.get("hexit"): a("s_endpgm")
        a(f"s_lshr_b32 s{sT3}, s2, 3")
        a(f"s_lshl_b32 s{sT0}, s{sWV}, 6"); a(f"v_add_u32 v40, s{sT0}, v0")
        a("v_and_b32 v41, 255, v40")
        a(f"s_cmp_lt_u32 s{sWV}, 4"); a("s_cbranch_scc1 L_pnocode")
        NL = f"((L_code_end-{KN})/128/7+1)"
        a(f"s_mul_i32 s{sT0}, s{sT3}, {NL}"); a(f"v_min_u32 v42, {NL}-1, v41"); a(f"v_add_u32 v42, s{sT0}, v42")
        a("v_lshlrev_b32 v42, 7, v42"); a(f"v_min_u32 v42, L_code_end-{KN}-4, v42")
        a(f"global_load_dword v50, v42, s[{sPC}:{sPC+1}]")
        a("L_pnocode:")
        a(f"s_mul_i32 s{sT1}, s{sT3}, 206"); a(f"v_min_u32 v41, 205, v41"); a(f"v_add_u32 v41, s{sT1}, v41")
        a("v_mul_u32_u24 v42, 29128, v41"); a("v_lshrrev_b32 v42, 22, v42")
        a("v_mul_u32_u24 v43, 64512, v42"); a("v_lshl_add_u32 v41, v41, 7, v43")
        a("v_cmp_le_u32 vcc, 5, v42")
        a("v_mov_b32 v43, 0"); a(f"v_mov_b32 v44, {5*MAT}")
        a("v_cndmask_b32 v43, v43, v44, vcc"); a("v_add_u32 v41, v41, v43")
        a("s_mul_i32 s3, s2, 464"); a("v_add_u32 v1, s3, v40")
        a("s_add_u32 s3, s3, 464"); a("s_min_u32 s3, s3, 25920")
        a("v_cmp_gt_u32 vcc, s3, v1")
        a("v_lshlrev_b32 v1, 4, v1"); a(f"v_mov_b32 v2, {OOB:#x}")
        a("v_cndmask_b32 v1, v2, v1, vcc")
        a(f"s_mov_b32 s{sMASK}, 0xffff0000")
        a(f"s_mov_b32 s{sT0}, {5*MAT}"); a(f"s_mov_b32 s{sT1}, {10*MAT}")
        a("s_waitcnt lgkmcnt(0)")
        self.mk_srd(sW, 6, 0, 15 * MAT)
        a(f"s_cmp_ge_u32 s{sWV}, 4"); a("s_cbranch_scc1 L_pnow")
        a(f"buffer_load_dword v50, v41, {srd(sW)}, 0 offen")
        a("L_pnow:")
        self.mk_srd(sG, 14, 0, 10 * MAT); self.mk_srd(sX, 4, 0, 2 * 4608000); self.mk_srd(sWO, 8, 0, 41472)
        a(f"v_mul_u32_u24 v42, 7, v40"); a(f"v_add_u32 v42, s{sT3}, v42")
        a("v_mul_u32_u24 v43, 10923, v42"); a("v_lshrrev_b32 v43, 20, v43")
        a("v_mul_u32_u24 v44, 96, v43"); a("v_sub_u32 v44, v42, v44")
        a("v_cmp_gt_u32 vcc, 2400, v42")
        a(f"v_mul_u32_u24 v43, {8*46080}, v43"); a("v_lshrrev_b32 v45, 1, v44"); a("v_mul_u32_u24 v45, 1152, v45"); a("v_add_u32 v43, v43, v45")
        a(f"s_and_b32 s{sT2}, s2, 7"); a(f"s_mul_i32 s{sT2}, s{sT2}, 46080"); a(f"s_sub_u32 s{sT2}, s{sT2}, {32*288}")
        a(f"v_add_u32 v43, s{sT2}, v43"); a("v_and_b32 v44, 1, v44")
        a("v_lshl_add_u32 v45, v44, 8, v43"); a("v_add_u32 v45, 384, v45"); a("v_cndmask_b32 v45, v2, v45, vcc")
        a("v_mul_u32_u24 v44, 896, v44"); a("v_add_u32 v46, v43, v44"); a("v_add_u32 v46, 128, v46"); a("v_cndmask_b32 v46, v2, v46, vcc")
        a(f"s_mul_i32 s{sT2}, s{sT3}, 47"); a("v_min_u32 v47, 46, v40"); a(f"v_add_u32 v47, s{sT2}, v47"); a("v_lshlrev_b32 v47, 7, v47")
        a(f"s_mul_i32 s{sT2}, s{sT3}, 926"); a(f"v_add_u32 v48, s{sT2}, v40"); a("v_min_u32 v49, 413, v40"); a(f"v_add_u32 v49, s{sT2}, v49")
        a("v_lshlrev_b32 v48, 7, v48"); a("v_lshlrev_b32 v49, 7, v49"); a("v_add_u32 v49, 0x10000, v49")
        hx, hw, hd = cfg.get("hx", 2), cfg.get("hw", 1), cfg.get("hd", 3)
        a(f"s_lshr_b32 s{sT2}, s{sWV}, 2"); a(f"s_mul_i32 s{sT2}, s{sT2}, {SLOT}"); a(f"s_add_u32 s{sT2}, s{sT2}, {SLOT}")
        a(f"s_add_u32 s{sT3}, s{sT2}, {2*SLOT}")
        if hd & 1: a("s_waitcnt vmcnt(0)")
        if hw: a(f"buffer_load_dword v50, v41, {srd(sW)}, s{sT2} offen")
        a(f"buffer_load_dword v50, v47, {srd(sWO)}, 0 offen")
        if hd & 2: a("s_waitcnt vmcnt(0)")
        if not cfg.get("noprod"):
            a(f"buffer_load_dwordx4 v[4:7], v1, {srd(sW)}, 0 offen")
            a(f"buffer_load_dwordx4 v[8:11], v1, {srd(sW)}, s{sT0} offen")
            a(f"buffer_load_dwordx4 v[12:15], v1, {srd(sW)}, s{sT1} offen")
        nt = 0
        if hx & 1: a(f"buffer_load_dword v50, v45, {srd(sX)}, 0 offen"); nt += 1
        if hx & 2: a(f"buffer_load_dword v50, v46, {srd(sX)}, 0 offen"); nt += 1
        a(f"s_waitcnt vmcnt({nt})")
        for d in range(4):
            for j, s in enumerate((4, 8, 12)):
                a(f"v_lshlrev_b32 v{24+2*j}, 16, v{s+d}"); a(f"v_and_b32 v{25+2*j}, s{sMASK}, v{s+d}")
            a("v_add_f32 v24, v24, v28"); a("v_add_f32 v25, v25, v29")
            a("v_add_f32 v28, v24, v26"); a("v_add_f32 v29, v25, v27")
            a("v_sub_f32 v24, v24, v26"); a("v_sub_f32 v25, v25, v27")
            a(f"v_cvt_pk_bf16_f32 v{16+d}, v28, v29"); a(f"v_cvt_pk_bf16_f32 v{20+d}, v24, v25")
        if not cfg.get("noprod"):
            a(f"buffer_store_dwordx4 v[16:19], v1, {srd(sG)}, 0 offen sc1")
            a(f"buffer_store_dwordx4 v[20:23], v1, {srd(sG)}, s{sT0} offen sc1")
        a("s_waitcnt vmcnt(0)")
        a("s_barrier")
        a("v_mov_b32 v1, 0"); a("v_mov_b32 v2, 1")
        a(f"s_cmp_lg_u32 s{sWV}, 0"); a("s_cbranch_scc1 L_pnoat")
        a("s_mov_b64 exec, 1")
        if not cfg.get("hnoatom"): a("global_atomic_add v3, v1, v2, s[12:13] sc0 sc1")
        a("s_mov_b64 exec, -1")
        a("s_waitcnt vmcnt(0)")
        a("L_pnoat:")
        if hw: a(f"buffer_load_dword v50, v41, {srd(sW)}, s{sT3} offen")
        a(f"s_cmp_lg_u32 s{sWV}, 0"); a("s_cbranch_scc1 L_pwait")
        a("s_waitcnt vmcnt(0)")
        a("L_ppoll:")
        if cfg.get("hnopoll"): a("s_branch L_pwait")
        if cfg.get("spinmax"): a(f"s_mov_b32 s{sT1}, 0")
        a("L_ppoll2:")
        if cfg.get("spinmax"):
            a(f"s_add_u32 s{sT1}, s{sT1}, 1"); a(f"s_cmp_ge_u32 s{sT1}, {cfg['spinmax']}"); a("s_cbranch_scc1 L_pwait")
        a("global_load_dword v3, v1, s[12:13] sc1")
        a("s_waitcnt vmcnt(0)")
        a(f"v_readfirstlane_b32 s{sT0}, v3"); a(f"s_cmp_lt_u32 s{sT0}, {NPROD}"); a("s_cbranch_scc1 L_ppoll2")
        a("L_pwait:")
        a("s_barrier")
        if cfg.get("hg", 1):
            a(f"buffer_load_dword v50, v48, {srd(sG)}, 0 offen sc1")
            a(f"buffer_load_dword v50, v49, {srd(sG)}, 0 offen sc1")
        a("s_waitcnt vmcnt(0)")
        a("L_exit:")
        a("s_endpgm")

    def build(self):
        a = self.a
        a(f"s_getpc_b64 s[{sPC}:{sPC+1}]")
        a("s_load_dwordx8 s[4:11], s[0:1], 0")
        a("s_load_dwordx4 s[12:15], s[0:1], 32")
        a(f"s_sub_u32 s{sPC}, s{sPC}, 4"); a(f"s_subb_u32 s{sPC+1}, s{sPC+1}, 0")
        a("v_lshrrev_b32 v1, 6, v0")
        a(f"s_sub_u32 s{sGI}, s2, {NHELP}")
        a(f"v_readfirstlane_b32 s{sWV}, v1")
        a("v_and_b32 v0, 63, v0")
        if self.prof:
            a(f"s_memtime s[{sTS}:{sTS+1}]"); a(f"s_memrealtime s[{sTS+14}:{sTS+15}]")
        a(f"s_cmp_lt_u32 s2, {NHELP}"); a("s_cbranch_scc1 L_prod")
        a(f"s_cmp_ge_u32 s2, {NHELP+NMAIN}"); a("s_cbranch_scc1 L_exit")
        a(f"s_cmp_ge_u32 s{sWV}, 4"); a("s_cbranch_scc1 L_loader")
        self.compute_prologue()
        self.producer()
        a(".p2align 6")
        self.loader()
        for w in range(4): self.compute_main(w)
        self.compute_epilogue()
        a("L_code_end:")
        nn = a.fix(verbose=self.cfg.get("verbose", False))
        hdr = open("standalone__autoregressive_conv_wavenet__speech.s.ref").read().split("\n")
        i0 = next(i for i, x in enumerate(hdr) if x.startswith("; @launch"))
        i1 = next(i for i, x in enumerate(hdr) if x.startswith(KN + ":"))
        i2 = next(i for i, x in enumerate(hdr) if x.startswith(".section .rodata"))
        hdr[i0] = f"; @launch grid=({NHELP+NMAIN},1,1) block=(512,1,1) lds={LDS}"
        txt = "\n".join(hdr[:i1 + 1]) + "\n" + a.text() + "\n".join(hdr[i2:]) + "\n"
        return txt, nn


if __name__ == "__main__":
    assert all((i * 3641) >> 20 == i // 288 for i in range(1152))
    assert all((i * 10923) >> 20 == i // 96 for i in range(2400))
    assert all((i * 3641) >> 16 == i // 18 for i in range(640))
    assert all((i * 29128) >> 22 == i // 144 for i in range(1500))
    assert all((i * 6554) >> 16 == i // 10 for i in range(192))
    out = sys.argv[1]
    cfg = {}
    for x in sys.argv[2:]:
        k, v = x.split("=", 1)
        try: v = int(v)
        except ValueError: pass
        cfg[k] = v
    txt, nn = Gen(prof=bool(cfg.get("prof", 0)), cfg=cfg).build()
    open(out, "w").write(txt)
    print(out, "lines", txt.count("\n"), "hazard nops", nn)
```

```python
import sys, struct
from asmlib import Asm

KN = "standalone__autoregressive_conv_wavenet__speech_kernel"
NPROD, NHELP, NMAIN = 56, 56, 200
SLOT, MAT = 18432, 82944
UB1, UB0 = 92160, 111616
UXOR = UB0 ^ UB1
WO, LDS = 121856, 163840
ST, STROW, STBUF, EX = 46080, 304, 9728, 65536
OOB = 0x80000000
STG, STGB = 131072, 12288
LOG2E = 1.4426950408889634


def f2u(f):
    return struct.unpack("<I", struct.pack("<f", f))[0]


def vr(b, n=4):
    return f"v[{b}:{b+n-1}]"


def build_steps():
    S = []
    for c in range(4):
        for s in range(10):
            S.append(dict(kind="full", src="W", soff=(s if s < 5 else s + 5) * MAT + c * SLOT, acc="Q" if s < 5 else "P",
                          kap=c, idx=[10 - (q - s + 5) for q in range(5)]))
    for kind, mat, acc, e0 in [("pair", 0, "Q", 5), ("pair", 2, "Q", 3), ("k16", 4, "Q", 1), ("pair", 10, "P", 0), ("pair", 12, "P", -2), ("k16", 14, "P", -4)]:
        S.append(dict(kind=kind, src="W", soff=mat * MAT, acc=acc, kap=4, idx=[10 - (q + e0) for q in range(5)]))
    for c in range(4):
        for s in range(10):
            S.append(dict(kind="full", src="G", soff=s * MAT + c * SLOT, acc="P" if s < 5 else "Q",
                          kap=5 + c, idx=[(5 if s < 5 else 14) - (q - s % 5) for q in range(5)]))
    for kind, mat, acc, e0 in [("pair", 0, "P", 0), ("pair", 2, "P", -2), ("k16", 4, "P", -4), ("pair", 5, "Q", 0), ("pair", 7, "Q", -2), ("k16", 9, "Q", -4)]:
        S.append(dict(kind=kind, src="G", soff=mat * MAT, acc=acc, kap=9, idx=[(5 if acc == "P" else 14) - (q + e0) for q in range(5)]))
    for n, s in enumerate(S):
        s["n"] = n; s["slot"] = n % 5
        s["keys"] = [(s["kap"], i, s["kind"] == "k16") for i in s["idx"]]
    return S


STEPS = build_steps()

sX, sW, sG, sO, sWO = 16, 20, 24, 28, 32
sWV, sGI, sLW = 36, 37, 38
sCNT, sT0, sT1, sT2, sT3 = 40, 41, 42, 43, 44
sM4, sM5, sHALF, sOFF = 46, 47, 48, 49
sCF, sCG, sCX, sONE, sM2, sTWO = 50, 52, 54, 56, 58, 60
sPC = 62
sCLAMP, sMASK = 64, 65
sTS = 68


def srd(r):
    return f"s[{r}:{r+3}]"


vE, vO, vEh, vOh, vUA, vU16, vT, vE16, vO16 = 1, 2, 3, 4, 5, 6, 7, 18, 19
WB = dict(Fa=20, Ga=24, F8=28, G8=32, Fb=36, Gb=40)
UBUF = [44 + 4 * i for i in range(7)]
COL = dict(Fa=0, Ga=1, Fb=2, Gb=3)


def acc(name, q, which):
    t = COL[name] * 5 + q if name in COL else dict(F8=20, G8=21, X=22)[name]
    return 72 + 8 * t + (0 if which == "P" else 4)


class Gen:
    def __init__(self, prof=False, cfg=None):
        self.a = Asm(); self.prof = prof; self.cfg = cfg or {}
        self.nst = 0

    def stamp(self, i, real=False):
        if self.prof:
            self.a(f"s_memtime s[96:97]" if not real else f"s_memrealtime s[96:97]")
            self.a("s_waitcnt lgkmcnt(0)")
            self.a(f"s_mov_b32 s{sTS+i}, s96")

    def dump_stamps(self, off):
        if not self.prof: return
        a = self.a
        a(f"s_add_u32 s{sT0}, s14, 0x100000"); a(f"s_addc_u32 s{sT1}, s15, 0")
        a(f"s_mov_b32 s{sG}, s{sT0}"); a(f"s_mov_b32 s{sG+1}, s{sT1}"); a(f"s_mov_b32 s{sG+2}, 0x100000"); a(f"s_mov_b32 s{sG+3}, 0x20000")
        a(f"s_lshl_b32 s{sT0}, s2, 7"); a(f"s_add_u32 s{sT0}, s{sT0}, {off}")
        for i in range(16): a(f"v_mov_b32 v{8+i}, s{sTS+i}")
        a(f"v_mov_b32 v1, s{sT0}")
        a("s_mov_b64 exec, 1")
        for i in range(4): a(f"buffer_store_dwordx4 {vr(8+4*i)}, v1, {srd(sG)}, 0 offen offset:{16*i}")
        a("s_waitcnt vmcnt(0)")
        if self.cfg.get("dbg"):
            a("v_mov_b32 v1, 0")
            if off:
                a(f"v_mov_b32 v2, s{sTS+15}"); a(f"v_not_b32 v3, s{sTS+14}")
                a("global_atomic_umax v1, v2, s[12:13] offset:20 sc1"); a("global_atomic_umax v1, v3, s[12:13] offset:24 sc1")
            a("s_cmp_lg_u32 s2, 156"); a(f"s_cbranch_scc1 L_nodbg{off}")
            for j, m in enumerate((6, 10, 1, 3, 5, 15) if off else (1, 2, 3, 4)):
                a(f"s_sub_u32 s{sT0}, s{sTS+m}, s{sTS+(14 if m == 15 else 0)}"); a(f"v_mov_b32 v2, s{sT0}")
                a(f"global_store_dword v1, v2, s[12:13] offset:{(32 if off else 4)+4*j}")
            a(f"L_nodbg{off}:")
            a("s_waitcnt vmcnt(0)")

    def wread(self, w, name, st):
        T = dict(Fa=2 * w, Fb=2 * w + 1, Ga=9 + 2 * w, Gb=10 + 2 * w, F8=8, G8=17)[name]
        hi = st["slot"] >= 3
        base = (vO if T & 1 else vE) + (2 if hi else 0)
        off = st["slot"] * SLOT - (3 * SLOT if hi else 0) + 32 * T
        b = WB[name]
        if st["kind"] == "k16":
            assert st["slot"] <= 3
            base = vO16 if T & 1 else vE16
            off = st["slot"] * SLOT + 32 * T
        L = [f"ds_read_b64_tr_b16 {vr(b,2)}, v{base} offset:{off}"]
        if st["kind"] != "k16":
            L.append(f"ds_read_b64_tr_b16 {vr(b+2,2)}, v{base} offset:{off+2304}")
        return [(x, ("W", name, st["n"])) for x in L]

    def uread(self, key, buf):
        kap, idx, k16 = key
        if k16:
            ub = UB1 if kap & 1 else UB0
            return (f"ds_read_b64 {vr(UBUF[buf],2)}, v{vU16} offset:{ub-UB1+idx*1024}", ("U", key))
        return (f"ds_read_b128 {vr(UBUF[buf])}, v{vUA} offset:{idx*1024}", ("U", key))

    def emit_step(self, w, st, nxt, S, force=None, extra_gb=None, out=None):
        e = out.append
        Q = S["queue"]; umap = S["umap"]
        k16 = st["kind"] == "k16"
        n2 = 2 if k16 else 4
        opn = "v_mfma_f32_16x16x16_bf16" if k16 else "v_mfma_f32_16x16x32_bf16"

        def waitfor(keys):
            pos = -1
            for i, k in enumerate(Q):
                if k in keys: pos = i
            if pos < 0: return None
            return len(Q) - 1 - pos, pos

        def dowait(keys):
            r = waitfor(keys)
            if r is None: return
            e(f"s_waitcnt lgkmcnt({min(15, r[0])})")
            del Q[:r[1] + 1]

        def run(ms, loads, first_cap=2):
            loads = list(loads)
            for i, (an, q, wn) in enumerate(ms):
                uk = st["keys"][q]
                dowait({("W", wn, st["n"]), ("U", uk)})
                d = acc(an, q, st["acc"])
                e(f"{opn} {vr(d)}, {vr(WB[wn], n2)}, {vr(UBUF[umap[uk]], n2)}, {vr(d)}")
                cap = 2
                if i + 1 < len(ms):
                    an2, q2, wn2 = ms[i + 1]
                    if waitfor({("W", wn2, st["n"]), ("U", st["keys"][q2])}) is not None: cap -= 1
                else:
                    cap -= 1
                j = 0
                while cap > 0 and j < len(loads):
                    if loads[j][2] <= i:
                        t, k, _ = loads.pop(j)
                        e(t)
                        if k is not None: Q.append(k)
                        cap -= 1
                    else:
                        j += 1
            for t, k, _ in loads:
                e(t)
                if k is not None: Q.append(k)

        ga = [(c, q, c) for q in (4, 3, 2, 1, 0) for c in ("Fa", "Ga")]
        gs = [("F8", w, "F8"), ("G8", w, "G8")]
        if w == 0: gs.append(("X", 4, "F8"))
        if w == 1: gs.append(("X", 4, "G8"))
        gb = [(c, q, c) for q in (4, 3, 2, 1, 0) for c in ("Fb", "Gb")]
        la = [(t, k, 0) for nm in ("F8", "G8") for t, k in self.wread(w, nm, st)]
        la += [(t, k, 2) for nm in ("Fb", "Gb") for t, k in self.wread(w, nm, st)]
        run(ga + gs, la)
        dowait({("W", "Fb", st["n"]), ("W", "Gb", st["n"])})
        assert not Q
        e("s_barrier")
        lb = []
        if nxt is not None:
            if nxt["kap"] != st["kap"]:
                e(f"v_xor_b32 v{vUA}, {UXOR:#x}, v{vUA}")
            cur = st["keys"]
            keep = set(cur) | set(nxt["keys"])
            for k in list(umap):
                if k not in keep: del umap[k]
            freeat = {b: 0 for b in range(7) if b not in umap.values()}
            for q in range(5):
                if cur[q] not in nxt["keys"]:
                    freeat[umap[cur[q]]] = 2 * (4 - q) + 1
            newm = {}
            ul = []
            for q in (4, 3, 2, 1, 0):
                k = nxt["keys"][q]
                if k in umap: continue
                if force is not None:
                    b = force(k)
                    assert b in freeat, (st["n"], k, b, umap, freeat)
                else:
                    b = min(freeat, key=lambda x: (freeat[x], x))
                t, kk = self.uread(k, b)
                ul.append((2 * (4 - q), t, kk, freeat.pop(b)))
                newm[k] = b
            fa = self.wread(w, "Fa", nxt); gaa = self.wread(w, "Ga", nxt)
            allr = [(0, t, k, 0) for t, k in fa] + [(1, t, k, 0) for t, k in gaa] + ul
            allr.sort(key=lambda x: x[0])
            lb = [(t, k, g) for _, t, k, g in allr]
        if extra_gb:
            lb += [(t, None, 6) for t in extra_gb]
        run(gb, lb)
        if nxt is not None:
            for k in list(umap):
                if k not in nxt["keys"]: del umap[k]
            umap.update(newm)

    @staticmethod
    def shift_state(S, dn, dk):
        q = []
        for k in S["queue"]:
            if k[0] == "W": q.append(("W", k[1], k[2] + dn))
            else: q.append(("U", (k[1][0] + dk, k[1][1], k[1][2])))
        return dict(queue=q, umap={(k[0] + dk, k[1], k[2]): b for k, b in S["umap"].items()})

    def al8(self, L):
        m = self.cfg.get("al8", 0)
        if not m: return L
        out = []; par = 0
        for x in L:
            sz = 4 if x.startswith("s_") else 8
            if sz == 8 and par != (m - 1) * 4:
                out.append("s_nop 0"); par ^= 4
            out.append(x); par = (par + sz) % 8
        if par: out.append("s_nop 0")
        return out

    def phase(self, w, n0, force, S0, hooks):
        a = self.a
        lab = f"L_c{w}_{n0}"
        S = dict(queue=[], umap=dict(S0))
        tmp = []
        for n in range(n0, n0 + 10):
            self.emit_step(w, STEPS[n], STEPS[n + 1], S, force, None, tmp)
        Send = self.shift_state(S, -10, -1)
        assert Send["umap"] == S0, (Send, S0)
        S = dict(queue=list(Send["queue"]), umap=dict(Send["umap"]))
        body = []
        for n in range(n0, n0 + 10):
            ex = [f"s_add_u32 s{sCNT}, s{sCNT}, 1", f"s_cmp_lt_u32 s{sCNT}, {3 if hooks else 4}"] if n == n0 + 9 else None
            self.emit_step(w, STEPS[n], STEPS[n + 1], S, force, ex, body)
        chk = self.shift_state(S, -10, -1)
        assert chk == Send
        a(f"s_mov_b32 s{sCNT}, 0")
        a(".p2align 3")
        a(lab + ":")
        for x in self.al8(body): a(x)
        if hooks:
            a(f"s_cbranch_scc1 {lab}_hook")
            a(f"s_cmp_lt_u32 s{sCNT}, 4")
        a(f"s_cbranch_scc1 {lab}")
        S = self.shift_state(S, 30, 3)
        return S, lab

    def compute_main(self, w):
        a = self.a
        a(".p2align 6")
        a(f"L_cw{w}:")
        fA = lambda k: (k[1] - 1) % 7
        fB = lambda k: (k[1] - 1) % 6
        st0 = STEPS[0]
        S0 = {k: fA(k) for k in st0["keys"]}
        a("s_barrier")
        self.stamp(1)
        for nm in ("Fa", "Ga"):
            for t, _ in self.wread(w, nm, st0): a(t)
        for q in (4, 3, 2, 1, 0):
            a(self.uread(st0["keys"][q], S0[st0["keys"][q]])[0])
        a("s_waitcnt lgkmcnt(0)")
        S, labA = self.phase(w, 0, fA, S0, False)
        out = []
        for n in range(40, 46):
            self.emit_step(w, STEPS[n], STEPS[n + 1], S, fB if n == 45 else None, None, out)
        if self.cfg.get("al8"): a("s_nop 0")
        for x in self.al8(out): a(x)
        self.stamp(2)
        tiles = [COL["Fa"] * 5 + q for q in (4, 3, 2, 1, 0)] + [COL["Ga"] * 5 + q for q in (4, 3, 2, 1, 0)] + [20, 21] + ([22] if w < 2 else [])
        tiles += [COL[c] * 5 + q for q in (4, 3, 2, 1, 0) for c in ("Fb", "Gb")]
        prs = [(72 + 8 * t + h, 76 + 8 * t + h) for t in tiles for h in (0, 2)]
        for i in range(0, len(prs), 4):
            for p, q in prs[i:i + 4]: a(f"v_pk_add_f32 {vr(p,2)}, {vr(p,2)}, {vr(q,2)} neg_lo:[0,1] neg_hi:[0,1]")
            for p, q in prs[i:i + 4]: a(f"v_pk_fma_f32 {vr(q,2)}, {vr(q,2)}, s[{sTWO}:{sTWO+1}], {vr(p,2)}")
        a("s_waitcnt lgkmcnt(0)")
        S0 = {k: fB(k) for k in STEPS[46]["keys"]}
        assert S["umap"] == S0
        S, labB = self.phase(w, 46, fB, S0, False)
        out = []
        for n in range(86, 92):
            self.emit_step(w, STEPS[n], STEPS[n + 1] if n < 91 else None, S, None, None, out)
        if self.cfg.get("al8"): a("s_nop 0")
        for x in self.al8(out): a(x)
        a("s_branch L_cepi")

    def bfly(self, prs):
        a = self.a
        L = [(p + h, q + h, c) for p, q, c in prs for h in (0, 2)]
        for p, q, c in L: a(f"v_pk_mul_f32 {vr(q,2)}, {vr(q,2)}, s[{c}:{c+1}]")
        for p, q, c in L: a(f"v_pk_fma_f32 {vr(p,2)}, {vr(p,2)}, s[{c}:{c+1}], {vr(q,2)}")
        for p, q, c in L: a(f"v_pk_fma_f32 {vr(q,2)}, {vr(q,2)}, s[{sM2}:{sM2+1}], {vr(p,2)}")

    def act(self, tiles, tmp):
        a = self.a
        for f, g, o in tiles:
            for r in range(4): a(f"v_min_f32 v{f+r}, s{sCLAMP}, v{f+r}")
        for f, g, o in tiles:
            for r in range(4): a(f"v_exp_f32 v{g+r}, v{g+r}")
        for f, g, o in tiles:
            for r in range(4): a(f"v_exp_f32 v{f+r}, v{f+r}")
        for i, (f, g, o) in enumerate(tiles):
            for h in (0, 2): a(f"v_pk_add_f32 {vr(tmp+4*i+h,2)}, {vr(f+h,2)}, s[{sONE}:{sONE+1}]")
        for i, (f, g, o) in enumerate(tiles):
            for h in (0, 2): a(f"v_pk_fma_f32 {vr(g+h,2)}, {vr(tmp+4*i+h,2)}, {vr(g+h,2)}, {vr(tmp+4*i+h,2)}")
        for f, g, o in tiles:
            for r in range(4): a(f"v_rcp_f32 v{g+r}, v{g+r}")
        for f, g, o in tiles:
            for h in (0, 2): a(f"v_pk_fma_f32 {vr(f+h,2)}, {vr(f+h,2)}, {vr(g+h,2)}, {vr(g+h,2)} neg_lo:[1,0,0] neg_hi:[1,0,0]")
        for f, g, o in tiles:
            for h in (0, 1): a(f"v_cvt_pk_bf16_f32 v{o+h}, v{f+2*h}, v{f+2*h+1}")

    def compute_epilogue(self):
        a = self.a
        a(".p2align 6")
        a("L_cepi:")
        self.stamp(3)
        a("v_lshlrev_b32 v2, 3, v0"); a("v_lshlrev_b32 v3, 4, v0")
        a(f"s_lshl_b32 s{sT0}, s{sWV}, 10"); a(f"v_add_u32 v1, s{sT0}, v3")
        a(f"s_mul_i32 s{sT1}, s{sWV}, 4608")
        a(f"s_add_u32 s{sT2}, s{sT1}, {4096+6*4608}"); a(f"v_add_u32 v4, s{sT2}, v2")
        a(f"s_lshl_b32 s{sT1}, s{sT1}, 1"); a(f"s_add_u32 s{sT1}, s{sT1}, 4096"); a(f"v_add_u32 v2, s{sT1}, v2")
        a(f"s_lshl_b32 s{sT1}, s{sWV}, 11"); a(f"s_sub_u32 s{sT2}, s{sT0}, 2048")
        a(f"s_cmp_lt_u32 s{sWV}, 2"); a(f"s_cselect_b32 s{sT1}, s{sT1}, s{sT2}")
        a(f"s_add_u32 s{sT1}, s{sT1}, {EX}"); a(f"v_add_u32 v3, s{sT1}, v3")
        a(f"s_cmp_ge_u32 s{sWV}, 2"); a("s_cbranch_scc1 L_nox")
        self.bfly([(acc("X", 0, "P"), acc("X", 0, "Q"), sCX)])
        a(f"ds_write_b128 v3, {vr(acc('X',0,'P'))}")
        a(f"ds_write_b128 v3, {vr(acc('X',0,'Q'))} offset:1024")
        a("L_nox:")
        self.bfly([(acc("F8", 0, "P"), acc("F8", 0, "Q"), sCF), (acc("G8", 0, "P"), acc("G8", 0, "Q"), sCG)])
        self.act([(acc("F8", 0, "P"), acc("G8", 0, "P"), 8), (acc("F8", 0, "Q"), acc("G8", 0, "Q"), 10)], 20)
        a("ds_write_b64 v2, v[8:9]")
        a("ds_write_b64 v2, v[10:11] offset:4608")
        for q in range(5):
            if q == 1:
                a(f"s_cmp_lt_u32 s{sWV}, 2"); a("s_cbranch_scc1 L_nox2")
                a("ds_read_b128 v[44:47], v3"); a("ds_read_b128 v[48:51], v3 offset:2048")
                a("s_waitcnt lgkmcnt(0)")
                self.act([(44, 48, 8)], 20)
                a("ds_write_b64 v4, v[8:9]")
                a("L_nox2:")
            self.bfly([(acc(c, q, "P"), acc(c, q, "Q"), sCF if c[0] == "F" else sCG) for c in ("Fa", "Ga", "Fb", "Gb")])
            for y, wh in enumerate("PQ"):
                o = 12 + 4 * y
                self.act([(acc("Fa", q, wh), acc("Ga", q, wh), o), (acc("Fb", q, wh), acc("Gb", q, wh), o + 2)], 20 + 8 * y)
                a(f"ds_write_b128 v1, {vr(o)} offset:{(2*q+y)*4608}")
            a("s_waitcnt lgkmcnt(0)")
            self.stamp(9 + q)
            a("s_barrier")
        self.stamp(4)
        if self.prof:
            a(f"s_cmp_lg_u32 s{sWV}, 0"); a("s_cbranch_scc1 L_cend")
            self.stamp(15, True)
            self.dump_stamps(0)
            a("L_cend:")
        a("s_endpgm")

    def compute_prologue(self):
        a = self.a
        a("L_compute:")
        a("v_lshrrev_b32 v12, 4, v0")
        a("v_bfe_u32 v13, v0, 2, 2")
        a("v_lshl_add_u32 v17, v12, 2, v13")
        a("v_lshl_add_u32 v13, v12, 3, v13")
        a("v_mul_u32_u24 v13, 576, v13"); a("v_mul_u32_u24 v17, 576, v17")
        a("v_and_b32 v14, 3, v0"); a("v_lshl_add_u32 v13, v14, 3, v13"); a("v_lshl_add_u32 v17, v14, 3, v17")
        a("v_and_b32 v14, 1, v12"); a("v_lshlrev_b32 v15, 5, v14")
        a(f"v_add_u32 v{vE}, v13, v15"); a(f"v_sub_u32 v{vO}, v13, v15")
        a(f"v_add_u32 v{vEh}, {3*SLOT}, v{vE}"); a(f"v_add_u32 v{vOh}, {3*SLOT}, v{vO}")
        a("v_and_b32 v15, 32, v0")
        a(f"v_add_u32 v{vE16}, v17, v15"); a(f"v_sub_u32 v{vO16}, v17, v15")
        a("v_and_b32 v13, 15, v0")
        a("v_lshlrev_b32 v15, 1, v12"); a("v_xor_b32 v15, v15, v13")
        a("v_lshl_add_u32 v15, v12, 4, v15"); a("v_lshlrev_b32 v15, 4, v15")
        a(f"v_add_u32 v{vUA}, {UB0}, v15")
        a("v_lshrrev_b32 v12, 1, v12")
        a("v_lshlrev_b32 v15, 1, v12"); a("v_xor_b32 v15, v15, v13")
        a("v_lshl_add_u32 v15, v12, 4, v15"); a("v_lshlrev_b32 v15, 4, v15")
        a("v_lshl_add_u32 v15, v14, 3, v15")
        a(f"v_add_u32 v{vU16}, {UB1}, v15")
        cF, cG = f2u(-LOG2E), f2u(-LOG2E / 2)
        for r, v in ((sCF, cF), (sCG, cG), (sONE, f2u(1.0)), (sM2, f2u(-2.0)), (sTWO, f2u(2.0))):
            a(f"s_mov_b32 s{r}, {v:#x}"); a(f"s_mov_b32 s{r+1}, {v:#x}")
        a(f"s_cmp_eq_u32 s{sWV}, 0"); a(f"s_cselect_b32 s{sCX}, s{sCF}, s{sCG}"); a(f"s_mov_b32 s{sCX+1}, s{sCX}")
        a(f"s_mov_b32 s{sCLAMP}, {f2u(30.0):#x}")
        self.stamp(7)
        for r in range(72, 256): a(f"v_mov_b32 v{r}, 0")
        for x in self.xaddr(sWV, 36, [(1, 0, 30), (3, 0, 31), (1, 1, 8), (2, 1, 9), (3, 1, 10), (4, 1, 11)]): a(x)
        a("v_lshrrev_b32 v36, 2, v0"); a("v_and_b32 v37, 3, v0")
        a("v_lshlrev_b32 v38, 1, v37"); a("v_xor_b32 v36, v36, v38"); a("v_lshl_add_u32 v36, v37, 4, v36"); a("v_lshlrev_b32 v36, 4, v36")
        a(f"s_lshl_b32 s{sT0}, s{sWV}, 10"); a(f"s_sub_u32 s{sT0}, {UB0+9*1024}, s{sT0}"); a(f"v_add_u32 v34, s{sT0}, v36")
        a(f"s_lshl_b32 s{sT0}, s{sWV}, 2"); a(f"s_add_u32 s{sT0}, s{sT0}, {UB0}"); a(f"v_add_u32 v35, s{sT0}, v36")
        a(f"s_mov_b32 s{sMASK}, 0xffff0000")
        self.stamp(8)
        if self.prof: a("s_waitcnt lgkmcnt(0)")
        a("s_barrier")
        a("ds_read_b32 v28, v9 offset:1280"); a("ds_read_b32 v29, v11 offset:2560")
        a("ds_read_b32 v32, v8 offset:640"); a("ds_read_b32 v33, v10 offset:1920")
        a("ds_read_b128 v[20:23], v30 offset:640"); a("ds_read_b128 v[24:27], v31 offset:1920")
        U = lambda t, p, q: [f"v_lshlrev_b32 v{t}, 16, v{p}", f"v_and_b32 v{t+1}, s{sMASK}, v{p}", f"v_lshlrev_b32 v{t+2}, 16, v{q}", f"v_and_b32 v{t+3}, s{sMASK}, v{q}"]
        S = lambda t: [f"v_sub_f32 v{t}, v{t}, v{t+2}", f"v_sub_f32 v{t+1}, v{t+1}, v{t+3}"]
        a("s_waitcnt lgkmcnt(4)")
        for x in U(40, 28, 29): a(x)
        a("s_waitcnt lgkmcnt(2)")
        for x in U(64, 32, 33) + S(40) + S(64): a(x)
        a("v_cvt_pk_bf16_f32 v40, v40, v41"); a("v_cvt_pk_bf16_f32 v41, v64, v65")
        a("s_waitcnt lgkmcnt(0)")
        for d in range(4):
            for x in U(44 + 4 * d, 20 + d, 24 + d): a(x)
            if d == 0: a("ds_write2st64_b32 v35, v40, v41 offset0:20 offset1:40")
        for d in range(4):
            for x in S(44 + 4 * d): a(x)
        for d in range(4): a(f"v_cvt_pk_bf16_f32 v{60+d}, v{44+4*d}, v{45+4*d}")
        a("ds_write_b128 v34, v[60:63]")
        a("s_waitcnt lgkmcnt(0)")
        for w in (1, 2, 3):
            a(f"s_cmp_eq_u32 s{sWV}, {w}"); a(f"s_cbranch_scc1 L_cw{w}")
        a("s_branch L_cw0")

    def x_srd(self):
        a = self.a
        a(f"s_cmp_ge_u32 s{sGI}, 100"); a(f"s_cselect_b32 s{sT0}, 100, 0"); a(f"s_cselect_b32 s{sT1}, 4608000, 0")
        a(f"s_sub_u32 s{sT0}, s{sGI}, s{sT0}"); a(f"s_mul_i32 s{sT0}, s{sT0}, 160"); a(f"s_sub_u32 s{sT0}, s{sT0}, 30")
        a(f"s_add_u32 s{sX}, s4, s{sT1}"); a(f"s_addc_u32 s{sX+1}, s5, 0"); a(f"s_mov_b32 s{sX+2}, 4608000"); a(f"s_mov_b32 s{sX+3}, 0x20000")

    def xaddr(self, sw, t, regs):
        L = [f"v_lshrrev_b32 v{t}, 3, v0", f"v_mul_u32_u24 v{t+1}, 1280, v{t}", f"v_and_b32 v{t+2}, 7, v0", f"v_lshl_add_u32 v{t+1}, v{t+2}, 4, v{t+1}",
             f"v_and_b32 v{t}, 1, v{t}", f"v_lshlrev_b32 v{t}, 7, v{t}", f"v_xor_b32 v{t+2}, 0x80, v{t}"]
        if any(g0 for _, g0, _ in regs):
            L += [f"s_lshl_b32 s{sT0}, s{sw}, 2", f"s_add_u32 s{sT0}, s{sT0}, {STG}", f"v_add_u32 v{t+3}, s{sT0}, v{t+1}"]
            for i, g0, r in regs:
                if g0: L.append(f"{'v_sub_u32' if i & 1 else 'v_add_u32'} v{r}, v{t+3}, v{t if i in (1, 4) else t+2}")
        L += [f"s_lshl_b32 s{sT0}, s{sw}, 7", f"s_add_u32 s{sT0}, s{sT0}, {STG+128}", f"v_add_u32 v{t+3}, s{sT0}, v{t+1}",
              f"s_and_b32 s{sT0}, s{sw}, 1", f"s_lshl_b32 s{sT0}, s{sT0}, 1", f"s_sub_u32 s{sT0}, s{sT0}, 1",
              f"v_mul_i32_i24 v{t}, s{sT0}, v{t}", f"v_mul_i32_i24 v{t+2}, s{sT0}, v{t+2}"]
        for i, g0, r in regs:
            if not g0: L.append(f"{'v_sub_u32' if i & 1 else 'v_add_u32'} v{r}, v{t+3}, v{t if i in (0, 1, 4) else t+2}")
        return L

    def mk_srd(self, r, p, off, n):
        a = self.a
        if off == 0:
            a(f"s_mov_b32 s{r}, s{p}"); a(f"s_mov_b32 s{r+1}, s{p+1}")
        else:
            a(f"s_add_u32 s{r}, s{p}, {off}"); a(f"s_addc_u32 s{r+1}, s{p+1}, 0")
        a(f"s_mov_b32 s{r+2}, {n}"); a(f"s_mov_b32 s{r+3}, 0x20000")

    def loader(self):
        a = self.a; cfg = self.cfg
        VF, XG = 1, 16
        XAr = lambda i, g0: (10 + i - 1) if g0 else 6 + (0, 1, 2, 3, 0)[i]
        UWR, UWRH, UW0, UW0H = 25, 26, 27, 28
        X = lambda c, i: 32 + 20 * c + 4 * i
        X0 = lambda c, i: 132 + 4 * c + (i - 1)
        TU, TA, O = 152, 170, 186
        sP, sXM = 90, 95
        cur = [-1]
        Q = []
        D = []
        self.nlab = 0
        st8 = dict(m0=None, soff=None)

        def wait(tag):
            pos = max([i for i, (t, o) in enumerate(Q) if t == tag], default=-1)
            if pos < 0: return
            n = sum(1 for t, o in Q[pos + 1:] if not o)
            a(f"s_waitcnt vmcnt({n})")
            del Q[:pos + 1]

        def dwait(pred):
            pos = max([i for i, t in enumerate(D) if pred(t)], default=-1)
            if pos < 0: return
            a(f"s_waitcnt lgkmcnt({len(D)-1-pos})")
            for t in D[:pos + 1]:
                if t[0] == "xr": xdone[t[1]] = cur[0]
            del D[:pos + 1]
        xdone = {}

        def skip_unless(cond_reg, val, op="eq"):
            self.nlab += 1
            a(f"s_cmp_{op}_u32 s{cond_reg}, {val}"); a(f"s_cbranch_scc0 L_sk{self.nlab}")
            return f"L_sk{self.nlab}:"

        def xdma(c, j, lw=None):
            if c >= 2: assert xdone[c - 2] < cur[0] and not any(t[0] == "xr" and t[1] == c - 2 for t in D)
            a(f"s_add_u32 m0, s{sXM}, {(c&1)*STGB+1024*j}"); st8["m0"] = None
            if c and st8["soff"] != ("x", c): a(f"s_movk_i32 s{sOFF}, {64*c}"); st8["soff"] = ("x", c)
            if cfg.get("nox"): return
            if lw is not None: l = skip_unless(sLW, lw)
            a(f"buffer_load_dwordx4 v{XG+j}, {srd(sX)}, {'s%d' % sOFF if c else 0} offen lds")
            Q.append((("x", c), lw is not None))
            if lw is not None: a(l)

        def xread(c, i, g0):
            if g0: a(f"ds_read_b32 v{X0(c,i)}, v{XAr(i,1)} offset:{(c&1)*STGB+640*i}")
            else: a(f"ds_read_b128 {vr(X(c,i))}, v{XAr(i,0)} offset:{(c&1)*STGB+640*i}")
            D.append(("xr", c, i, g0))
        XRD = [(2, 0), (4, 0), (0, 0), (2, 1), (4, 1), (1, 1), (3, 1), (1, 0), (3, 0)]
        xw = lambda g0, *ii: (lambda: dwait(lambda t: t[0] == "xr" and t[3] == g0 and t[2] in ii))

        def piece(n, i):
            st = STEPS[n]; kind = st["kind"]
            d = srd(sW) if st["src"] == "W" else srd(sG)
            sc = "" if st["src"] == "W" else " sc1"
            m0 = (n, i == 4)
            if st8["m0"] != m0:
                a(f"s_add_u32 m0, s{sM5 if i == 4 else sM4}, {st['slot']*SLOT}"); st8["m0"] = m0
            if kind == "pair":
                a(f"s_add_u32 s{sOFF}, s{sP+i}, {st['soff']}"); st8["soff"] = None
            elif st8["soff"] != n:
                a(f"s_mov_b32 s{sOFF}, {st['soff'] + (73728 if kind == 'k16' else 0)}"); st8["soff"] = n
            l = None
            if i == 4: l = skip_unless(sHALF, n & 1)
            elif kind == "k16": l = skip_unless(sLW, 2 if i == 0 else 1, "le")
            off = f" offset:{1024*i}" if 0 < i < 4 else ""
            a(f"buffer_load_dwordx4 v{VF+i}, {d}, s{sOFF} offen{off}{sc} lds")
            Q.append((("w", n), l is not None))
            if l: a(l)
            assert len(Q) <= 60
        pieces = [(n, i) for n in range(92) for i in range(4 if STEPS[n]["kind"] == "k16" else 5)]

        def frag_job(srcs, outs, nd=4, ob=0):
            U = []; A = []; C = []
            for d in range(nd):
                tu = TU + 6 * (d % 3); ta = TA + 8 * (d % 2)
                u = []
                for k, r in enumerate(srcs):
                    u += [f"v_lshlrev_b32 v{tu+2*k}, 16, v{r+d}", f"v_and_b32 v{tu+2*k+1}, s{sMASK}, v{r+d}"]
                ad = []; cv = []
                for k, (op, i, j, _) in enumerate(outs):
                    ad += [f"{op} v{ta+2*k+h}, v{tu+2*i+h}, v{tu+2*j+h}" for h in (0, 1)]
                    cv.append(f"v_cvt_pk_bf16_f32 v{O+ob+nd*k+d}, v{ta+2*k}, v{ta+2*k+1}")
                U.append(u); A.append(ad); C.append(cv)
            L = list(U[0])
            for d in range(nd):
                if d + 1 < nd: L += U[d + 1]
                L += A[d]
                if d: L += C[d - 1]
            L += C[nd - 1]
            return L, [wt(O + ob + nd * k) for k, (_, _, _, wt) in enumerate(outs)]
        SUB, ADD = "v_sub_f32", "v_add_f32"
        first = lambda k: min(s["n"] for s in STEPS if s["kap"] == k)
        last = lambda k: max(s["n"] for s in STEPS if s["kap"] == k)

        def mid(L, x):
            return L[:len(L) // 2] + x + L[len(L) // 2:]

        def jobs_of(kap):
            c = kap % 5; ub = (UB1 if kap & 1 else UB0) - UB1
            f = first(kap); l = f - 1
            e0 = first(kap - 1) if kap else -1
            half = c == 4
            wr, w0 = (UWRH, UW0H) if half else (UWR, UW0)
            W4 = lambda idx, dl: (lambda o: (f"ds_write_b128 v{wr}, {vr(o)} offset:{ub+idx*1024}", dl, e0))
            W2 = lambda i0, i1: (f"ds_write2st64_b32 v{w0}, v{O+16}, v{O+17} offset0:{(ub+i0*1024)//256} offset1:{(ub+i1*1024)//256}", l, e0)
            no = lambda o: None
            if kap == 0:
                La, Wa = frag_job([X(c, 2), X(c, 4)], [(SUB, 0, 1, W4(5, l))])
                Lb, Wb = frag_job([X(c, 0), X(c, 2)], [(SUB, 0, 1, W4(15, f + 5))], 4, 4)
                return [[xw(0, 2, 4)] + La + Wa, [xw(0, 0)] + Lb + Wb]
            if kap < 5:
                d10, d15 = (l, l) if half else (f, f + 5)
                La, Wa = frag_job([X(c, 0), X(c, 2), X(c, 4)], [(SUB, 1, 2, W4(5, l)), (SUB, 0, 1, W4(15, d15))])
                Lg, _ = frag_job([X0(c, 2), X0(c, 4), X0(c, 1), X0(c, 3)], [(SUB, 0, 1, no), (SUB, 2, 3, no)], 1, 16)
                Lb, Wb = frag_job([X(c, 1), X(c, 3)], [(SUB, 0, 1, W4(10, d10))], 4, 8)
                return [[xw(0, 0, 2, 4)] + La + Wa, [xw(1, 1, 2, 3, 4)] + Lg + [W2(5, 10)], [xw(0, 1, 3)] + Lb + Wb]
            d10, d14, d19 = (l, f + 2, f + 2) if half else (f, f + 4, f + 5)
            La, Wa = frag_job([X(c, 2), X(c, 3)], [(ADD, 0, 1, W4(5, l)), (SUB, 1, 0, W4(14, d14))])
            Lb, Wb = frag_job([X(c, 1), X(c, 2)], [(ADD, 0, 1, W4(10, d10)), (SUB, 1, 0, W4(19, d19))], 4, 8)
            Lg, _ = frag_job([X0(c, 2), X0(c, 3)], [(ADD, 0, 1, no), (SUB, 1, 0, no)], 1, 16)
            return [La + Wa, Lg + [W2(5, 14)], Lb + Wb]
        pend = []; wat = set()

        def emit(x):
            if callable(x): x()
            elif isinstance(x, tuple): a(x[0]); D.append(("w", x[1]))
            else: a(x)

        def mix(ents, ops, head=(), defer=False):
            from asmlib import Ins
            k = max(1, len(ents) - 1)
            early = list(head)
            if defer:
                run = sum(1 for k in (1, 2) if all(cur[0] - m in wat for m in range(1, k + 1)))
                ok = pend and pend[0][2] <= cur[0] and (run < cfg.get("wrun", 2) or 35 <= cur[0] <= 39)
                nw = max([1 if ok else 0] + [1 for i, x in enumerate(pend) if x[1] - 1 - i <= cur[0]] + [i + 1 for i, x in enumerate(pend) if x[1] <= cur[0]])
                if nw: wat.add(cur[0])
                assert all(x[2] <= cur[0] for x in pend[:nw])
                if cfg.get("verbose") and nw: print("   writes", [(x[0][:40], x[1]) for x in pend[:nw]])
                early = early + pend[:nw]; del pend[:nw]
                for x in ops:
                    if isinstance(x, tuple): pend.append(x)
                    elif not callable(x):
                        for y in pend: assert not (Ins(x).w & Ins(y[0]).r), (x, y)
                ops = [x for x in ops if not isinstance(x, tuple)]
            j = 0
            for i, e in enumerate(ents or [lambda: None]):
                e()
                if i == 0:
                    for x in early: emit(x)
                if i < k:
                    j2 = (len(ops) * (i + 1) + k - 1) // k
                    for x in ops[j:j2]: emit(x)
                    j = j2
            for x in ops[j:]: emit(x)

        a("L_loader:")
        if cfg.get("lprio0", 3): a(f"s_setprio {cfg.get('lprio0', 3)}")
        a(f"s_sub_u32 s{sLW}, s{sWV}, 4")
        a("v_lshrrev_b32 v29, 2, v0"); a("v_and_b32 v31, 3, v0")
        a(f"s_mul_i32 s{sT2}, s{sLW}, 48"); a(f"v_add_u32 v{XG}, s{sT2}, v29")
        for j in (1, 2): a(f"v_add_u32 v{XG+j}, {16*j}, v{XG}")
        for j in range(3): a(f"v_mul_u32_u24 v{152+j}, 6554, v{XG+j}")
        for j in range(3): a(f"v_lshrrev_b32 v{152+j}, 16, v{152+j}")
        for j in range(3): a(f"v_and_b32 v{152+j}, 2, v{152+j}")
        for j in range(3): a(f"v_xor_b32 v{XG+j}, v{XG+j}, v{152+j}")
        for j in range(3): a(f"v_mul_u32_u24 v{XG+j}, 288, v{XG+j}")
        for j in range(3): a(f"v_lshl_add_u32 v{XG+j}, v31, 4, v{XG+j}")
        a(f"s_mul_i32 s{sXM}, s{sLW}, 3072"); a(f"s_add_u32 s{sXM}, s{sXM}, {STG}")
        a(f"s_lshl_b32 s{sM4}, s{sLW}, 12")
        a("s_waitcnt lgkmcnt(0)")
        self.stamp(6)
        self.x_srd()
        a(f"s_mul_i32 s{sT0}, s{sT0}, 288")
        for j in range(3): a(f"v_add_u32 v{XG+j}, s{sT0}, v{XG+j}")
        for j in range(3): xdma(0, j)
        self.stamp(7)
        self.mk_srd(sW, 6, 0, 15 * MAT)
        a(f"v_lshl_add_u32 v{VF+4}, v0, 4, s{sM4}")
        a(f"s_mul_i32 s{sT0}, s{sLW}, {256*3641}"); a(f"s_movk_i32 s{sT1}, 3641")
        a(f"v_mov_b32 v152, s{sT0}"); a(f"v_mad_u32_u24 v152, v0, s{sT1}, v152")
        for i in range(4):
            if i: a(f"v_add_u32 v{152+i}, {64*3641*i}, v152")
        for i in range(4): a(f"v_lshrrev_b32 v{152+i}, 15, v{152+i}")
        for i in range(4): a(f"v_and_b32 v{152+i}, 32, v{152+i}")
        for i in range(4): a(f"v_xor_b32 v{VF+i}, v{VF+4}, v{152+i}")
        a(f"s_and_b32 s{sM5}, s{sLW}, 1"); a(f"s_lshl_b32 s{sM5}, s{sM5}, 10"); a(f"s_add_u32 s{sM5}, s{sM5}, 16384")
        a(f"s_lshr_b32 s{sHALF}, s{sLW}, 1")
        a(f"v_lshl_add_u32 v{VF+4}, v0, 4, s{sM5}"); a(f"v_xor_b32 v{VF+4}, 32, v{VF+4}")
        self.stamp(8)
        ops = [f"s_mov_b32 s{sMASK}, 0xffff0000",
               "v_lshlrev_b32 v167, 1, v31", "v_xor_b32 v166, v29, v167",
               "v_lshl_add_u32 v166, v31, 4, v166", "v_lshlrev_b32 v166, 4, v166",
               f"s_lshl_b32 s{sT0}, s{sLW}, 10", f"s_sub_u32 s{sT0}, {UB1-1024}, s{sT0}", f"v_add_u32 v{UWR}, s{sT0}, v166",
               f"s_lshl_b32 s{sT0}, s{sLW}, 2", f"s_add_u32 s{sT1}, s{sT0}, {UB1}", f"v_add_u32 v{UW0}, s{sT1}, v166",
               "v_and_b32 v167, 2, v31", "v_lshlrev_b32 v167, 9, v167",
               f"v_sub_u32 v{UW0H}, v{UW0}, v167", f"v_sub_u32 v{UWRH}, v{UWR}, v167",
               ]
        ops += self.xaddr(sLW, 166, [(i, g0, XAr(i, g0)) for g0 in (0, 1) for i in ((1, 2, 3, 4) if g0 else (0, 1, 2, 3))])
        npro, nearly = cfg.get("npro", 3), cfg.get("nearly", 2)
        pp = 5 * nearly
        mix([lambda p=p: piece(*p) for p in pieces[:pp]], ops)
        if cfg.get("x1pro", 1):
            for j in range(3): xdma(1, j)
        self.stamp(9)
        wait(("x", 0))
        self.stamp(10)
        a("s_barrier")
        J0 = jobs_of(0)
        for i in (2, 4, 0): xread(0, i, 0)
        mix([lambda p=p: piece(*p) for p in pieces[pp:5 * npro]], J0[0] + J0[1]); pp = max(pp, 5 * npro)
        XR0 = [(1, 0), (3, 0), (2, 1), (3, 1)]
        self.stamp(11)
        wait(("w", 0))
        dwait(lambda t: t[0] == "w" and t[1] < 0)
        self.stamp(12)
        if cfg.get("lprio0", 3) != cfg.get("lprio", 0): a(f"s_setprio {cfg.get('lprio', 0)}")
        a("s_barrier")
        self.stamp(1)
        jobs = []
        misc = [f"s_mov_b32 s{sP+4}, 73728"]
        for r, p, n in ((sG, 14, 10 * MAT), (sWO, 8, 41472)):
            misc += [f"s_mov_b32 s{r}, s{p}", f"s_mov_b32 s{r+1}, s{p+1}", f"s_mov_b32 s{r+2}, {n}", f"s_mov_b32 s{r+3}, 0x20000"]
        misc += [f"s_mul_i32 s{sT0}, s{sGI}, 46080", (lambda: (a(f"s_add_u32 s{sO}, s10, s{sT0}"), a(f"s_addc_u32 s{sO+1}, s11, 0"))),
                 f"s_mov_b32 s{sO+2}, 46080", f"s_mov_b32 s{sO+3}, 0x20000"]
        for i in range(4): misc.append(lambda i=i: (a(f"s_cmp_ge_u32 s{sLW}, {3 if i == 0 else 2}"), a(f"s_cselect_b32 s{sP+i}, {2*73728}, s{sP+4}")))
        misc.append(f"s_mov_b32 s{sP+4}, {2*73728}")
        misc.append("v_mov_b32 v21, 0")
        xl = {n: [] for n in range(92)}; head = {n: [] for n in range(92)}; tail = {n: [] for n in range(92)}
        x1 = cfg.get("x1at", 1 if cfg.get("x1pro", 1) else 3)
        for j, (i, g0) in enumerate(XR0): head[j // 2].append(lambda i=i, g0=g0: xread(0, i, g0))
        jobs.append((misc, 0, x1 + 1))
        x2 = cfg.get("x2at", 5)
        tail[x2 - 1].append(lambda: dwait(lambda t: t[0] == "xr" and t[1] == 0))
        for kap in range(1, 10):
            f = first(kap - 1)
            if kap < 5:
                r = x1 + 1 if kap == 1 else f
                if kap > 1 and cfg.get("xthin", 0):
                    n0, n1 = (x2, cfg.get("x2end", 8)) if kap == 2 else (f - 10 + cfg.get("xs", 3), f - 10 + cfg.get("xe", 8))
                    if kap > 2: tail[n0 - 1].append(lambda c=kap: dwait(lambda t: t[0] == "xr" and t[1] == c - 2))
                    for m in range(12): xl[n0 + m * (n1 - n0 + 1) // 12].append(lambda c=kap, m=m: xdma(c, m // 4, m % 4))
                elif kap > 1 or not cfg.get("x1pro", 1):
                    for j in range(3): xl[(0 if kap == 1 else x2 if kap == 2 else f - 10) + j].append(lambda c=kap, j=j: xdma(c, j))
                tail[r - 1].append(lambda c=kap: wait(("x", c)))
                if kap == 4: jobs.append((["v_and_b32 v204, 2, v0", "v_lshlrev_b32 v204, 4, v204"] + [f"v_sub_u32 v{r}, v{r}, v204" for r in range(6, 14)], 23, 29))
                for j, (i, g0) in enumerate(XRD): head[r + j // 3].append(lambda c=kap, i=i, g0=g0: xread(c, i, g0))
                st_ = r + 1
                tg = {1: (5, 6, 8), 4: (34, 35, 37)}.get(kap, (f + 4, f + 6, f + 8))
            elif kap == 5: st_, tg = 38, (40, 41, 44)
            elif kap == 6: st_, tg = 46, (49, 50, 54)
            else: st_, tg = f - 1, (f + 3, f + cfg.get("tg1", 4), f + 7)
            for L, t in zip(jobs_of(kap), tg): jobs.append((L, st_, t))
        npoll = cfg.get("npoll", 33)

        def poll():
            a("global_load_dword v22, v21, s[12:13] sc1"); Q.append(("poll", False))

        def check():
            wait("poll")
            a(f"v_readfirstlane_b32 s{sT0}, v22"); a(f"s_cmp_lt_u32 s{sT0}, {NPROD}"); a("s_cbranch_scc1 L_spin"); a("L_gok:")
        if cfg.get("nopoll"): tail[npoll + 4].append(lambda: a("L_gok:"))
        else: xl[npoll].append(poll); tail[npoll + 4].append(check)

        def wo_dma(j):
            a(f"s_add_u32 m0, s{sT3}, {WO+4096*j}"); st8["m0"] = None
            a(f"s_add_u32 s{sOFF}, s{sT3}, {4096*j}"); st8["soff"] = None
            if j == 10: l = skip_unless(sLW, 0)
            a(f"buffer_load_dwordx4 v29, {srd(sWO)}, s{sOFF} offen lds")
            Q.append(("wo", j == 10))
            if j == 10: a(l)
        for j in range(11): xl[87 + (j + 1) // 4].append(lambda j=j: wo_dma(j))
        ZA, Z16, WA, SA, SR, GO = 216, 217, 218, 219, 220, 223
        E = ["v_lshlrev_b32 v29, 4, v0", f"s_lshl_b32 s{sT3}, s{sLW}, 10"]
        E2 = []
        b = E2.append
        b(f"s_lshr_b32 s{sT0}, s{sLW}, 1"); b(f"s_and_b32 s{sT1}, s{sLW}, 1")
        b(f"s_mul_i32 s{sT2}, s{sT0}, 4608")
        b(f"v_lshlrev_b32 v166, 4, v0"); b(f"v_add_u32 v{ZA}, s{sT2}, v166")
        b(f"s_add_u32 s{sT2}, s{sT2}, 4096"); b(f"v_lshlrev_b32 v166, 3, v0"); b(f"v_add_u32 v{Z16}, s{sT2}, v166")
        b(f"s_mul_i32 s{sT1}, s{sT1}, 160")
        b("v_lshrrev_b32 v166, 2, v0"); b("v_mul_u32_u24 v166, 288, v166")
        b("v_and_b32 v167, 3, v0"); b("v_lshl_add_u32 v166, v167, 3, v166")
        b(f"s_add_u32 s{sT2}, s{sT1}, {WO}"); b(f"v_add_u32 v{WA}, s{sT2}, v166")
        b("v_and_b32 v166, 15, v0"); b(f"v_mul_u32_u24 v166, {STROW}, v166")
        b("v_lshrrev_b32 v167, 4, v0"); b("v_lshl_add_u32 v166, v167, 3, v166")
        b(f"s_mul_i32 s{sT2}, s{sT0}, {16*STROW}"); b(f"s_add_u32 s{sT2}, s{sT2}, s{sT1}"); b(f"s_add_u32 s{sT2}, s{sT2}, {ST}")
        b(f"v_add_u32 v{SA}, s{sT2}, v166")
        for m in range(3):
            if m < 2: b(f"s_lshl_b32 s{sT0}, s{sLW}, 6"); b(f"s_add_u32 s{sT0}, s{sT0}, {256*m}")
            else: b(f"s_mov_b32 s{sT0}, 512")
            b(f"v_add_u32 v166, s{sT0}, v0")
            b("v_mul_u32_u24 v167, 3641, v166"); b("v_lshrrev_b32 v167, 16, v167")
            b("v_mul_u32_u24 v168, 18, v167"); b("v_sub_u32 v166, v166, v168"); b("v_lshlrev_b32 v166, 4, v166")
            b(f"v_mul_u32_u24 v168, {STROW}, v167"); b("v_add_u32 v168, v168, v166"); b(f"v_add_u32 v{SR+m}, {ST}, v168")
            b("v_bfe_u32 v168, v167, 1, 3"); b("v_mul_u32_u24 v168, 20, v168")
            b("v_lshrrev_b32 v169, 4, v167"); b("v_mul_u32_u24 v169, 10, v169"); b("v_add_u32 v168, v168, v169")
            b("v_and_b32 v169, 1, v167"); b("v_add_u32 v168, v168, v169")
            b("v_mul_u32_u24 v168, 288, v168"); b(f"v_add_u32 v{GO+m}, v168, v166")
        jobs.append((E, 85, 86)); jobs.append((E2, 86, 91))
        flat = [(x, j) for j, jb in enumerate(jobs) for x in jb[0]]
        p2 = cfg.get("prof2")

        def st2(n, k):
            if p2:
                r = 50 + 6 * (n & 1) + 2 * k
                a(f"s_memtime s[{r}:{r+1}]")

        def sv2(n):
            if p2 and n >= 0:
                for k in range(3): a(f"v_writelane_b32 v{210+2*k+n//64}, s{50+6*(n&1)+2*k}, {n%64}")
        fp = 0
        rate = cfg.get("rate", 6)
        for n in range(92):
            st2(n, 0)
            ents = []
            while pp < len(pieces) and pieces[pp][0] <= n + cfg.get('dist', 3) and len(ents) < rate:
                ents.append(lambda p=pieces[pp]: piece(*p)); pp += 1
            ents += xl[n]
            cur[0] = n
            need_ = 0; cum = 0
            for j, jb in enumerate(jobs):
                rem = sum(1 for x, jj in flat[fp:] if jj == j)
                if not rem: continue
                cum += rem
                need_ = max(need_, -(-cum // max(1, jb[2] - n + 1)))
            ops = []
            while len(ops) < need_ and fp < len(flat) and jobs[flat[fp][1]][1] <= n:
                ops.append(flat[fp][0]); fp += 1
            if cfg.get("drop") and n < 85:
                dr = dict(w=["ds_write"], v=["v_cvt", "v_sub_f32", "v_add_f32", "v_lshlrev_b32 v15", "v_lshlrev_b32 v16", "v_and_b32 v15", "v_and_b32 v16"])[cfg["drop"]]
                ops = [x for x in ops if callable(x) or not any((x[0] if isinstance(x, tuple) else x).startswith(p) for p in dr)]
            if cfg.get("verbose"): print("interval", n, "ents", len(ents), "ops", len(ops))
            mix(ents, ops, head[n], True)
            assert all(x[1] > n for x in pend), (n, pend)
            for j, jb in enumerate(jobs):
                if jb[2] <= n: assert not any(jj == j for x, jj in flat[fp:]), (n, j)
            sv2(n - 1)
            st2(n, 1)
            if n + 1 <= 91:
                assert pp == len(pieces) or pieces[pp][0] > n + 1
                wait(("w", n + 1))
            for f in tail[n]: f()
            if n == 91: wait("wo"); assert not Q and not pend
            dwait(lambda t: t[0] == "w" and t[1] <= n)
            st2(n, 2)
            a("s_barrier")
        if p2:
            a("s_waitcnt lgkmcnt(0)"); sv2(91)
            a(f"s_add_u32 s{sG}, s14, 0x200000"); a(f"s_addc_u32 s{sG+1}, s15, 0"); a(f"s_mov_b32 s{sG+2}, 0x200000")
            a(f"s_lshl_b32 s{sT0}, s2, 2"); a(f"s_add_u32 s{sT0}, s{sT0}, s{sLW}"); a(f"s_lshl_b32 s{sT0}, s{sT0}, 11")
            a("v_lshlrev_b32 v166, 2, v0")
            for k in range(6): a(f"buffer_store_dword v{210+k}, v166, {srd(sG)}, s{sT0} offen offset:{256*k}")
        self.stamp(3)
        AF = lambda i, k: 32 + 18 * i + 4 * k
        AC, BF, CV, SD = 124, 144, 164, 176
        for i in range(5):
            for k in range(5):
                a(f"ds_read_b64_tr_b16 {vr(AF(i,k),2)}, v{WA} offset:{k*9216+i*32}")
                if k < 4: a(f"ds_read_b64_tr_b16 {vr(AF(i,k)+2,2)}, v{WA} offset:{k*9216+4608+i*32}")
        a(f"s_and_b32 s{sHALF}, s{sLW}, 1")

        def stage_out(q):
            a(f"ds_read_b128 {vr(SD)}, v{SR} offset:{(q&1)*STBUF}")
            a(f"ds_read_b128 {vr(SD+4)}, v{SR+1} offset:{(q&1)*STBUF}")
            a(f"ds_read_b128 {vr(SD+8)}, v{SR+2} offset:{(q&1)*STBUF}")

        def stage_store(q):
            sm = self.cfg.get("stmod", " sc1")
            a(f"buffer_store_dwordx4 {vr(SD)}, v{GO}, {srd(sO)}, 0 offen offset:{576*q}{sm}")
            a(f"buffer_store_dwordx4 {vr(SD+4)}, v{GO+1}, {srd(sO)}, 0 offen offset:{576*q}{sm}")
            l = skip_unless(sLW, 0)
            a(f"buffer_store_dwordx4 {vr(SD+8)}, v{GO+2}, {srd(sO)}, 0 offen offset:{576*q}{sm}")
            a(l)

        def mm(i, k):
            n2 = 4 if k < 4 else 2
            opn = "v_mfma_f32_16x16x32_bf16" if k < 4 else "v_mfma_f32_16x16x16_bf16"
            a(f"{opn} {vr(AC+4*i)}, {vr(AF(i,k),n2)}, {vr(BF+4*k,n2)}, {vr(AC+4*i) if k != 4 else 0}")

        def fin(i, q):
            a(f"v_cvt_pk_bf16_f32 v{CV+2*i}, v{AC+4*i}, v{AC+4*i+1}"); a(f"v_cvt_pk_bf16_f32 v{CV+2*i+1}, v{AC+4*i+2}, v{AC+4*i+3}")
            a(f"ds_write_b64 v{SA}, {vr(CV+2*i,2)} offset:{(q&1)*STBUF+32*i}")
        for q in range(5):
            a("s_waitcnt lgkmcnt(0)")
            a("s_barrier")
            a(f"ds_read_b64 {vr(BF+16,2)}, v{Z16} offset:{q*9216}")
            for k in range(4): a(f"ds_read_b128 {vr(BF+4*k)}, v{ZA} offset:{q*9216+k*1024}")
            if q: stage_out(q - 1)
            nx = 3 if q else 0
            for j, k in enumerate((4, 0, 1, 2, 3)):
                a(f"s_waitcnt lgkmcnt({4-j+nx})")
                for i in range(5): mm(i, k)
            if q:
                a("s_waitcnt lgkmcnt(0)")
                stage_store(q - 1)
            for i in range(4): fin(i, q)
            l = skip_unless(sHALF, 0)
            fin(4, q)
            a(l)
        a("s_waitcnt lgkmcnt(0)")
        a("s_barrier")
        stage_out(4)
        a("s_waitcnt lgkmcnt(0)")
        stage_store(4)
        if self.prof:
            self.stamp(4)
            a("s_waitcnt vmcnt(0)")
            self.stamp(5)
            self.stamp(15, True)
            a(f"s_cmp_lg_u32 s{sLW}, 0"); a("s_cbranch_scc1 L_lend")
            self.dump_stamps(64)
            a("L_lend:")
        a("s_endpgm")
        a("L_spin:")
        if cfg.get("spinmax"): a(f"s_mov_b32 s{sT1}, 0")
        a("L_spin2:")
        if cfg.get("spinmax"):
            a(f"s_add_u32 s{sT1}, s{sT1}, 1"); a(f"s_cmp_ge_u32 s{sT1}, {cfg['spinmax']}"); a("s_cbranch_scc1 L_gok")
        a("global_load_dword v22, v21, s[12:13] sc1")
        a("s_waitcnt vmcnt(0)")
        a(f"v_readfirstlane_b32 s{sT0}, v22"); a(f"s_cmp_lt_u32 s{sT0}, {NPROD}"); a("s_cbranch_scc1 L_spin2")
        a("s_branch L_gok")

    def producer(self):
        a = self.a; cfg = self.cfg
        a("L_prod:")
        if cfg.get("hexit"): a("s_endpgm")
        a(f"s_lshr_b32 s{sT3}, s2, 3")
        a(f"s_lshl_b32 s{sT0}, s{sWV}, 6"); a(f"v_add_u32 v40, s{sT0}, v0")
        a("v_and_b32 v41, 255, v40")
        a(f"s_cmp_lt_u32 s{sWV}, 4"); a("s_cbranch_scc1 L_pnocode")
        NL = f"((L_code_end-{KN})/128/7+1)"
        a(f"s_mul_i32 s{sT0}, s{sT3}, {NL}"); a(f"v_min_u32 v42, {NL}-1, v41"); a(f"v_add_u32 v42, s{sT0}, v42")
        a("v_lshlrev_b32 v42, 7, v42"); a(f"v_min_u32 v42, L_code_end-{KN}-4, v42")
        a(f"global_load_dword v50, v42, s[{sPC}:{sPC+1}]")
        a("L_pnocode:")
        a(f"s_mul_i32 s{sT1}, s{sT3}, 206"); a(f"v_min_u32 v41, 205, v41"); a(f"v_add_u32 v41, s{sT1}, v41")
        a("v_mul_u32_u24 v42, 29128, v41"); a("v_lshrrev_b32 v42, 22, v42")
        a("v_mul_u32_u24 v43, 64512, v42"); a("v_lshl_add_u32 v41, v41, 7, v43")
        a("v_cmp_le_u32 vcc, 5, v42")
        a("v_mov_b32 v43, 0"); a(f"v_mov_b32 v44, {5*MAT}")
        a("v_cndmask_b32 v43, v43, v44, vcc"); a("v_add_u32 v41, v41, v43")
        a("s_mul_i32 s3, s2, 464"); a("v_add_u32 v1, s3, v40")
        a("s_add_u32 s3, s3, 464"); a("s_min_u32 s3, s3, 25920")
        a("v_cmp_gt_u32 vcc, s3, v1")
        a("v_lshlrev_b32 v1, 4, v1"); a(f"v_mov_b32 v2, {OOB:#x}")
        a("v_cndmask_b32 v1, v2, v1, vcc")
        a(f"s_mov_b32 s{sMASK}, 0xffff0000")
        a(f"s_mov_b32 s{sT0}, {5*MAT}"); a(f"s_mov_b32 s{sT1}, {10*MAT}")
        a("s_waitcnt lgkmcnt(0)")
        self.mk_srd(sW, 6, 0, 15 * MAT)
        a(f"s_cmp_ge_u32 s{sWV}, 4"); a("s_cbranch_scc1 L_pnow")
        a(f"buffer_load_dword v50, v41, {srd(sW)}, 0 offen")
        a("L_pnow:")
        self.mk_srd(sG, 14, 0, 10 * MAT); self.mk_srd(sX, 4, 0, 2 * 4608000); self.mk_srd(sWO, 8, 0, 41472)
        a(f"v_mul_u32_u24 v42, 7, v40"); a(f"v_add_u32 v42, s{sT3}, v42")
        a("v_mul_u32_u24 v43, 10923, v42"); a("v_lshrrev_b32 v43, 20, v43")
        a("v_mul_u32_u24 v44, 96, v43"); a("v_sub_u32 v44, v42, v44")
        a("v_cmp_gt_u32 vcc, 2400, v42")
        a(f"v_mul_u32_u24 v43, {8*46080}, v43"); a("v_lshrrev_b32 v45, 1, v44"); a("v_mul_u32_u24 v45, 1152, v45"); a("v_add_u32 v43, v43, v45")
        a(f"s_and_b32 s{sT2}, s2, 7"); a(f"s_mul_i32 s{sT2}, s{sT2}, 46080"); a(f"s_sub_u32 s{sT2}, s{sT2}, {32*288}")
        a(f"v_add_u32 v43, s{sT2}, v43"); a("v_and_b32 v44, 1, v44")
        a("v_lshl_add_u32 v45, v44, 8, v43"); a("v_add_u32 v45, 384, v45"); a("v_cndmask_b32 v45, v2, v45, vcc")
        a("v_mul_u32_u24 v44, 896, v44"); a("v_add_u32 v46, v43, v44"); a("v_add_u32 v46, 128, v46"); a("v_cndmask_b32 v46, v2, v46, vcc")
        a(f"s_mul_i32 s{sT2}, s{sT3}, 47"); a("v_min_u32 v47, 46, v40"); a(f"v_add_u32 v47, s{sT2}, v47"); a("v_lshlrev_b32 v47, 7, v47")
        a(f"s_mul_i32 s{sT2}, s{sT3}, 926"); a(f"v_add_u32 v48, s{sT2}, v40"); a("v_min_u32 v49, 413, v40"); a(f"v_add_u32 v49, s{sT2}, v49")
        a("v_lshlrev_b32 v48, 7, v48"); a("v_lshlrev_b32 v49, 7, v49"); a("v_add_u32 v49, 0x10000, v49")
        hx, hw, hd = cfg.get("hx", 2), cfg.get("hw", 1), cfg.get("hd", 3)
        a(f"s_lshr_b32 s{sT2}, s{sWV}, 2"); a(f"s_mul_i32 s{sT2}, s{sT2}, {SLOT}"); a(f"s_add_u32 s{sT2}, s{sT2}, {SLOT}")
        a(f"s_add_u32 s{sT3}, s{sT2}, {2*SLOT}")
        if hd & 1: a("s_waitcnt vmcnt(0)")
        if hw: a(f"buffer_load_dword v50, v41, {srd(sW)}, s{sT2} offen")
        a(f"buffer_load_dword v50, v47, {srd(sWO)}, 0 offen")
        if hd & 2: a("s_waitcnt vmcnt(0)")
        if not cfg.get("noprod"):
            a(f"buffer_load_dwordx4 v[4:7], v1, {srd(sW)}, 0 offen")
            a(f"buffer_load_dwordx4 v[8:11], v1, {srd(sW)}, s{sT0} offen")
            a(f"buffer_load_dwordx4 v[12:15], v1, {srd(sW)}, s{sT1} offen")
        nt = 0
        if hx & 1: a(f"buffer_load_dword v50, v45, {srd(sX)}, 0 offen"); nt += 1
        if hx & 2: a(f"buffer_load_dword v50, v46, {srd(sX)}, 0 offen"); nt += 1
        a(f"s_waitcnt vmcnt({nt})")
        for d in range(4):
            for j, s in enumerate((4, 8, 12)):
                a(f"v_lshlrev_b32 v{24+2*j}, 16, v{s+d}"); a(f"v_and_b32 v{25+2*j}, s{sMASK}, v{s+d}")
            a("v_add_f32 v24, v24, v28"); a("v_add_f32 v25, v25, v29")
            a("v_add_f32 v28, v24, v26"); a("v_add_f32 v29, v25, v27")
            a("v_sub_f32 v24, v24, v26"); a("v_sub_f32 v25, v25, v27")
            a(f"v_cvt_pk_bf16_f32 v{16+d}, v28, v29"); a(f"v_cvt_pk_bf16_f32 v{20+d}, v24, v25")
        if not cfg.get("noprod"):
            a(f"buffer_store_dwordx4 v[16:19], v1, {srd(sG)}, 0 offen sc1")
            a(f"buffer_store_dwordx4 v[20:23], v1, {srd(sG)}, s{sT0} offen sc1")
        a("s_waitcnt vmcnt(0)")
        a("s_barrier")
        a("v_mov_b32 v1, 0"); a("v_mov_b32 v2, 1")
        a(f"s_cmp_lg_u32 s{sWV}, 0"); a("s_cbranch_scc1 L_pnoat")
        a("s_mov_b64 exec, 1")
        if not cfg.get("hnoatom"): a("global_atomic_add v3, v1, v2, s[12:13] sc0 sc1")
        a("s_mov_b64 exec, -1")
        a("s_waitcnt vmcnt(0)")
        a("L_pnoat:")
        if hw: a(f"buffer_load_dword v50, v41, {srd(sW)}, s{sT3} offen")
        a(f"s_cmp_lg_u32 s{sWV}, 0"); a("s_cbranch_scc1 L_pwait")
        a("s_waitcnt vmcnt(0)")
        a("L_ppoll:")
        if cfg.get("hnopoll"): a("s_branch L_pwait")
        if cfg.get("spinmax"): a(f"s_mov_b32 s{sT1}, 0")
        a("L_ppoll2:")
        if cfg.get("spinmax"):
            a(f"s_add_u32 s{sT1}, s{sT1}, 1"); a(f"s_cmp_ge_u32 s{sT1}, {cfg['spinmax']}"); a("s_cbranch_scc1 L_pwait")
        a("global_load_dword v3, v1, s[12:13] sc1")
        a("s_waitcnt vmcnt(0)")
        a(f"v_readfirstlane_b32 s{sT0}, v3"); a(f"s_cmp_lt_u32 s{sT0}, {NPROD}"); a("s_cbranch_scc1 L_ppoll2")
        a("L_pwait:")
        a("s_barrier")
        if cfg.get("hg", 1):
            a(f"buffer_load_dword v50, v48, {srd(sG)}, 0 offen sc1")
            a(f"buffer_load_dword v50, v49, {srd(sG)}, 0 offen sc1")
        a("s_waitcnt vmcnt(0)")
        a("L_exit:")
        a("s_endpgm")

    def build(self):
        a = self.a
        a(f"s_getpc_b64 s[{sPC}:{sPC+1}]")
        a("s_load_dwordx8 s[4:11], s[0:1], 0")
        a("s_load_dwordx4 s[12:15], s[0:1], 32")
        a(f"s_sub_u32 s{sPC}, s{sPC}, 4"); a(f"s_subb_u32 s{sPC+1}, s{sPC+1}, 0")
        a("v_lshrrev_b32 v1, 6, v0")
        a(f"s_sub_u32 s{sGI}, s2, {NHELP}")
        a(f"v_readfirstlane_b32 s{sWV}, v1")
        a("v_and_b32 v0, 63, v0")
        if self.prof:
            a(f"s_memtime s[{sTS}:{sTS+1}]"); a(f"s_memrealtime s[{sTS+14}:{sTS+15}]")
        a(f"s_cmp_lt_u32 s2, {NHELP}"); a("s_cbranch_scc1 L_prod")
        a(f"s_cmp_ge_u32 s2, {NHELP+NMAIN}"); a("s_cbranch_scc1 L_exit")
        a(f"s_cmp_ge_u32 s{sWV}, 4"); a("s_cbranch_scc1 L_loader")
        self.compute_prologue()
        self.producer()
        a(".p2align 6")
        self.loader()
        for w in range(4): self.compute_main(w)
        self.compute_epilogue()
        a("L_code_end:")
        nn = a.fix(verbose=self.cfg.get("verbose", False))
        hdr = open("standalone__autoregressive_conv_wavenet__speech.s.ref").read().split("\n")
        i0 = next(i for i, x in enumerate(hdr) if x.startswith("; @launch"))
        i1 = next(i for i, x in enumerate(hdr) if x.startswith(KN + ":"))
        i2 = next(i for i, x in enumerate(hdr) if x.startswith(".section .rodata"))
        hdr[i0] = f"; @launch grid=({NHELP+NMAIN},1,1) block=(512,1,1) lds={LDS}"
        txt = "\n".join(hdr[:i1 + 1]) + "\n" + a.text() + "\n".join(hdr[i2:]) + "\n"
        return txt, nn


if __name__ == "__main__":
    assert all((i * 3641) >> 20 == i // 288 for i in range(1152))
    assert all((i * 10923) >> 20 == i // 96 for i in range(2400))
    assert all((i * 3641) >> 16 == i // 18 for i in range(640))
    assert all((i * 29128) >> 22 == i // 144 for i in range(1500))
    assert all((i * 6554) >> 16 == i // 10 for i in range(192))
    out = sys.argv[1]
    cfg = {}
    for x in sys.argv[2:]:
        k, v = x.split("=", 1)
        try: v = int(v)
        except ValueError: pass
        cfg[k] = v
    txt, nn = Gen(prof=bool(cfg.get("prof", 0)), cfg=cfg).build()
    open(out, "w").write(txt)
    print(out, "lines", txt.count("\n"), "hazard nops", nn)
```

```python
import sys, struct
from asmlib import Asm

KN = "standalone__autoregressive_conv_wavenet__speech_kernel"
NPROD, NHELP, NMAIN = 56, 56, 200
SLOT, MAT = 18432, 82944
UB1, UB0 = 92160, 111616
UXOR = UB0 ^ UB1
WO, LDS = 121856, 163840
ST, STROW, STBUF, EX = 46080, 304, 9728, 98304
OOB = 0x80000000
STG, STGB = 131072, 12288
LOG2E = 1.4426950408889634


def f2u(f):
    return struct.unpack("<I", struct.pack("<f", f))[0]


def vr(b, n=4):
    return f"v[{b}:{b+n-1}]"


def build_steps():
    S = []
    for c in range(4):
        for s in range(10):
            S.append(dict(kind="full", src="W", soff=(s if s < 5 else s + 5) * MAT + c * SLOT, acc="Q" if s < 5 else "P",
                          kap=c, idx=[10 - (q - s + 5) for q in range(5)]))
    for kind, mat, acc, e0 in [("pair", 0, "Q", 5), ("pair", 2, "Q", 3), ("k16", 4, "Q", 1), ("pair", 10, "P", 0), ("pair", 12, "P", -2), ("k16", 14, "P", -4)]:
        S.append(dict(kind=kind, src="W", soff=mat * MAT, acc=acc, kap=4, idx=[10 - (q + e0) for q in range(5)]))
    for c in range(4):
        for s in range(10):
            S.append(dict(kind="full", src="G", soff=s * MAT + c * SLOT, acc="P" if s < 5 else "Q",
                          kap=5 + c, idx=[(5 if s < 5 else 14) - (q - s % 5) for q in range(5)]))
    for kind, mat, acc, e0 in [("pair", 0, "P", 0), ("pair", 2, "P", -2), ("k16", 4, "P", -4), ("pair", 5, "Q", 0), ("pair", 7, "Q", -2), ("k16", 9, "Q", -4)]:
        S.append(dict(kind=kind, src="G", soff=mat * MAT, acc=acc, kap=9, idx=[(5 if acc == "P" else 14) - (q + e0) for q in range(5)]))
    for n, s in enumerate(S):
        s["n"] = n; s["slot"] = n % 5
        s["keys"] = [(s["kap"], i, s["kind"] == "k16") for i in s["idx"]]
    return S


STEPS = build_steps()

sX, sW, sG, sO, sWO = 16, 20, 24, 28, 32
sWV, sGI, sLW = 36, 37, 38
sCNT, sT0, sT1, sT2, sT3 = 40, 41, 42, 43, 44
sM4, sM5, sHALF, sOFF = 46, 47, 48, 49
sCF, sCG, sCX, sONE, sM2, sTWO = 50, 52, 54, 56, 58, 60
sPC = 62
sMASK, sKU = 65, 66
BIAS = 24
sTS = 68


def srd(r):
    return f"s[{r}:{r+3}]"


vE, vO, vEh, vOh, vUA, vU16, vT, vE16, vO16 = 1, 2, 3, 4, 5, 6, 7, 18, 19
WB = dict(Fa=20, Ga=24, F8=28, G8=32, Fb=36, Gb=40)
UBUF = [44 + 4 * i for i in range(7)]
COL = dict(Fa=0, Ga=1, Fb=2, Gb=3)


def acc(name, q, which):
    t = COL[name] * 5 + q if name in COL else dict(F8=20, G8=21, X=22)[name]
    return 72 + 8 * t + (0 if which == "P" else 4)


class Gen:
    def __init__(self, prof=False, cfg=None):
        self.a = Asm(); self.prof = prof; self.cfg = cfg or {}
        self.nst = 0

    def stamp(self, i, real=False):
        if self.prof:
            self.a(f"s_memtime s[96:97]" if not real else f"s_memrealtime s[96:97]")
            self.a("s_waitcnt lgkmcnt(0)")
            self.a(f"s_mov_b32 s{sTS+i}, s96")

    def dump_stamps(self, off):
        if not self.prof: return
        a = self.a
        a(f"s_add_u32 s{sT0}, s14, 0x100000"); a(f"s_addc_u32 s{sT1}, s15, 0")
        a(f"s_mov_b32 s{sG}, s{sT0}"); a(f"s_mov_b32 s{sG+1}, s{sT1}"); a(f"s_mov_b32 s{sG+2}, 0x100000"); a(f"s_mov_b32 s{sG+3}, 0x20000")
        a(f"s_lshl_b32 s{sT0}, s2, 7"); a(f"s_add_u32 s{sT0}, s{sT0}, {off}")
        for i in range(16): a(f"v_mov_b32 v{8+i}, s{sTS+i}")
        a(f"v_mov_b32 v1, s{sT0}")
        a("s_mov_b64 exec, 1")
        for i in range(4): a(f"buffer_store_dwordx4 {vr(8+4*i)}, v1, {srd(sG)}, 0 offen offset:{16*i}")
        a("s_waitcnt vmcnt(0)")
        if self.cfg.get("dbg"):
            a("v_mov_b32 v1, 0")
            if off:
                a(f"v_mov_b32 v2, s{sTS+15}"); a(f"v_not_b32 v3, s{sTS+14}")
                a("global_atomic_umax v1, v2, s[12:13] offset:20 sc1"); a("global_atomic_umax v1, v3, s[12:13] offset:24 sc1")
            a("s_cmp_lg_u32 s2, 156"); a(f"s_cbranch_scc1 L_nodbg{off}")
            for j, m in enumerate((6, 10, 1, 3, 5, 15) if off else (1, 2, 3, 4)):
                a(f"s_sub_u32 s{sT0}, s{sTS+m}, s{sTS+(14 if m == 15 else 0)}"); a(f"v_mov_b32 v2, s{sT0}")
                a(f"global_store_dword v1, v2, s[12:13] offset:{(32 if off else 4)+4*j}")
            a(f"L_nodbg{off}:")
            a("s_waitcnt vmcnt(0)")

    def wread(self, w, name, st):
        T = dict(Fa=2 * w, Fb=2 * w + 1, Ga=9 + 2 * w, Gb=10 + 2 * w, F8=8, G8=17)[name]
        hi = st["slot"] >= 3
        base = (vO if T & 1 else vE) + (2 if hi else 0)
        off = st["slot"] * SLOT - (3 * SLOT if hi else 0) + 32 * T
        b = WB[name]
        if st["kind"] == "k16":
            assert st["slot"] <= 3
            base = vO16 if T & 1 else vE16
            off = st["slot"] * SLOT + 32 * T
        L = [f"ds_read_b64_tr_b16 {vr(b,2)}, v{base} offset:{off}"]
        if st["kind"] != "k16":
            L.append(f"ds_read_b64_tr_b16 {vr(b+2,2)}, v{base} offset:{off+2304}")
        return [(x, ("W", name, st["n"])) for x in L]

    def uread(self, key, buf):
        kap, idx, k16 = key
        if k16:
            ub = UB1 if kap & 1 else UB0
            return (f"ds_read_b64 {vr(UBUF[buf],2)}, v{vU16} offset:{ub-UB1+idx*1024}", ("U", key))
        return (f"ds_read_b128 {vr(UBUF[buf])}, v{vUA} offset:{idx*1024}", ("U", key))

    def emit_step(self, w, st, nxt, S, force=None, extra_gb=None, out=None):
        e = out.append
        Q = S["queue"]; umap = S["umap"]
        k16 = st["kind"] == "k16"
        n2 = 2 if k16 else 4
        opn = "v_mfma_f32_16x16x16_bf16" if k16 else "v_mfma_f32_16x16x32_bf16"

        def waitfor(keys):
            pos = -1
            for i, k in enumerate(Q):
                if k in keys: pos = i
            if pos < 0: return None
            return len(Q) - 1 - pos, pos

        def dowait(keys):
            r = waitfor(keys)
            if r is None: return
            e(f"s_waitcnt lgkmcnt({min(15, r[0])})")
            del Q[:r[1] + 1]

        def run(ms, loads, first_cap=2):
            loads = list(loads)
            for i, (an, q, wn) in enumerate(ms):
                uk = st["keys"][q]
                dowait({("W", wn, st["n"]), ("U", uk)})
                d = acc(an, q, st["acc"])
                e(f"{opn} {vr(d)}, {vr(WB[wn], n2)}, {vr(UBUF[umap[uk]], n2)}, {vr(d)}")
                cap = 2
                if i + 1 < len(ms):
                    an2, q2, wn2 = ms[i + 1]
                    if waitfor({("W", wn2, st["n"]), ("U", st["keys"][q2])}) is not None: cap -= 1
                else:
                    cap -= 1
                j = 0
                while cap > 0 and j < len(loads):
                    if loads[j][2] <= i:
                        t, k, _ = loads.pop(j)
                        e(t)
                        if k is not None: Q.append(k)
                        cap -= 1
                    else:
                        j += 1
            for t, k, _ in loads:
                e(t)
                if k is not None: Q.append(k)

        ga = [(c, q, c) for q in (4, 3, 2, 1, 0) for c in ("Fa", "Ga")]
        gs = [("F8", w, "F8"), ("G8", w, "G8")]
        if w == 0: gs.append(("X", 4, "F8"))
        if w == 1: gs.append(("X", 4, "G8"))
        gb = [(c, q, c) for q in (4, 3, 2, 1, 0) for c in ("Fb", "Gb")]
        la = [(t, k, 0) for nm in ("F8", "G8") for t, k in self.wread(w, nm, st)]
        la += [(t, k, 2) for nm in ("Fb", "Gb") for t, k in self.wread(w, nm, st)]
        run(ga + gs, la)
        dowait({("W", "Fb", st["n"]), ("W", "Gb", st["n"])})
        assert not Q
        e("s_barrier")
        lb = []
        if nxt is not None:
            if nxt["kap"] != st["kap"]:
                e(f"v_xor_b32 v{vUA}, {UXOR:#x}, v{vUA}")
            cur = st["keys"]
            keep = set(cur) | set(nxt["keys"])
            for k in list(umap):
                if k not in keep: del umap[k]
            freeat = {b: 0 for b in range(7) if b not in umap.values()}
            for q in range(5):
                if cur[q] not in nxt["keys"]:
                    freeat[umap[cur[q]]] = 2 * (4 - q) + 1
            newm = {}
            ul = []
            for q in (4, 3, 2, 1, 0):
                k = nxt["keys"][q]
                if k in umap: continue
                if force is not None:
                    b = force(k)
                    assert b in freeat, (st["n"], k, b, umap, freeat)
                else:
                    b = min(freeat, key=lambda x: (freeat[x], x))
                t, kk = self.uread(k, b)
                ul.append((2 * (4 - q), t, kk, freeat.pop(b)))
                newm[k] = b
            fa = self.wread(w, "Fa", nxt); gaa = self.wread(w, "Ga", nxt)
            allr = [(0, t, k, 0) for t, k in fa] + [(1, t, k, 0) for t, k in gaa] + ul
            allr.sort(key=lambda x: x[0])
            lb = [(t, k, g) for _, t, k, g in allr]
        if extra_gb:
            lb += [(t, None, 6) for t in extra_gb]
        run(gb, lb)
        if nxt is not None:
            for k in list(umap):
                if k not in nxt["keys"]: del umap[k]
            umap.update(newm)

    @staticmethod
    def shift_state(S, dn, dk):
        q = []
        for k in S["queue"]:
            if k[0] == "W": q.append(("W", k[1], k[2] + dn))
            else: q.append(("U", (k[1][0] + dk, k[1][1], k[1][2])))
        return dict(queue=q, umap={(k[0] + dk, k[1], k[2]): b for k, b in S["umap"].items()})

    def al8(self, L):
        m = self.cfg.get("al8", 0)
        if not m: return L
        out = []; par = 0
        for x in L:
            sz = 4 if x.startswith("s_") else 8
            if sz == 8 and par != (m - 1) * 4:
                out.append("s_nop 0"); par ^= 4
            out.append(x); par = (par + sz) % 8
        if par: out.append("s_nop 0")
        return out

    def phase(self, w, n0, force, S0, hooks):
        a = self.a
        lab = f"L_c{w}_{n0}"
        S = dict(queue=[], umap=dict(S0))
        tmp = []
        for n in range(n0, n0 + 10):
            self.emit_step(w, STEPS[n], STEPS[n + 1], S, force, None, tmp)
        Send = self.shift_state(S, -10, -1)
        assert Send["umap"] == S0, (Send, S0)
        S = dict(queue=list(Send["queue"]), umap=dict(Send["umap"]))
        body = []
        for n in range(n0, n0 + 10):
            ex = [f"s_add_u32 s{sCNT}, s{sCNT}, 1", f"s_cmp_lt_u32 s{sCNT}, {3 if hooks else 4}"] if n == n0 + 9 else None
            self.emit_step(w, STEPS[n], STEPS[n + 1], S, force, ex, body)
        chk = self.shift_state(S, -10, -1)
        assert chk == Send
        a(f"s_mov_b32 s{sCNT}, 0")
        a(".p2align 3")
        a(lab + ":")
        for x in self.al8(body): a(x)
        if hooks:
            a(f"s_cbranch_scc1 {lab}_hook")
            a(f"s_cmp_lt_u32 s{sCNT}, 4")
        a(f"s_cbranch_scc1 {lab}")
        S = self.shift_state(S, 30, 3)
        return S, lab

    def compute_main(self, w):
        a = self.a
        a(".p2align 6")
        a(f"L_cw{w}:")
        fA = lambda k: (k[1] - 1) % 7
        fB = lambda k: (k[1] - 1) % 6
        st0 = STEPS[0]
        S0 = {k: fA(k) for k in st0["keys"]}
        a("s_barrier")
        self.stamp(1)
        for nm in ("Fa", "Ga"):
            for t, _ in self.wread(w, nm, st0): a(t)
        for q in (4, 3, 2, 1, 0):
            a(self.uread(st0["keys"][q], S0[st0["keys"][q]])[0])
        a("s_waitcnt lgkmcnt(0)")
        S, labA = self.phase(w, 0, fA, S0, False)
        out = []
        for n in range(40, 46):
            self.emit_step(w, STEPS[n], STEPS[n + 1], S, fB if n == 45 else None, None, out)
        if self.cfg.get("al8"): a("s_nop 0")
        for x in self.al8(out): a(x)
        self.stamp(2)
        tiles = [COL["Fa"] * 5 + q for q in (4, 3, 2, 1, 0)] + [COL["Ga"] * 5 + q for q in (4, 3, 2, 1, 0)] + [20, 21] + ([22] if w < 2 else [])
        tiles += [COL[c] * 5 + q for q in (4, 3, 2, 1, 0) for c in ("Fb", "Gb")]
        prs = [(72 + 8 * t + h, 76 + 8 * t + h) for t in tiles for h in (0, 2)]
        for i in range(0, len(prs), 4):
            for p, q in prs[i:i + 4]: a(f"v_pk_add_f32 {vr(p,2)}, {vr(p,2)}, {vr(q,2)} neg_lo:[0,1] neg_hi:[0,1]")
            for p, q in prs[i:i + 4]: a(f"v_pk_fma_f32 {vr(q,2)}, {vr(q,2)}, s[{sTWO}:{sTWO+1}], {vr(p,2)}")
        a("s_waitcnt lgkmcnt(0)")
        S0 = {k: fB(k) for k in STEPS[46]["keys"]}
        assert S["umap"] == S0
        S, labB = self.phase(w, 46, fB, S0, False)
        out = []
        for n in range(86, 92):
            self.emit_step(w, STEPS[n], STEPS[n + 1] if n < 91 else None, S, None, None, out)
        if self.cfg.get("al8"): a("s_nop 0")
        for x in self.al8(out): a(x)
        a("s_branch L_cepi")

    def epi_addr(self):
        a = self.a
        a("v_lshlrev_b32 v13, 3, v0"); a("v_lshlrev_b32 v14, 4, v0")
        a(f"s_lshl_b32 s{sT0}, s{sWV}, 10"); a(f"v_add_u32 v12, s{sT0}, v14")
        a(f"s_lshr_b32 s{sT1}, s{sWV}, 1"); a(f"s_and_b32 s{sT2}, s{sWV}, 1")
        a(f"s_lshl_b32 s{sT0}, s{sT1}, 10"); a(f"s_lshl_b32 s{sT3}, s{sT2}, 3"); a(f"s_add_u32 s{sT0}, s{sT0}, s{sT3}")
        a(f"s_add_u32 s{sT0}, s{sT0}, {EX}"); a(f"v_add_u32 v15, s{sT0}, v14")
        a(f"s_mul_i32 s{sT0}, s{sT1}, 4608"); a(f"s_lshl_b32 s{sT3}, s{sT2}, 2"); a(f"s_add_u32 s{sT0}, s{sT0}, s{sT3}")
        a(f"s_add_u32 s{sT0}, s{sT0}, {4096+8*4608}"); a(f"v_add_u32 v16, s{sT0}, v13")
        a(f"s_lshl_b32 s{sT0}, s{sWV}, 11"); a(f"s_add_u32 s{sT0}, s{sT0}, {EX}"); a(f"v_add_u32 v14, s{sT0}, v14")
        a(f"s_mul_i32 s{sT0}, s{sWV}, 9216"); a(f"s_add_u32 s{sT0}, s{sT0}, 4096"); a(f"v_add_u32 v13, s{sT0}, v13")

    @staticmethod
    def bfly_ops(prs):
        L = [(p + h, q + h, c) for p, q, c in prs for h in (0, 2)]
        return ([f"v_pk_mul_f32 {vr(q,2)}, {vr(q,2)}, s[{c}:{c+1}]" for p, q, c in L],
                [f"v_pk_fma_f32 {vr(p,2)}, {vr(p,2)}, s[{c}:{c+1}], {vr(q,2)}" for p, q, c in L],
                [f"v_pk_fma_f32 {vr(q,2)}, {vr(q,2)}, s[{sM2}:{sM2+1}], {vr(p,2)}" for p, q, c in L])

    def compute_epilogue(self):
        a = self.a; cfg = self.cfg
        a(".p2align 6")
        a("L_cepi:")
        self.stamp(3)
        if cfg.get("cprio"): a(f"s_setprio {cfg['cprio']}")
        a("v_mov_b32 v32, 0.5"); a("v_mov_b32 v33, 0.5")
        a(f"s_cmp_ge_u32 s{sWV}, 2"); a("s_cbranch_scc1 L_nox")
        for L in self.bfly_ops([(acc("X", 0, "P"), acc("X", 0, "Q"), sCX), ]):
            for x in L: a(x)
        a(f"ds_write_b128 v14, {vr(acc('X',0,'P'))}")
        a(f"ds_write_b128 v14, {vr(acc('X',0,'Q'))} offset:1024")
        a("L_nox:")
        B = lambda q: sum(self.bfly_ops([(acc(c, q, "P"), acc(c, q, "Q"), sCF if c[0] == "F" else sCG) for c in ("Fa", "Ga", "Fb", "Gb")]), [])
        pr = lambda f, g, q, wh: [(acc(f, q, wh) + h, acc(g, q, wh) + h) for h in (0, 2)]
        EF = lambda P: [f"v_exp_f32_e64 v{f+i}, v{f+i} clamp" for f, g in P for i in (0, 1)]
        EG = lambda P: [f"v_exp_f32 v{g+i}, v{g+i}" for f, g in P for i in (0, 1)]
        RC = lambda P: [f"v_rcp_f32 v{g+i}, v{g+i}" for f, g in P for i in (0, 1)]
        UP = lambda P: [f"v_pk_fma_f32 {vr(f,2)}, {vr(f,2)}, s[{sKU}:{sKU+1}], v[32:33]" for f, g in P]
        US = lambda P: [f"v_fma_f32 v{f+i}, v{f+i}, s{sKU}, 0.5" for f, g in P for i in (0, 1)]
        DP = lambda P: [f"v_pk_fma_f32 {vr(g,2)}, {vr(f,2)}, {vr(g,2)}, {vr(f,2)}" for f, g in P]
        DS = lambda P: [f"v_fma_f32 v{g+i}, v{f+i}, v{g+i}, v{f+i}" for f, g in P for i in (0, 1)]
        ZP = lambda P: [f"v_pk_fma_f32 {vr(f,2)}, {vr(f,2)}, {vr(g,2)}, {vr(g,2)} neg_lo:[1,0,0] neg_hi:[1,0,0]" for f, g in P]
        ZS = lambda P: [f"v_fma_f32 v{f+i}, -v{f+i}, v{g+i}, v{g+i}" for f, g in P for i in (0, 1)]
        CV = lambda P, o: [f"v_cvt_pk_bf16_f32 v{o+j}, v{f}, v{f+1}" for j, (f, g) in enumerate(P)]
        S0, S1 = pr("F8", "G8", 0, "P"), pr("F8", "G8", 0, "Q"); S = S0 + S1
        L = sum(self.bfly_ops([(acc("F8", 0, "P"), acc("F8", 0, "Q"), sCF), (acc("G8", 0, "P"), acc("G8", 0, "Q"), sCG)]), [])
        L += EF(S) + UP(S) + EG(S) + DP(S) + RC(S) + ZP(S) + CV(S0, 28) + ["ds_write_b64 v13, v[28:29]"] + CV(S1, 30) + ["ds_write_b64 v13, v[30:31] offset:4608"]
        for x in L: a(x)
        nb, nu, nd, nz = cfg.get("nb", 6), cfg.get("nu", 8), cfg.get("nd", 0), cfg.get("nz", 0)
        for q in range(5):
            Y = [pr("Fa", "Ga", q, wh) + pr("Fb", "Gb", q, wh) for wh in "PQ"]
            P = Y[0] + Y[1]
            L = B(q) + EF(P)
            bar = ["s_waitcnt lgkmcnt(0)", "s_barrier"] if q else []
            if q == 1:
                bar += ["ds_read_b64 v[44:45], v15", "ds_read_b64 v[46:47], v15 offset:2048"]
            L = L[:24 + nb] + bar + L[24 + nb:]
            L += UP(P) if q == 0 else UP(P[:nu]) + US(P[nu:])
            X = []
            if q == 1:
                X = [(44, 46)]
                L += EG(P[:2]) + ["s_waitcnt lgkmcnt(0)"] + EF(X) + EG(P[2:] + X) + US(X)
            else: L += EG(P)
            PX = X + P
            L += DP(P) if q == 0 else DS(PX[:len(PX) - nd]) + DP(PX[len(PX) - nd:])
            L += RC(PX)
            if X: L += ZS(X) + ZS(P[:nz]) + CV(X, 36) + ["ds_write_b32 v16, v36"] + ZP(P[nz:])
            else: L += ZP(P) if q == 0 else ZS(P[:nz]) + ZP(P[nz:])
            for y in (0, 1): L += CV(Y[y], 20 + 4 * y) + [f"ds_write_b128 v12, {vr(20+4*y)} offset:{(2*q+y)*4608}"]
            for x in L: a(x)
        a("s_waitcnt lgkmcnt(0)")
        a("s_barrier")
        self.stamp(4)
        if self.prof:
            a(f"s_cmp_lg_u32 s{sWV}, 0"); a("s_cbranch_scc1 L_cend")
            self.stamp(15, True)
            self.dump_stamps(0)
            a("L_cend:")
        a("s_endpgm")

    def compute_prologue(self):
        a = self.a
        a("L_compute:")
        a("v_lshrrev_b32 v12, 4, v0")
        a("v_bfe_u32 v13, v0, 2, 2")
        a("v_lshl_add_u32 v17, v12, 2, v13")
        a("v_lshl_add_u32 v13, v12, 3, v13")
        a("v_mul_u32_u24 v13, 576, v13"); a("v_mul_u32_u24 v17, 576, v17")
        a("v_and_b32 v14, 3, v0"); a("v_lshl_add_u32 v13, v14, 3, v13"); a("v_lshl_add_u32 v17, v14, 3, v17")
        a("v_and_b32 v14, 1, v12"); a("v_lshlrev_b32 v15, 5, v14")
        a(f"v_add_u32 v{vE}, v13, v15"); a(f"v_sub_u32 v{vO}, v13, v15")
        a(f"v_add_u32 v{vEh}, {3*SLOT}, v{vE}"); a(f"v_add_u32 v{vOh}, {3*SLOT}, v{vO}")
        a("v_and_b32 v15, 32, v0")
        a(f"v_add_u32 v{vE16}, v17, v15"); a(f"v_sub_u32 v{vO16}, v17, v15")
        a("v_and_b32 v13, 15, v0")
        a("v_lshlrev_b32 v15, 1, v12"); a("v_xor_b32 v15, v15, v13")
        a("v_lshl_add_u32 v15, v12, 4, v15"); a("v_lshlrev_b32 v15, 4, v15")
        a(f"v_add_u32 v{vUA}, {UB0}, v15")
        a("v_lshrrev_b32 v12, 1, v12")
        a("v_lshlrev_b32 v15, 1, v12"); a("v_xor_b32 v15, v15, v13")
        a("v_lshl_add_u32 v15, v12, 4, v15"); a("v_lshlrev_b32 v15, 4, v15")
        a("v_lshl_add_u32 v15, v14, 3, v15")
        a(f"v_add_u32 v{vU16}, {UB1}, v15")
        cF, cG = f2u(-LOG2E), f2u(-LOG2E / 2)
        for r, v in ((sCF, cF), (sCG, cG), (sONE, f2u(1.0)), (sM2, f2u(-2.0)), (sTWO, f2u(2.0))):
            a(f"s_mov_b32 s{r}, {v:#x}"); a(f"s_mov_b32 s{r+1}, {v:#x}")
        a(f"s_cmp_eq_u32 s{sWV}, 0"); a(f"s_cselect_b32 s{sCX}, s{sCF}, s{sCG}"); a(f"s_mov_b32 s{sCX+1}, s{sCX}")
        f32 = lambda v: struct.unpack("<f", struct.pack("<f", v))[0]
        hb = f32(BIAS / LOG2E / 2)
        ku = f2u(0.5 * 2.0 ** (2 * hb * f32(LOG2E)))
        a(f"s_mov_b32 s{sKU}, {ku:#x}"); a(f"s_mov_b32 s{sKU+1}, {ku:#x}")
        a(f"s_mov_b32 s46, {f2u(hb):#x}"); a(f"s_mov_b32 s47, {f2u(-hb):#x}")
        a(f"s_cselect_b32 s48, s46, 0"); a(f"s_cselect_b32 s49, s47, 0")
        self.stamp(7)
        self.epi_addr()
        for r in range(72, 256):
            t, h = (r - 72) // 8, (r - 72) // 4 & 1
            a(f"v_mov_b32 v{r}, {'s%d' % (48 + h) if t == 22 else 's%d' % (46 + h) if t == 20 or (t < 20 and t // 5 in (COL['Fa'], COL['Fb'])) else 0}")
        for x in self.xaddr(sWV, 36, [(1, 0, 30), (3, 0, 31), (1, 1, 8), (2, 1, 9), (3, 1, 10), (4, 1, 11)]): a(x)
        a("v_lshrrev_b32 v36, 2, v0"); a("v_and_b32 v37, 3, v0")
        a("v_lshlrev_b32 v38, 1, v37"); a("v_xor_b32 v36, v36, v38"); a("v_lshl_add_u32 v36, v37, 4, v36"); a("v_lshlrev_b32 v36, 4, v36")
        a(f"s_lshl_b32 s{sT0}, s{sWV}, 10"); a(f"s_sub_u32 s{sT0}, {UB0+9*1024}, s{sT0}"); a(f"v_add_u32 v34, s{sT0}, v36")
        a(f"s_lshl_b32 s{sT0}, s{sWV}, 2"); a(f"s_add_u32 s{sT0}, s{sT0}, {UB0}"); a(f"v_add_u32 v35, s{sT0}, v36")
        a(f"s_mov_b32 s{sMASK}, 0xffff0000")
        self.stamp(8)
        if self.prof: a("s_waitcnt lgkmcnt(0)")
        a("s_barrier")
        a("ds_read_b32 v28, v9 offset:1280"); a("ds_read_b32 v29, v11 offset:2560")
        a("ds_read_b32 v32, v8 offset:640"); a("ds_read_b32 v33, v10 offset:1920")
        a("ds_read_b128 v[20:23], v30 offset:640"); a("ds_read_b128 v[24:27], v31 offset:1920")
        U = lambda t, p, q: [f"v_lshlrev_b32 v{t}, 16, v{p}", f"v_and_b32 v{t+1}, s{sMASK}, v{p}", f"v_lshlrev_b32 v{t+2}, 16, v{q}", f"v_and_b32 v{t+3}, s{sMASK}, v{q}"]
        S = lambda t: [f"v_sub_f32 v{t}, v{t}, v{t+2}", f"v_sub_f32 v{t+1}, v{t+1}, v{t+3}"]
        a("s_waitcnt lgkmcnt(4)")
        for x in U(40, 28, 29): a(x)
        a("s_waitcnt lgkmcnt(2)")
        for x in U(64, 32, 33) + S(40) + S(64): a(x)
        a("v_cvt_pk_bf16_f32 v40, v40, v41"); a("v_cvt_pk_bf16_f32 v41, v64, v65")
        a("s_waitcnt lgkmcnt(0)")
        for d in range(4):
            for x in U(44 + 4 * d, 20 + d, 24 + d): a(x)
            if d == 0: a("ds_write2st64_b32 v35, v40, v41 offset0:20 offset1:40")
        for d in range(4):
            for x in S(44 + 4 * d): a(x)
        for d in range(4): a(f"v_cvt_pk_bf16_f32 v{60+d}, v{44+4*d}, v{45+4*d}")
        a("ds_write_b128 v34, v[60:63]")
        a("s_waitcnt lgkmcnt(0)")
        for w in (1, 2, 3):
            a(f"s_cmp_eq_u32 s{sWV}, {w}"); a(f"s_cbranch_scc1 L_cw{w}")
        a("s_branch L_cw0")

    def x_srd(self):
        a = self.a
        a(f"s_cmp_ge_u32 s{sGI}, 100"); a(f"s_cselect_b32 s{sT0}, 100, 0"); a(f"s_cselect_b32 s{sT1}, 4608000, 0")
        a(f"s_sub_u32 s{sT0}, s{sGI}, s{sT0}"); a(f"s_mul_i32 s{sT0}, s{sT0}, 160"); a(f"s_sub_u32 s{sT0}, s{sT0}, 30")
        a(f"s_add_u32 s{sX}, s4, s{sT1}"); a(f"s_addc_u32 s{sX+1}, s5, 0"); a(f"s_mov_b32 s{sX+2}, 4608000"); a(f"s_mov_b32 s{sX+3}, 0x20000")

    def xaddr(self, sw, t, regs):
        L = [f"v_lshrrev_b32 v{t}, 3, v0", f"v_mul_u32_u24 v{t+1}, 1280, v{t}", f"v_and_b32 v{t+2}, 7, v0", f"v_lshl_add_u32 v{t+1}, v{t+2}, 4, v{t+1}",
             f"v_and_b32 v{t}, 1, v{t}", f"v_lshlrev_b32 v{t}, 7, v{t}", f"v_xor_b32 v{t+2}, 0x80, v{t}"]
        if any(g0 for _, g0, _ in regs):
            L += [f"s_lshl_b32 s{sT0}, s{sw}, 2", f"s_add_u32 s{sT0}, s{sT0}, {STG}", f"v_add_u32 v{t+3}, s{sT0}, v{t+1}"]
            for i, g0, r in regs:
                if g0: L.append(f"{'v_sub_u32' if i & 1 else 'v_add_u32'} v{r}, v{t+3}, v{t if i in (1, 4) else t+2}")
        L += [f"s_lshl_b32 s{sT0}, s{sw}, 7", f"s_add_u32 s{sT0}, s{sT0}, {STG+128}", f"v_add_u32 v{t+3}, s{sT0}, v{t+1}",
              f"s_and_b32 s{sT0}, s{sw}, 1", f"s_lshl_b32 s{sT0}, s{sT0}, 1", f"s_sub_u32 s{sT0}, s{sT0}, 1",
              f"v_mul_i32_i24 v{t}, s{sT0}, v{t}", f"v_mul_i32_i24 v{t+2}, s{sT0}, v{t+2}"]
        for i, g0, r in regs:
            if not g0: L.append(f"{'v_sub_u32' if i & 1 else 'v_add_u32'} v{r}, v{t+3}, v{t if i in (0, 1, 4) else t+2}")
        return L

    def mk_srd(self, r, p, off, n):
        a = self.a
        if off == 0:
            a(f"s_mov_b32 s{r}, s{p}"); a(f"s_mov_b32 s{r+1}, s{p+1}")
        else:
            a(f"s_add_u32 s{r}, s{p}, {off}"); a(f"s_addc_u32 s{r+1}, s{p+1}, 0")
        a(f"s_mov_b32 s{r+2}, {n}"); a(f"s_mov_b32 s{r+3}, 0x20000")

    def loader(self):
        a = self.a; cfg = self.cfg
        VF, XG = 1, 16
        XAr = lambda i, g0: (10 + i - 1) if g0 else 6 + (0, 1, 2, 3, 0)[i]
        UWR, UWRH, UW0, UW0H = 25, 26, 27, 28
        X = lambda c, i: 32 + 20 * c + 4 * i
        X0 = lambda c, i: 132 + 4 * c + (i - 1)
        TU, TA, O = 152, 170, 186
        sP, sXM = 90, 95
        cur = [-1]
        Q = []
        D = []
        self.nlab = 0
        st8 = dict(m0=None, soff=None)

        def wait(tag):
            pos = max([i for i, (t, o) in enumerate(Q) if t == tag], default=-1)
            if pos < 0: return
            n = sum(1 for t, o in Q[pos + 1:] if not o)
            a(f"s_waitcnt vmcnt({n})")
            del Q[:pos + 1]

        def dwait(pred):
            pos = max([i for i, t in enumerate(D) if pred(t)], default=-1)
            if pos < 0: return
            a(f"s_waitcnt lgkmcnt({len(D)-1-pos})")
            for t in D[:pos + 1]:
                if t[0] == "xr": xdone[t[1]] = cur[0]
            del D[:pos + 1]
        xdone = {}

        def skip_unless(cond_reg, val, op="eq"):
            self.nlab += 1
            a(f"s_cmp_{op}_u32 s{cond_reg}, {val}"); a(f"s_cbranch_scc0 L_sk{self.nlab}")
            return f"L_sk{self.nlab}:"

        def xdma(c, j, lw=None):
            if c >= 2: assert xdone[c - 2] < cur[0] and not any(t[0] == "xr" and t[1] == c - 2 for t in D)
            a(f"s_add_u32 m0, s{sXM}, {(c&1)*STGB+1024*j}"); st8["m0"] = None
            if c and st8["soff"] != ("x", c): a(f"s_movk_i32 s{sOFF}, {64*c}"); st8["soff"] = ("x", c)
            if cfg.get("nox"): return
            if lw is not None: l = skip_unless(sLW, lw)
            a(f"buffer_load_dwordx4 v{XG+j}, {srd(sX)}, {'s%d' % sOFF if c else 0} offen lds")
            Q.append((("x", c), lw is not None))
            if lw is not None: a(l)

        def xread(c, i, g0):
            if g0: a(f"ds_read_b32 v{X0(c,i)}, v{XAr(i,1)} offset:{(c&1)*STGB+640*i}")
            else: a(f"ds_read_b128 {vr(X(c,i))}, v{XAr(i,0)} offset:{(c&1)*STGB+640*i}")
            D.append(("xr", c, i, g0))
        XRD = [(2, 0), (4, 0), (0, 0), (2, 1), (4, 1), (1, 1), (3, 1), (1, 0), (3, 0)]
        xw = lambda g0, *ii: (lambda: dwait(lambda t: t[0] == "xr" and t[3] == g0 and t[2] in ii))

        def piece(n, i):
            st = STEPS[n]; kind = st["kind"]
            d = srd(sW) if st["src"] == "W" else srd(sG)
            sc = "" if st["src"] == "W" else " sc1"
            m0 = (n, i == 4)
            if st8["m0"] != m0:
                a(f"s_add_u32 m0, s{sM5 if i == 4 else sM4}, {st['slot']*SLOT}"); st8["m0"] = m0
            if kind == "pair":
                a(f"s_add_u32 s{sOFF}, s{sP+i}, {st['soff']}"); st8["soff"] = None
            elif st8["soff"] != n:
                a(f"s_mov_b32 s{sOFF}, {st['soff'] + (73728 if kind == 'k16' else 0)}"); st8["soff"] = n
            l = None
            if i == 4: l = skip_unless(sHALF, n & 1)
            elif kind == "k16": l = skip_unless(sLW, 2 if i == 0 else 1, "le")
            off = f" offset:{1024*i}" if 0 < i < 4 else ""
            a(f"buffer_load_dwordx4 v{VF+i}, {d}, s{sOFF} offen{off}{sc} lds")
            Q.append((("w", n), l is not None))
            if l: a(l)
            assert len(Q) <= 60
        pieces = [(n, i) for n in range(92) for i in range(4 if STEPS[n]["kind"] == "k16" else 5)]

        def frag_job(srcs, outs, nd=4, ob=0):
            U = []; A = []; C = []
            for d in range(nd):
                tu = TU + 6 * (d % 3); ta = TA + 8 * (d % 2)
                u = []
                for k, r in enumerate(srcs):
                    u += [f"v_lshlrev_b32 v{tu+2*k}, 16, v{r+d}", f"v_and_b32 v{tu+2*k+1}, s{sMASK}, v{r+d}"]
                ad = []; cv = []
                for k, (op, i, j, _) in enumerate(outs):
                    ad += [f"{op} v{ta+2*k+h}, v{tu+2*i+h}, v{tu+2*j+h}" for h in (0, 1)]
                    cv.append(f"v_cvt_pk_bf16_f32 v{O+ob+nd*k+d}, v{ta+2*k}, v{ta+2*k+1}")
                U.append(u); A.append(ad); C.append(cv)
            L = list(U[0])
            for d in range(nd):
                if d + 1 < nd: L += U[d + 1]
                L += A[d]
                if d: L += C[d - 1]
            L += C[nd - 1]
            return L, [wt(O + ob + nd * k) for k, (_, _, _, wt) in enumerate(outs)]
        SUB, ADD = "v_sub_f32", "v_add_f32"
        first = lambda k: min(s["n"] for s in STEPS if s["kap"] == k)
        last = lambda k: max(s["n"] for s in STEPS if s["kap"] == k)

        def mid(L, x):
            return L[:len(L) // 2] + x + L[len(L) // 2:]

        def jobs_of(kap):
            c = kap % 5; ub = (UB1 if kap & 1 else UB0) - UB1
            f = first(kap); l = f - 1
            e0 = first(kap - 1) if kap else -1
            half = c == 4
            wr, w0 = (UWRH, UW0H) if half else (UWR, UW0)
            W4 = lambda idx, dl: (lambda o: (f"ds_write_b128 v{wr}, {vr(o)} offset:{ub+idx*1024}", dl, e0))
            W2 = lambda i0, i1: (f"ds_write2st64_b32 v{w0}, v{O+16}, v{O+17} offset0:{(ub+i0*1024)//256} offset1:{(ub+i1*1024)//256}", l, e0)
            no = lambda o: None
            if kap == 0:
                La, Wa = frag_job([X(c, 2), X(c, 4)], [(SUB, 0, 1, W4(5, l))])
                Lb, Wb = frag_job([X(c, 0), X(c, 2)], [(SUB, 0, 1, W4(15, f + 5))], 4, 4)
                return [[xw(0, 2, 4)] + La + Wa, [xw(0, 0)] + Lb + Wb]
            if kap < 5:
                d10, d15 = (l, l) if half else (f, f + 5)
                La, Wa = frag_job([X(c, 0), X(c, 2), X(c, 4)], [(SUB, 1, 2, W4(5, l)), (SUB, 0, 1, W4(15, d15))])
                Lg, _ = frag_job([X0(c, 2), X0(c, 4), X0(c, 1), X0(c, 3)], [(SUB, 0, 1, no), (SUB, 2, 3, no)], 1, 16)
                Lb, Wb = frag_job([X(c, 1), X(c, 3)], [(SUB, 0, 1, W4(10, d10))], 4, 8)
                return [[xw(0, 0, 2, 4)] + La + Wa, [xw(1, 1, 2, 3, 4)] + Lg + [W2(5, 10)], [xw(0, 1, 3)] + Lb + Wb]
            d10, d14, d19 = (l, f + 2, f + 2) if half else (f, f + 4, f + 5)
            La, Wa = frag_job([X(c, 2), X(c, 3)], [(ADD, 0, 1, W4(5, l)), (SUB, 1, 0, W4(14, d14))])
            Lb, Wb = frag_job([X(c, 1), X(c, 2)], [(ADD, 0, 1, W4(10, d10)), (SUB, 1, 0, W4(19, d19))], 4, 8)
            Lg, _ = frag_job([X0(c, 2), X0(c, 3)], [(ADD, 0, 1, no), (SUB, 1, 0, no)], 1, 16)
            return [La + Wa, Lg + [W2(5, 14)], Lb + Wb]
        pend = []; wat = set()

        def emit(x):
            if callable(x): x()
            elif isinstance(x, tuple): a(x[0]); D.append(("w", x[1]))
            else: a(x)

        def mix(ents, ops, head=(), defer=False):
            from asmlib import Ins
            k = max(1, len(ents) - 1)
            early = list(head)
            if defer:
                run = sum(1 for k in (1, 2) if all(cur[0] - m in wat for m in range(1, k + 1)))
                ok = pend and pend[0][2] <= cur[0] and (run < cfg.get("wrun", 2) or 35 <= cur[0] <= 39)
                nw = max([1 if ok else 0] + [1 for i, x in enumerate(pend) if x[1] - 1 - i <= cur[0]] + [i + 1 for i, x in enumerate(pend) if x[1] <= cur[0]])
                if nw: wat.add(cur[0])
                assert all(x[2] <= cur[0] for x in pend[:nw])
                if cfg.get("verbose") and nw: print("   writes", [(x[0][:40], x[1]) for x in pend[:nw]])
                early = early + pend[:nw]; del pend[:nw]
                for x in ops:
                    if isinstance(x, tuple): pend.append(x)
                    elif not callable(x):
                        for y in pend: assert not (Ins(x).w & Ins(y[0]).r), (x, y)
                ops = [x for x in ops if not isinstance(x, tuple)]
            j = 0
            for i, e in enumerate(ents or [lambda: None]):
                e()
                if i == 0:
                    for x in early: emit(x)
                if i < k:
                    j2 = (len(ops) * (i + 1) + k - 1) // k
                    for x in ops[j:j2]: emit(x)
                    j = j2
            for x in ops[j:]: emit(x)

        a("L_loader:")
        if cfg.get("lprio0", 3): a(f"s_setprio {cfg.get('lprio0', 3)}")
        a(f"s_sub_u32 s{sLW}, s{sWV}, 4")
        a("v_lshrrev_b32 v29, 2, v0"); a("v_and_b32 v31, 3, v0")
        a(f"s_mul_i32 s{sT2}, s{sLW}, 48"); a(f"v_add_u32 v{XG}, s{sT2}, v29")
        for j in (1, 2): a(f"v_add_u32 v{XG+j}, {16*j}, v{XG}")
        for j in range(3): a(f"v_mul_u32_u24 v{152+j}, 6554, v{XG+j}")
        for j in range(3): a(f"v_lshrrev_b32 v{152+j}, 16, v{152+j}")
        for j in range(3): a(f"v_and_b32 v{152+j}, 2, v{152+j}")
        for j in range(3): a(f"v_xor_b32 v{XG+j}, v{XG+j}, v{152+j}")
        for j in range(3): a(f"v_mul_u32_u24 v{XG+j}, 288, v{XG+j}")
        for j in range(3): a(f"v_lshl_add_u32 v{XG+j}, v31, 4, v{XG+j}")
        a(f"s_mul_i32 s{sXM}, s{sLW}, 3072"); a(f"s_add_u32 s{sXM}, s{sXM}, {STG}")
        a(f"s_lshl_b32 s{sM4}, s{sLW}, 12")
        a("s_waitcnt lgkmcnt(0)")
        self.stamp(6)
        self.x_srd()
        a(f"s_mul_i32 s{sT0}, s{sT0}, 288")
        for j in range(3): a(f"v_add_u32 v{XG+j}, s{sT0}, v{XG+j}")
        for j in range(3): xdma(0, j)
        self.stamp(7)
        self.mk_srd(sW, 6, 0, 15 * MAT)
        a(f"v_lshl_add_u32 v{VF+4}, v0, 4, s{sM4}")
        a(f"s_mul_i32 s{sT0}, s{sLW}, {256*3641}"); a(f"s_movk_i32 s{sT1}, 3641")
        a(f"v_mov_b32 v152, s{sT0}"); a(f"v_mad_u32_u24 v152, v0, s{sT1}, v152")
        for i in range(4):
            if i: a(f"v_add_u32 v{152+i}, {64*3641*i}, v152")
        for i in range(4): a(f"v_lshrrev_b32 v{152+i}, 15, v{152+i}")
        for i in range(4): a(f"v_and_b32 v{152+i}, 32, v{152+i}")
        for i in range(4): a(f"v_xor_b32 v{VF+i}, v{VF+4}, v{152+i}")
        a(f"s_and_b32 s{sM5}, s{sLW}, 1"); a(f"s_lshl_b32 s{sM5}, s{sM5}, 10"); a(f"s_add_u32 s{sM5}, s{sM5}, 16384")
        a(f"s_lshr_b32 s{sHALF}, s{sLW}, 1")
        a(f"v_lshl_add_u32 v{VF+4}, v0, 4, s{sM5}"); a(f"v_xor_b32 v{VF+4}, 32, v{VF+4}")
        self.stamp(8)
        ops = [f"s_mov_b32 s{sMASK}, 0xffff0000",
               "v_lshlrev_b32 v167, 1, v31", "v_xor_b32 v166, v29, v167",
               "v_lshl_add_u32 v166, v31, 4, v166", "v_lshlrev_b32 v166, 4, v166",
               f"s_lshl_b32 s{sT0}, s{sLW}, 10", f"s_sub_u32 s{sT0}, {UB1-1024}, s{sT0}", f"v_add_u32 v{UWR}, s{sT0}, v166",
               f"s_lshl_b32 s{sT0}, s{sLW}, 2", f"s_add_u32 s{sT1}, s{sT0}, {UB1}", f"v_add_u32 v{UW0}, s{sT1}, v166",
               "v_and_b32 v167, 2, v31", "v_lshlrev_b32 v167, 9, v167",
               f"v_sub_u32 v{UW0H}, v{UW0}, v167", f"v_sub_u32 v{UWRH}, v{UWR}, v167",
               ]
        ops += self.xaddr(sLW, 166, [(i, g0, XAr(i, g0)) for g0 in (0, 1) for i in ((1, 2, 3, 4) if g0 else (0, 1, 2, 3))])
        npro, nearly = cfg.get("npro", 3), cfg.get("nearly", 2)
        pp = 5 * nearly
        mix([lambda p=p: piece(*p) for p in pieces[:pp]], ops)
        if cfg.get("x1pro", 1):
            for j in range(3): xdma(1, j)
        self.stamp(9)
        wait(("x", 0))
        self.stamp(10)
        a("s_barrier")
        J0 = jobs_of(0)
        for i in (2, 4, 0): xread(0, i, 0)
        mix([lambda p=p: piece(*p) for p in pieces[pp:5 * npro]], J0[0] + J0[1]); pp = max(pp, 5 * npro)
        XR0 = [(1, 0), (3, 0), (2, 1), (3, 1)]
        self.stamp(11)
        wait(("w", 0))
        dwait(lambda t: t[0] == "w" and t[1] < 0)
        self.stamp(12)
        if cfg.get("lprio0", 3) != cfg.get("lprio", 0): a(f"s_setprio {cfg.get('lprio', 0)}")
        a("s_barrier")
        self.stamp(1)
        jobs = []
        misc = [f"s_mov_b32 s{sP+4}, 73728"]
        for r, p, n in ((sG, 14, 10 * MAT), (sWO, 8, 41472)):
            misc += [f"s_mov_b32 s{r}, s{p}", f"s_mov_b32 s{r+1}, s{p+1}", f"s_mov_b32 s{r+2}, {n}", f"s_mov_b32 s{r+3}, 0x20000"]
        misc += [f"s_mul_i32 s{sT0}, s{sGI}, 46080", (lambda: (a(f"s_add_u32 s{sO}, s10, s{sT0}"), a(f"s_addc_u32 s{sO+1}, s11, 0"))),
                 f"s_mov_b32 s{sO+2}, 46080", f"s_mov_b32 s{sO+3}, 0x20000"]
        for i in range(4): misc.append(lambda i=i: (a(f"s_cmp_ge_u32 s{sLW}, {3 if i == 0 else 2}"), a(f"s_cselect_b32 s{sP+i}, {2*73728}, s{sP+4}")))
        misc.append(f"s_mov_b32 s{sP+4}, {2*73728}")
        misc.append("v_mov_b32 v21, 0")
        xl = {n: [] for n in range(92)}; head = {n: [] for n in range(92)}; tail = {n: [] for n in range(92)}
        x1 = cfg.get("x1at", 1 if cfg.get("x1pro", 1) else 3)
        for j, (i, g0) in enumerate(XR0): head[j // 2].append(lambda i=i, g0=g0: xread(0, i, g0))
        jobs.append((misc, 0, x1 + 1))
        x2 = cfg.get("x2at", 5)
        tail[x2 - 1].append(lambda: dwait(lambda t: t[0] == "xr" and t[1] == 0))
        for kap in range(1, 10):
            f = first(kap - 1)
            if kap < 5:
                r = x1 + 1 if kap == 1 else f
                if kap > 1 and cfg.get("xthin", 0):
                    n0, n1 = (x2, cfg.get("x2end", 8)) if kap == 2 else (f - 10 + cfg.get("xs", 3), f - 10 + cfg.get("xe", 8))
                    if kap > 2: tail[n0 - 1].append(lambda c=kap: dwait(lambda t: t[0] == "xr" and t[1] == c - 2))
                    for m in range(12): xl[n0 + m * (n1 - n0 + 1) // 12].append(lambda c=kap, m=m: xdma(c, m // 4, m % 4))
                elif kap > 1 or not cfg.get("x1pro", 1):
                    for j in range(3): xl[(0 if kap == 1 else x2 if kap == 2 else f - 10) + j].append(lambda c=kap, j=j: xdma(c, j))
                tail[r - 1].append(lambda c=kap: wait(("x", c)))
                if kap == 4: jobs.append((["v_and_b32 v204, 2, v0", "v_lshlrev_b32 v204, 4, v204"] + [f"v_sub_u32 v{r}, v{r}, v204" for r in range(6, 14)], 23, 29))
                for j, (i, g0) in enumerate(XRD): head[r + j // 3].append(lambda c=kap, i=i, g0=g0: xread(c, i, g0))
                st_ = r + 1
                tg = {1: (5, 6, 8), 4: (34, 35, 37)}.get(kap, (f + 4, f + 6, f + 8))
            elif kap == 5: st_, tg = 38, (40, 41, 44)
            elif kap == 6: st_, tg = 46, (49, 50, 54)
            else: st_, tg = f - 1, (f + 3, f + cfg.get("tg1", 4), f + 7)
            for L, t in zip(jobs_of(kap), tg): jobs.append((L, st_, t))
        npoll = cfg.get("npoll", 33)

        def poll():
            a("global_load_dword v22, v21, s[12:13] sc1"); Q.append(("poll", False))

        def check():
            wait("poll")
            a(f"v_readfirstlane_b32 s{sT0}, v22"); a(f"s_cmp_lt_u32 s{sT0}, {NPROD}"); a("s_cbranch_scc1 L_spin"); a("L_gok:")
        if cfg.get("nopoll"): tail[npoll + 4].append(lambda: a("L_gok:"))
        else: xl[npoll].append(poll); tail[npoll + 4].append(check)

        def wo_dma(j):
            a(f"s_add_u32 m0, s{sT3}, {WO+4096*j}"); st8["m0"] = None
            a(f"s_add_u32 s{sOFF}, s{sT3}, {4096*j}"); st8["soff"] = None
            if j == 10: l = skip_unless(sLW, 0)
            a(f"buffer_load_dwordx4 v29, {srd(sWO)}, s{sOFF} offen lds")
            Q.append(("wo", j == 10))
            if j == 10: a(l)
        for j in range(11): xl[87 + (j + 1) // 4].append(lambda j=j: wo_dma(j))
        ZA, Z16, WA, SA, SR, GO = 216, 217, 218, 219, 220, 223
        E = ["v_lshlrev_b32 v29, 4, v0", f"s_lshl_b32 s{sT3}, s{sLW}, 10"]
        E2 = []
        b = E2.append
        b(f"s_lshr_b32 s{sT0}, s{sLW}, 1"); b(f"s_and_b32 s{sT1}, s{sLW}, 1")
        b(f"s_mul_i32 s{sT2}, s{sT0}, 4608")
        b(f"v_lshlrev_b32 v166, 4, v0"); b(f"v_add_u32 v{ZA}, s{sT2}, v166")
        b(f"s_add_u32 s{sT2}, s{sT2}, 4096"); b(f"v_lshlrev_b32 v166, 3, v0"); b(f"v_add_u32 v{Z16}, s{sT2}, v166")
        b(f"s_mul_i32 s{sT1}, s{sT1}, 160")
        b("v_lshrrev_b32 v166, 2, v0"); b("v_mul_u32_u24 v166, 288, v166")
        b("v_and_b32 v167, 3, v0"); b("v_lshl_add_u32 v166, v167, 3, v166")
        b(f"s_add_u32 s{sT2}, s{sT1}, {WO}"); b(f"v_add_u32 v{WA}, s{sT2}, v166")
        b("v_and_b32 v166, 15, v0"); b(f"v_mul_u32_u24 v166, {STROW}, v166")
        b("v_lshrrev_b32 v167, 4, v0"); b("v_lshl_add_u32 v166, v167, 3, v166")
        b(f"s_mul_i32 s{sT2}, s{sT0}, {16*STROW}"); b(f"s_add_u32 s{sT2}, s{sT2}, s{sT1}"); b(f"s_add_u32 s{sT2}, s{sT2}, {ST}")
        b(f"v_add_u32 v{SA}, s{sT2}, v166")
        for m in range(3):
            if m < 2: b(f"s_lshl_b32 s{sT0}, s{sLW}, 6"); b(f"s_add_u32 s{sT0}, s{sT0}, {256*m}")
            else: b(f"s_mov_b32 s{sT0}, 512")
            b(f"v_add_u32 v166, s{sT0}, v0")
            b("v_mul_u32_u24 v167, 3641, v166"); b("v_lshrrev_b32 v167, 16, v167")
            b("v_mul_u32_u24 v168, 18, v167"); b("v_sub_u32 v166, v166, v168"); b("v_lshlrev_b32 v166, 4, v166")
            b(f"v_mul_u32_u24 v168, {STROW}, v167"); b("v_add_u32 v168, v168, v166"); b(f"v_add_u32 v{SR+m}, {ST}, v168")
            b("v_bfe_u32 v168, v167, 1, 3"); b("v_mul_u32_u24 v168, 20, v168")
            b("v_lshrrev_b32 v169, 4, v167"); b("v_mul_u32_u24 v169, 10, v169"); b("v_add_u32 v168, v168, v169")
            b("v_and_b32 v169, 1, v167"); b("v_add_u32 v168, v168, v169")
            b("v_mul_u32_u24 v168, 288, v168"); b(f"v_add_u32 v{GO+m}, v168, v166")
        jobs.append((E, 85, 86)); jobs.append((E2, 86, 91))
        flat = [(x, j) for j, jb in enumerate(jobs) for x in jb[0]]
        p2 = cfg.get("prof2")

        def st2(n, k):
            if p2:
                r = 50 + 6 * (n & 1) + 2 * k
                a(f"s_memtime s[{r}:{r+1}]")

        def sv2(n):
            if p2 and n >= 0:
                for k in range(3): a(f"v_writelane_b32 v{210+2*k+n//64}, s{50+6*(n&1)+2*k}, {n%64}")
        fp = 0
        rate = cfg.get("rate", 6)
        for n in range(92):
            st2(n, 0)
            ents = []
            while pp < len(pieces) and pieces[pp][0] <= n + cfg.get('dist', 3) and len(ents) < rate:
                ents.append(lambda p=pieces[pp]: piece(*p)); pp += 1
            ents += xl[n]
            cur[0] = n
            need_ = 0; cum = 0
            for j, jb in enumerate(jobs):
                rem = sum(1 for x, jj in flat[fp:] if jj == j)
                if not rem: continue
                cum += rem
                need_ = max(need_, -(-cum // max(1, jb[2] - n + 1)))
            ops = []
            while len(ops) < need_ and fp < len(flat) and jobs[flat[fp][1]][1] <= n:
                ops.append(flat[fp][0]); fp += 1
            if cfg.get("drop") and n < 85:
                dr = dict(w=["ds_write"], v=["v_cvt", "v_sub_f32", "v_add_f32", "v_lshlrev_b32 v15", "v_lshlrev_b32 v16", "v_and_b32 v15", "v_and_b32 v16"])[cfg["drop"]]
                ops = [x for x in ops if callable(x) or not any((x[0] if isinstance(x, tuple) else x).startswith(p) for p in dr)]
            if cfg.get("verbose"): print("interval", n, "ents", len(ents), "ops", len(ops))
            mix(ents, ops, head[n], True)
            assert all(x[1] > n for x in pend), (n, pend)
            for j, jb in enumerate(jobs):
                if jb[2] <= n: assert not any(jj == j for x, jj in flat[fp:]), (n, j)
            sv2(n - 1)
            st2(n, 1)
            if n + 1 <= 91:
                assert pp == len(pieces) or pieces[pp][0] > n + 1
                wait(("w", n + 1))
            for f in tail[n]: f()
            if n == 91: wait("wo"); assert not Q and not pend
            dwait(lambda t: t[0] == "w" and t[1] <= n)
            st2(n, 2)
            a("s_barrier")
        if p2:
            a("s_waitcnt lgkmcnt(0)"); sv2(91)
            a(f"s_add_u32 s{sG}, s14, 0x200000"); a(f"s_addc_u32 s{sG+1}, s15, 0"); a(f"s_mov_b32 s{sG+2}, 0x200000")
            a(f"s_lshl_b32 s{sT0}, s2, 2"); a(f"s_add_u32 s{sT0}, s{sT0}, s{sLW}"); a(f"s_lshl_b32 s{sT0}, s{sT0}, 11")
            a("v_lshlrev_b32 v166, 2, v0")
            for k in range(6): a(f"buffer_store_dword v{210+k}, v166, {srd(sG)}, s{sT0} offen offset:{256*k}")
        self.stamp(3)
        AF = lambda i, k: 32 + 18 * i + 4 * k
        AC, BF, CV, SD = 124, 144, 164, 176
        for i in range(5):
            for k in range(5):
                a(f"ds_read_b64_tr_b16 {vr(AF(i,k),2)}, v{WA} offset:{k*9216+i*32}")
                if k < 4: a(f"ds_read_b64_tr_b16 {vr(AF(i,k)+2,2)}, v{WA} offset:{k*9216+4608+i*32}")
        a(f"s_and_b32 s{sHALF}, s{sLW}, 1")
        if cfg.get("eprio", 2): a(f"s_setprio {cfg.get('eprio', 2)}")

        epx = cfg.get("epx", 0)

        def stage_out(q):
            if epx & 4: return 0
            for j in range(3): a(f"ds_read_b128 {vr(SD+4*j)}, v{SR+j} offset:{q*STBUF}")
            return 3

        def stage_store(q):
            if epx & 2: return
            sm = self.cfg.get("stmod", " sc1 nt")
            a(f"buffer_store_dwordx4 {vr(SD)}, v{GO}, {srd(sO)}, 0 offen offset:{576*q}{sm}")
            a(f"buffer_store_dwordx4 {vr(SD+4)}, v{GO+1}, {srd(sO)}, 0 offen offset:{576*q}{sm}")
            l = skip_unless(sLW, 0)
            a(f"buffer_store_dwordx4 {vr(SD+8)}, v{GO+2}, {srd(sO)}, 0 offen offset:{576*q}{sm}")
            a(l)

        def mm(i, k):
            if epx & 1: return
            n2 = 4 if k < 4 else 2
            opn = "v_mfma_f32_16x16x32_bf16" if k < 4 else "v_mfma_f32_16x16x16_bf16"
            a(f"{opn} {vr(AC+4*i)}, {vr(AF(i,k),n2)}, {vr(BF+4*k,n2)}, {vr(AC+4*i) if k != 4 else 0}")

        def fin(i, q):
            if epx & 4: return
            a(f"v_cvt_pk_bf16_f32 v{CV+2*i}, v{AC+4*i}, v{AC+4*i+1}"); a(f"v_cvt_pk_bf16_f32 v{CV+2*i+1}, v{AC+4*i+2}, v{AC+4*i+3}")
            a(f"ds_write_b64 v{SA}, {vr(CV+2*i,2)} offset:{q*STBUF+32*i}")

        def fin_all(q):
            l = skip_unless(sHALF, 0)
            fin(4, q)
            a(l)
            for i in range(4): fin(i, q)
            return 0 if epx & 4 else 4
        KO = (4, 0, 1, 2, 3)
        for q in range(5):
            a("s_waitcnt lgkmcnt(0)")
            a("s_barrier")
            a(f"ds_read_b64 {vr(BF+16,2)}, v{Z16} offset:{q*9216}")
            for k in range(4): a(f"ds_read_b128 {vr(BF+4*k)}, v{ZA} offset:{q*9216+k*1024}")
            nr = stage_out(q - 2) if q >= 2 else 0
            nw = fin_all(q - 1) if q >= 1 else 0
            for j, k in enumerate(KO):
                a(f"s_waitcnt lgkmcnt({4-j+nr+nw})")
                for i in range(5 if k == 4 else 4): mm(i, k)
                if j == 1 and q >= 2:
                    a(f"s_waitcnt lgkmcnt({nw})")
                    stage_store(q - 2)
                if j == 2 and q == 4:
                    a("s_waitcnt lgkmcnt(0)")
                    a("s_barrier")
                    stage_out(3)
            l = skip_unless(sHALF, 0)
            for k in KO[1:]: mm(4, k)
            a(l)
        a("s_waitcnt lgkmcnt(0)")
        stage_store(3)
        for i in range(4): fin(i, 4)
        l = skip_unless(sHALF, 0)
        fin(4, 4)
        a(l)
        a("s_waitcnt lgkmcnt(0)")
        a("s_barrier")
        stage_out(4)
        a("s_waitcnt lgkmcnt(0)")
        stage_store(4)
        if self.prof:
            self.stamp(4)
            a("s_waitcnt vmcnt(0)")
            self.stamp(5)
            self.stamp(15, True)
            a(f"s_cmp_lg_u32 s{sLW}, 0"); a("s_cbranch_scc1 L_lend")
            self.dump_stamps(64)
            a("L_lend:")
        a("s_endpgm")
        a("L_spin:")
        if cfg.get("spinmax"): a(f"s_mov_b32 s{sT1}, 0")
        a("L_spin2:")
        if cfg.get("spinmax"):
            a(f"s_add_u32 s{sT1}, s{sT1}, 1"); a(f"s_cmp_ge_u32 s{sT1}, {cfg['spinmax']}"); a("s_cbranch_scc1 L_gok")
        a("global_load_dword v22, v21, s[12:13] sc1")
        a("s_waitcnt vmcnt(0)")
        a(f"v_readfirstlane_b32 s{sT0}, v22"); a(f"s_cmp_lt_u32 s{sT0}, {NPROD}"); a("s_cbranch_scc1 L_spin2")
        a("s_branch L_gok")

    def producer(self):
        a = self.a; cfg = self.cfg
        a("L_prod:")
        if cfg.get("hexit"): a("s_endpgm")
        a(f"s_lshr_b32 s{sT3}, s2, 3")
        a(f"s_lshl_b32 s{sT0}, s{sWV}, 6"); a(f"v_add_u32 v40, s{sT0}, v0")
        a("v_and_b32 v41, 255, v40")
        a(f"s_cmp_lt_u32 s{sWV}, 4"); a("s_cbranch_scc1 L_pnocode")
        NL = f"((L_code_end-{KN})/128/7+1)"
        a(f"s_mul_i32 s{sT0}, s{sT3}, {NL}"); a(f"v_min_u32 v42, {NL}-1, v41"); a(f"v_add_u32 v42, s{sT0}, v42")
        a("v_lshlrev_b32 v42, 7, v42"); a(f"v_min_u32 v42, L_code_end-{KN}-4, v42")
        a(f"global_load_dword v50, v42, s[{sPC}:{sPC+1}]")
        a("L_pnocode:")
        a(f"s_mul_i32 s{sT1}, s{sT3}, 206"); a(f"v_min_u32 v41, 205, v41"); a(f"v_add_u32 v41, s{sT1}, v41")
        a("v_mul_u32_u24 v42, 29128, v41"); a("v_lshrrev_b32 v42, 22, v42")
        a("v_mul_u32_u24 v43, 64512, v42"); a("v_lshl_add_u32 v41, v41, 7, v43")
        a("v_cmp_le_u32 vcc, 5, v42")
        a("v_mov_b32 v43, 0"); a(f"v_mov_b32 v44, {5*MAT}")
        a("v_cndmask_b32 v43, v43, v44, vcc"); a("v_add_u32 v41, v41, v43")
        a("s_mul_i32 s3, s2, 464"); a("v_add_u32 v1, s3, v40")
        a("s_add_u32 s3, s3, 464"); a("s_min_u32 s3, s3, 25920")
        a("v_cmp_gt_u32 vcc, s3, v1")
        a("v_lshlrev_b32 v1, 4, v1"); a(f"v_mov_b32 v2, {OOB:#x}")
        a("v_cndmask_b32 v1, v2, v1, vcc")
        a(f"s_mov_b32 s{sMASK}, 0xffff0000")
        a(f"s_mov_b32 s{sT0}, {5*MAT}"); a(f"s_mov_b32 s{sT1}, {10*MAT}")
        a("s_waitcnt lgkmcnt(0)")
        self.mk_srd(sW, 6, 0, 15 * MAT)
        a(f"s_cmp_ge_u32 s{sWV}, 4"); a("s_cbranch_scc1 L_pnow")
        a(f"buffer_load_dword v50, v41, {srd(sW)}, 0 offen")
        a("L_pnow:")
        self.mk_srd(sG, 14, 0, 10 * MAT); self.mk_srd(sX, 4, 0, 2 * 4608000); self.mk_srd(sWO, 8, 0, 41472)
        a(f"v_mul_u32_u24 v42, 7, v40"); a(f"v_add_u32 v42, s{sT3}, v42")
        a("v_mul_u32_u24 v43, 10923, v42"); a("v_lshrrev_b32 v43, 20, v43")
        a("v_mul_u32_u24 v44, 96, v43"); a("v_sub_u32 v44, v42, v44")
        a("v_cmp_gt_u32 vcc, 2400, v42")
        a(f"v_mul_u32_u24 v43, {8*46080}, v43"); a("v_lshrrev_b32 v45, 1, v44"); a("v_mul_u32_u24 v45, 1152, v45"); a("v_add_u32 v43, v43, v45")
        a(f"s_and_b32 s{sT2}, s2, 7"); a(f"s_mul_i32 s{sT2}, s{sT2}, 46080"); a(f"s_sub_u32 s{sT2}, s{sT2}, {32*288}")
        a(f"v_add_u32 v43, s{sT2}, v43"); a("v_and_b32 v44, 1, v44")
        a("v_lshl_add_u32 v45, v44, 8, v43"); a("v_add_u32 v45, 384, v45"); a("v_cndmask_b32 v45, v2, v45, vcc")
        a("v_mul_u32_u24 v44, 896, v44"); a("v_add_u32 v46, v43, v44"); a("v_add_u32 v46, 128, v46"); a("v_cndmask_b32 v46, v2, v46, vcc")
        a(f"s_mul_i32 s{sT2}, s{sT3}, 47"); a("v_min_u32 v47, 46, v40"); a(f"v_add_u32 v47, s{sT2}, v47"); a("v_lshlrev_b32 v47, 7, v47")
        a(f"s_mul_i32 s{sT2}, s{sT3}, 926"); a(f"v_add_u32 v48, s{sT2}, v40"); a("v_min_u32 v49, 413, v40"); a(f"v_add_u32 v49, s{sT2}, v49")
        a("v_lshlrev_b32 v48, 7, v48"); a("v_lshlrev_b32 v49, 7, v49"); a("v_add_u32 v49, 0x10000, v49")
        hx, hw, hd = cfg.get("hx", 2), cfg.get("hw", 1), cfg.get("hd", 3)
        a(f"s_lshr_b32 s{sT2}, s{sWV}, 2"); a(f"s_mul_i32 s{sT2}, s{sT2}, {SLOT}"); a(f"s_add_u32 s{sT2}, s{sT2}, {SLOT}")
        a(f"s_add_u32 s{sT3}, s{sT2}, {2*SLOT}")
        if hd & 1: a("s_waitcnt vmcnt(0)")
        if hw: a(f"buffer_load_dword v50, v41, {srd(sW)}, s{sT2} offen")
        a(f"buffer_load_dword v50, v47, {srd(sWO)}, 0 offen")
        if hd & 2: a("s_waitcnt vmcnt(0)")
        if not cfg.get("noprod"):
            a(f"buffer_load_dwordx4 v[4:7], v1, {srd(sW)}, 0 offen")
            a(f"buffer_load_dwordx4 v[8:11], v1, {srd(sW)}, s{sT0} offen")
            a(f"buffer_load_dwordx4 v[12:15], v1, {srd(sW)}, s{sT1} offen")
        nt = 0
        if hx & 1: a(f"buffer_load_dword v50, v45, {srd(sX)}, 0 offen"); nt += 1
        if hx & 2: a(f"buffer_load_dword v50, v46, {srd(sX)}, 0 offen"); nt += 1
        a(f"s_waitcnt vmcnt({nt})")
        for d in range(4):
            for j, s in enumerate((4, 8, 12)):
                a(f"v_lshlrev_b32 v{24+2*j}, 16, v{s+d}"); a(f"v_and_b32 v{25+2*j}, s{sMASK}, v{s+d}")
            a("v_add_f32 v24, v24, v28"); a("v_add_f32 v25, v25, v29")
            a("v_add_f32 v28, v24, v26"); a("v_add_f32 v29, v25, v27")
            a("v_sub_f32 v24, v24, v26"); a("v_sub_f32 v25, v25, v27")
            a(f"v_cvt_pk_bf16_f32 v{16+d}, v28, v29"); a(f"v_cvt_pk_bf16_f32 v{20+d}, v24, v25")
        if not cfg.get("noprod"):
            a(f"buffer_store_dwordx4 v[16:19], v1, {srd(sG)}, 0 offen sc1")
            a(f"buffer_store_dwordx4 v[20:23], v1, {srd(sG)}, s{sT0} offen sc1")
        a("s_waitcnt vmcnt(0)")
        a("s_barrier")
        a("v_mov_b32 v1, 0"); a("v_mov_b32 v2, 1")
        a(f"s_cmp_lg_u32 s{sWV}, 0"); a("s_cbranch_scc1 L_pnoat")
        a("s_mov_b64 exec, 1")
        if not cfg.get("hnoatom"): a("global_atomic_add v3, v1, v2, s[12:13] sc0 sc1")
        a("s_mov_b64 exec, -1")
        a("s_waitcnt vmcnt(0)")
        a("L_pnoat:")
        if hw: a(f"buffer_load_dword v50, v41, {srd(sW)}, s{sT3} offen")
        a(f"s_cmp_lg_u32 s{sWV}, 0"); a("s_cbranch_scc1 L_pwait")
        a("s_waitcnt vmcnt(0)")
        a("L_ppoll:")
        if cfg.get("hnopoll"): a("s_branch L_pwait")
        if cfg.get("spinmax"): a(f"s_mov_b32 s{sT1}, 0")
        a("L_ppoll2:")
        if cfg.get("spinmax"):
            a(f"s_add_u32 s{sT1}, s{sT1}, 1"); a(f"s_cmp_ge_u32 s{sT1}, {cfg['spinmax']}"); a("s_cbranch_scc1 L_pwait")
        a("global_load_dword v3, v1, s[12:13] sc1")
        a("s_waitcnt vmcnt(0)")
        a(f"v_readfirstlane_b32 s{sT0}, v3"); a(f"s_cmp_lt_u32 s{sT0}, {NPROD}"); a("s_cbranch_scc1 L_ppoll2")
        a("L_pwait:")
        a("s_barrier")
        if cfg.get("hg", 1):
            a(f"buffer_load_dword v50, v48, {srd(sG)}, 0 offen sc1")
            a(f"buffer_load_dword v50, v49, {srd(sG)}, 0 offen sc1")
        a("s_waitcnt vmcnt(0)")
        a("L_exit:")
        a("s_endpgm")

    def build(self):
        a = self.a
        a(f"s_getpc_b64 s[{sPC}:{sPC+1}]")
        a("s_load_dwordx8 s[4:11], s[0:1], 0")
        a("s_load_dwordx4 s[12:15], s[0:1], 32")
        a(f"s_sub_u32 s{sPC}, s{sPC}, 4"); a(f"s_subb_u32 s{sPC+1}, s{sPC+1}, 0")
        a("v_lshrrev_b32 v1, 6, v0")
        a(f"s_sub_u32 s{sGI}, s2, {NHELP}")
        a(f"v_readfirstlane_b32 s{sWV}, v1")
        a("v_and_b32 v0, 63, v0")
        if self.prof:
            a(f"s_memtime s[{sTS}:{sTS+1}]"); a(f"s_memrealtime s[{sTS+14}:{sTS+15}]")
        a(f"s_cmp_lt_u32 s2, {NHELP}"); a("s_cbranch_scc1 L_prod")
        a(f"s_cmp_ge_u32 s2, {NHELP+NMAIN}"); a("s_cbranch_scc1 L_exit")
        a(f"s_cmp_ge_u32 s{sWV}, 4"); a("s_cbranch_scc1 L_loader")
        self.compute_prologue()
        self.producer()
        a(".p2align 6")
        self.loader()
        for w in range(4): self.compute_main(w)
        self.compute_epilogue()
        a("L_code_end:")
        nn = a.fix(verbose=self.cfg.get("verbose", False))
        hdr = open("standalone__autoregressive_conv_wavenet__speech.s.ref").read().split("\n")
        i0 = next(i for i, x in enumerate(hdr) if x.startswith("; @launch"))
        i1 = next(i for i, x in enumerate(hdr) if x.startswith(KN + ":"))
        i2 = next(i for i, x in enumerate(hdr) if x.startswith(".section .rodata"))
        hdr[i0] = f"; @launch grid=({NHELP+NMAIN},1,1) block=(512,1,1) lds={LDS}"
        txt = "\n".join(hdr[:i1 + 1]) + "\n" + a.text() + "\n".join(hdr[i2:]) + "\n"
        return txt, nn


if __name__ == "__main__":
    assert all((i * 3641) >> 20 == i // 288 for i in range(1152))
    assert all((i * 10923) >> 20 == i // 96 for i in range(2400))
    assert all((i * 3641) >> 16 == i // 18 for i in range(640))
    assert all((i * 29128) >> 22 == i // 144 for i in range(1500))
    assert all((i * 6554) >> 16 == i // 10 for i in range(192))
    out = sys.argv[1]
    cfg = {}
    for x in sys.argv[2:]:
        k, v = x.split("=", 1)
        try: v = int(v)
        except ValueError: pass
        cfg[k] = v
    txt, nn = Gen(prof=bool(cfg.get("prof", 0)), cfg=cfg).build()
    open(out, "w").write(txt)
    print(out, "lines", txt.count("\n"), "hazard nops", nn)
```

```python
import sys, struct
from asmlib import Asm

KN = "standalone__autoregressive_conv_wavenet__speech_kernel"
NPROD, NHELP, NMAIN = 56, 56, 200
SLOT, MAT = 18432, 82944
UB1, UB0 = 92160, 111616
UXOR = UB0 ^ UB1
WO, LDS = 121856, 163840
ST, STROW, STBUF, EX = 46080, 304, 9728, 98304
OOB = 0x80000000
STG, STGB = 131072, 12288
LOG2E = 1.4426950408889634


def f2u(f):
    return struct.unpack("<I", struct.pack("<f", f))[0]


def vr(b, n=4):
    return f"v[{b}:{b+n-1}]"


def build_steps():
    S = []
    for c in range(4):
        for s in range(10):
            S.append(dict(kind="full", src="W", soff=(s if s < 5 else s + 5) * MAT + c * SLOT, acc="Q" if s < 5 else "P",
                          kap=c, idx=[10 - (q - s + 5) for q in range(5)]))
    for kind, mat, acc, e0 in [("pair", 0, "Q", 5), ("pair", 2, "Q", 3), ("k16", 4, "Q", 1), ("pair", 10, "P", 0), ("pair", 12, "P", -2), ("k16", 14, "P", -4)]:
        S.append(dict(kind=kind, src="W", soff=mat * MAT, acc=acc, kap=4, idx=[10 - (q + e0) for q in range(5)]))
    for c in range(4):
        for s in range(10):
            S.append(dict(kind="full", src="G", soff=s * MAT + c * SLOT, acc="P" if s < 5 else "Q",
                          kap=5 + c, idx=[(5 if s < 5 else 14) - (q - s % 5) for q in range(5)]))
    for kind, mat, acc, e0 in [("pair", 0, "P", 0), ("pair", 2, "P", -2), ("k16", 4, "P", -4), ("pair", 5, "Q", 0), ("pair", 7, "Q", -2), ("k16", 9, "Q", -4)]:
        S.append(dict(kind=kind, src="G", soff=mat * MAT, acc=acc, kap=9, idx=[(5 if acc == "P" else 14) - (q + e0) for q in range(5)]))
    for n, s in enumerate(S):
        s["n"] = n; s["slot"] = n % 5
        s["keys"] = [(s["kap"], i, s["kind"] == "k16") for i in s["idx"]]
    return S


STEPS = build_steps()

sX, sW, sG, sO, sWO = 16, 20, 24, 28, 32
sWV, sGI, sLW = 36, 37, 38
sCNT, sT0, sT1, sT2, sT3 = 40, 41, 42, 43, 44
sM4, sM5, sHALF, sOFF = 46, 47, 48, 49
sCF, sCG, sCX, sONE, sM2, sTWO = 50, 52, 54, 56, 58, 60
sPC = 62
sMASK, sKU = 65, 66
BIAS = 24
sTS = 68


def srd(r):
    return f"s[{r}:{r+3}]"


vE, vO, vEh, vOh, vUA, vU16, vT, vE16, vO16 = 1, 2, 3, 4, 5, 6, 7, 18, 19
WB = dict(Fa=20, Ga=24, F8=28, G8=32, Fb=36, Gb=40)
UBUF = [44 + 4 * i for i in range(7)]
COL = dict(Fa=0, Ga=1, Fb=2, Gb=3)


def acc(name, q, which):
    t = COL[name] * 5 + q if name in COL else dict(F8=20, G8=21, X=22)[name]
    return 72 + 8 * t + (0 if which == "P" else 4)


class Gen:
    def __init__(self, prof=False, cfg=None):
        self.a = Asm(); self.prof = prof; self.cfg = cfg or {}
        self.nst = 0

    def stamp(self, i, real=False):
        if self.prof:
            self.a(f"s_memtime s[96:97]" if not real else f"s_memrealtime s[96:97]")
            self.a("s_waitcnt lgkmcnt(0)")
            self.a(f"s_mov_b32 s{sTS+i}, s96")

    def dump_stamps(self, off):
        if not self.prof: return
        a = self.a
        a(f"s_add_u32 s{sT0}, s14, 0x100000"); a(f"s_addc_u32 s{sT1}, s15, 0")
        a(f"s_mov_b32 s{sG}, s{sT0}"); a(f"s_mov_b32 s{sG+1}, s{sT1}"); a(f"s_mov_b32 s{sG+2}, 0x100000"); a(f"s_mov_b32 s{sG+3}, 0x20000")
        a(f"s_lshl_b32 s{sT0}, s2, 7"); a(f"s_add_u32 s{sT0}, s{sT0}, {off}")
        for i in range(16): a(f"v_mov_b32 v{8+i}, s{sTS+i}")
        a(f"v_mov_b32 v1, s{sT0}")
        a("s_mov_b64 exec, 1")
        for i in range(4): a(f"buffer_store_dwordx4 {vr(8+4*i)}, v1, {srd(sG)}, 0 offen offset:{16*i}")
        a("s_waitcnt vmcnt(0)")
        if self.cfg.get("dbg"):
            a("v_mov_b32 v1, 0")
            if off:
                a(f"v_mov_b32 v2, s{sTS+15}"); a(f"v_not_b32 v3, s{sTS+14}")
                a("global_atomic_umax v1, v2, s[12:13] offset:20 sc1"); a("global_atomic_umax v1, v3, s[12:13] offset:24 sc1")
            a("s_cmp_lg_u32 s2, 156"); a(f"s_cbranch_scc1 L_nodbg{off}")
            for j, m in enumerate((6, 10, 1, 3, 5, 15) if off else (1, 2, 3, 4)):
                a(f"s_sub_u32 s{sT0}, s{sTS+m}, s{sTS+(14 if m == 15 else 0)}"); a(f"v_mov_b32 v2, s{sT0}")
                a(f"global_store_dword v1, v2, s[12:13] offset:{(32 if off else 4)+4*j}")
            a(f"L_nodbg{off}:")
            a("s_waitcnt vmcnt(0)")

    def wread(self, w, name, st):
        T = dict(Fa=2 * w, Fb=2 * w + 1, Ga=9 + 2 * w, Gb=10 + 2 * w, F8=8, G8=17)[name]
        hi = st["slot"] >= 3
        base = (vO if T & 1 else vE) + (2 if hi else 0)
        off = st["slot"] * SLOT - (3 * SLOT if hi else 0) + 32 * T
        b = WB[name]
        if st["kind"] == "k16":
            assert st["slot"] <= 3
            base = vO16 if T & 1 else vE16
            off = st["slot"] * SLOT + 32 * T
        L = [f"ds_read_b64_tr_b16 {vr(b,2)}, v{base} offset:{off}"]
        if st["kind"] != "k16":
            L.append(f"ds_read_b64_tr_b16 {vr(b+2,2)}, v{base} offset:{off+2304}")
        return [(x, ("W", name, st["n"])) for x in L]

    def uread(self, key, buf):
        kap, idx, k16 = key
        if k16:
            ub = UB1 if kap & 1 else UB0
            return (f"ds_read_b64 {vr(UBUF[buf],2)}, v{vU16} offset:{ub-UB1+idx*1024}", ("U", key))
        return (f"ds_read_b128 {vr(UBUF[buf])}, v{vUA} offset:{idx*1024}", ("U", key))

    def emit_step(self, w, st, nxt, S, force=None, extra_gb=None, out=None):
        e = out.append
        Q = S["queue"]; umap = S["umap"]
        k16 = st["kind"] == "k16"
        n2 = 2 if k16 else 4
        opn = "v_mfma_f32_16x16x16_bf16" if k16 else "v_mfma_f32_16x16x32_bf16"

        AG = S.setdefault("age", {})
        mrg = self.cfg.get("mrg", 99); cap0 = self.cfg.get("cap", 2)

        def waitfor(keys):
            pos = -1
            for i, k in enumerate(Q):
                if k in keys: pos = i
            if pos < 0: return None
            while pos + 1 < len(Q) and AG[len(Q) - 2 - pos] >= mrg: pos += 1
            return len(Q) - 1 - pos, pos

        def dowait(keys):
            r = waitfor(keys)
            if r is None: return
            e(f"s_waitcnt lgkmcnt({min(15, r[0])})")
            del Q[:r[1] + 1]
            for i in list(AG):
                if i >= len(Q): del AG[i]

        def push(k):
            Q.append(k)
            for i in range(len(Q) - 1, 0, -1): AG[i] = AG[i - 1]
            AG[0] = 0

        def run(ms, loads, last_cap, pre=0):
            loads = list(loads)
            for i, (an, q, wn) in enumerate(ms):
                uk = st["keys"][q]
                dowait({("W", wn, st["n"]), ("U", uk)} | ({("W", "Fb", st["n"]), ("W", "Gb", st["n"])} if pre and i == len(ms) - pre else set()))
                d = acc(an, q, st["acc"])
                e(f"{opn} {vr(d)}, {vr(WB[wn], n2)}, {vr(UBUF[umap[uk]], n2)}, {vr(d)}")
                for j in AG: AG[j] += 1
                cap = cap0
                if len(loads) > len(ms) - last_cap - i: cap = 2
                if i + 1 < len(ms):
                    an2, q2, wn2 = ms[i + 1]
                    if waitfor({("W", wn2, st["n"]), ("U", st["keys"][q2])}) is not None: cap = min(cap, 1) if cap0 == 2 or self.cfg.get("capw", 1) else cap - 1
                else:
                    cap -= 1
                j = 0
                while cap > 0 and j < len(loads):
                    if loads[j][2] <= i:
                        t, k, _ = loads.pop(j)
                        e(t)
                        if k is not None: push(k)
                        cap -= 1
                    else:
                        j += 1
            for t, k, _ in loads:
                e(t)
                if k is not None: push(k)

        ga = [(c, q, c) for q in (4, 3, 2, 1, 0) for c in ("Fa", "Ga")]
        gs = [("F8", w, "F8"), ("G8", w, "G8")]
        if w == 0: gs.append(("X", 4, "F8"))
        if w == 1: gs.append(("X", 4, "G8"))
        gb = [(c, q, c) for q in (4, 3, 2, 1, 0) for c in ("Fb", "Gb")]
        la = [(t, k, 0) for nm in ("F8", "G8") for t, k in self.wread(w, nm, st)]
        la += [(t, k, 2) for nm in ("Fb", "Gb") for t, k in self.wread(w, nm, st)]
        run(ga + gs, la, self.cfg.get('lca', 4), self.cfg.get('wpre', 0))
        dowait({("W", "Fb", st["n"]), ("W", "Gb", st["n"])})
        assert not Q
        e("s_barrier")
        lb = []
        if nxt is not None:
            if nxt["kap"] != st["kap"]:
                e(f"v_xor_b32 v{vUA}, {UXOR:#x}, v{vUA}")
            cur = st["keys"]
            keep = set(cur) | set(nxt["keys"])
            for k in list(umap):
                if k not in keep: del umap[k]
            freeat = {b: 0 for b in range(7) if b not in umap.values()}
            for q in range(5):
                if cur[q] not in nxt["keys"]:
                    freeat[umap[cur[q]]] = 2 * (4 - q) + 1
            newm = {}
            ul = []
            for q in (4, 3, 2, 1, 0):
                k = nxt["keys"][q]
                if k in umap: continue
                if force is not None:
                    b = force(k)
                    assert b in freeat, (st["n"], k, b, umap, freeat)
                else:
                    b = min(freeat, key=lambda x: (freeat[x], x))
                t, kk = self.uread(k, b)
                ul.append((2 * (4 - q), t, kk, freeat.pop(b)))
                newm[k] = b
            fa = self.wread(w, "Fa", nxt); gaa = self.wread(w, "Ga", nxt)
            allr = [(0, t, k, 0) for t, k in fa] + [(1, t, k, 0) for t, k in gaa] + ul
            allr.sort(key=lambda x: x[0])
            lb = [(t, k, g) for _, t, k, g in allr]
        if extra_gb:
            lb += [(t, None, 6) for t in extra_gb]
        run(gb, lb, self.cfg.get('lcb', 3))
        if nxt is not None:
            for k in list(umap):
                if k not in nxt["keys"]: del umap[k]
            umap.update(newm)

    @staticmethod
    def shift_state(S, dn, dk):
        q = []
        for k in S["queue"]:
            if k[0] == "W": q.append(("W", k[1], k[2] + dn))
            else: q.append(("U", (k[1][0] + dk, k[1][1], k[1][2])))
        return dict(queue=q, umap={(k[0] + dk, k[1], k[2]): b for k, b in S["umap"].items()}, age=dict(S.get("age", {})))

    def al8(self, L):
        m = self.cfg.get("al8", 0)
        if not m: return L
        out = []; par = 0
        for x in L:
            sz = 4 if x.startswith("s_") else 8
            if sz == 8 and par != (m - 1) * 4:
                out.append("s_nop 0"); par ^= 4
            out.append(x); par = (par + sz) % 8
        if par: out.append("s_nop 0")
        return out

    def phase(self, w, n0, force, S0, hooks):
        a = self.a
        lab = f"L_c{w}_{n0}"
        Send = dict(queue=[], umap=dict(S0), age={})
        for it in range(5):
            S = dict(queue=list(Send["queue"]), umap=dict(Send["umap"]), age=dict(Send["age"]))
            body = []
            for n in range(n0, n0 + 10):
                ex = [f"s_add_u32 s{sCNT}, s{sCNT}, 1", f"s_cmp_lt_u32 s{sCNT}, {3 if hooks else 4}"] if n == n0 + 9 else None
                self.emit_step(w, STEPS[n], STEPS[n + 1], S, force, ex, body)
            chk = self.shift_state(S, -10, -1)
            assert chk["umap"] == S0
            if chk == Send: break
            Send = chk
        assert chk == Send
        a(f"s_mov_b32 s{sCNT}, 0")
        a(".p2align 3")
        a(lab + ":")
        for x in self.al8(body): a(x)
        if hooks:
            a(f"s_cbranch_scc1 {lab}_hook")
            a(f"s_cmp_lt_u32 s{sCNT}, 4")
        a(f"s_cbranch_scc1 {lab}")
        S = self.shift_state(S, 30, 3)
        return S, lab

    def compute_main(self, w):
        a = self.a
        a(".p2align 6")
        a(f"L_cw{w}:")
        fA = lambda k: (k[1] - 1) % 7
        fB = lambda k: (k[1] - 1) % 6
        st0 = STEPS[0]
        S0 = {k: fA(k) for k in st0["keys"]}
        a("s_barrier")
        self.stamp(1)
        for nm in ("Fa", "Ga"):
            for t, _ in self.wread(w, nm, st0): a(t)
        for q in (4, 3, 2, 1, 0):
            a(self.uread(st0["keys"][q], S0[st0["keys"][q]])[0])
        a("s_waitcnt lgkmcnt(0)")
        S, labA = self.phase(w, 0, fA, S0, False)
        out = []
        for n in range(40, 46):
            self.emit_step(w, STEPS[n], STEPS[n + 1], S, fB if n == 45 else None, None, out)
        if self.cfg.get("al8"): a("s_nop 0")
        for x in self.al8(out): a(x)
        self.stamp(2)
        tiles = [COL["Fa"] * 5 + q for q in (4, 3, 2, 1, 0)] + [COL["Ga"] * 5 + q for q in (4, 3, 2, 1, 0)] + [20, 21] + ([22] if w < 2 else [])
        tiles += [COL[c] * 5 + q for q in (4, 3, 2, 1, 0) for c in ("Fb", "Gb")]
        prs = [(72 + 8 * t + h, 76 + 8 * t + h) for t in tiles for h in (0, 2)]
        for i in range(0, len(prs), 4):
            for p, q in prs[i:i + 4]: a(f"v_pk_add_f32 {vr(p,2)}, {vr(p,2)}, {vr(q,2)} neg_lo:[0,1] neg_hi:[0,1]")
            for p, q in prs[i:i + 4]: a(f"v_pk_fma_f32 {vr(q,2)}, {vr(q,2)}, s[{sTWO}:{sTWO+1}], {vr(p,2)}")
        a("s_waitcnt lgkmcnt(0)")
        S0 = {k: fB(k) for k in STEPS[46]["keys"]}
        assert S["umap"] == S0
        S, labB = self.phase(w, 46, fB, S0, False)
        out = []
        for n in range(86, 92):
            self.emit_step(w, STEPS[n], STEPS[n + 1] if n < 91 else None, S, None, None, out)
        if self.cfg.get("al8"): a("s_nop 0")
        for x in self.al8(out): a(x)
        a("s_branch L_cepi")

    def epi_addr(self):
        a = self.a
        a("v_lshlrev_b32 v13, 3, v0"); a("v_lshlrev_b32 v14, 4, v0")
        a(f"s_lshl_b32 s{sT0}, s{sWV}, 10"); a(f"v_add_u32 v12, s{sT0}, v14")
        a(f"s_lshr_b32 s{sT1}, s{sWV}, 1"); a(f"s_and_b32 s{sT2}, s{sWV}, 1")
        a(f"s_lshl_b32 s{sT0}, s{sT1}, 10"); a(f"s_lshl_b32 s{sT3}, s{sT2}, 3"); a(f"s_add_u32 s{sT0}, s{sT0}, s{sT3}")
        a(f"s_add_u32 s{sT0}, s{sT0}, {EX}"); a(f"v_add_u32 v15, s{sT0}, v14")
        a(f"s_mul_i32 s{sT0}, s{sT1}, 4608"); a(f"s_lshl_b32 s{sT3}, s{sT2}, 2"); a(f"s_add_u32 s{sT0}, s{sT0}, s{sT3}")
        a(f"s_add_u32 s{sT0}, s{sT0}, {4096+8*4608}"); a(f"v_add_u32 v16, s{sT0}, v13")
        a(f"s_lshl_b32 s{sT0}, s{sWV}, 11"); a(f"s_add_u32 s{sT0}, s{sT0}, {EX}"); a(f"v_add_u32 v14, s{sT0}, v14")
        a(f"s_mul_i32 s{sT0}, s{sWV}, 9216"); a(f"s_add_u32 s{sT0}, s{sT0}, 4096"); a(f"v_add_u32 v13, s{sT0}, v13")

    @staticmethod
    def bfly_ops(prs):
        L = [(p + h, q + h, c) for p, q, c in prs for h in (0, 2)]
        return ([f"v_pk_mul_f32 {vr(q,2)}, {vr(q,2)}, s[{c}:{c+1}]" for p, q, c in L],
                [f"v_pk_fma_f32 {vr(p,2)}, {vr(p,2)}, s[{c}:{c+1}], {vr(q,2)}" for p, q, c in L],
                [f"v_pk_fma_f32 {vr(q,2)}, {vr(q,2)}, s[{sM2}:{sM2+1}], {vr(p,2)}" for p, q, c in L])

    def compute_epilogue(self):
        a = self.a; cfg = self.cfg
        a(".p2align 6")
        a("L_cepi:")
        self.stamp(3)
        if cfg.get("cprio"): a(f"s_setprio {cfg['cprio']}")
        a("v_mov_b32 v32, 0.5"); a("v_mov_b32 v33, 0.5")
        a(f"s_cmp_ge_u32 s{sWV}, 2"); a("s_cbranch_scc1 L_nox")
        for L in self.bfly_ops([(acc("X", 0, "P"), acc("X", 0, "Q"), sCX), ]):
            for x in L: a(x)
        a(f"ds_write_b128 v14, {vr(acc('X',0,'P'))}")
        a(f"ds_write_b128 v14, {vr(acc('X',0,'Q'))} offset:1024")
        a("L_nox:")
        B = lambda q: sum(self.bfly_ops([(acc(c, q, "P"), acc(c, q, "Q"), sCF if c[0] == "F" else sCG) for c in ("Fa", "Ga", "Fb", "Gb")]), [])
        pr = lambda f, g, q, wh: [(acc(f, q, wh) + h, acc(g, q, wh) + h) for h in (0, 2)]
        EF = lambda P: [f"v_exp_f32_e64 v{f+i}, v{f+i} clamp" for f, g in P for i in (0, 1)]
        EG = lambda P: [f"v_exp_f32 v{g+i}, v{g+i}" for f, g in P for i in (0, 1)]
        RC = lambda P: [f"v_rcp_f32 v{g+i}, v{g+i}" for f, g in P for i in (0, 1)]
        UP = lambda P: [f"v_pk_fma_f32 {vr(f,2)}, {vr(f,2)}, s[{sKU}:{sKU+1}], v[32:33]" for f, g in P]
        US = lambda P: [f"v_fma_f32 v{f+i}, v{f+i}, s{sKU}, 0.5" for f, g in P for i in (0, 1)]
        DP = lambda P: [f"v_pk_fma_f32 {vr(g,2)}, {vr(f,2)}, {vr(g,2)}, {vr(f,2)}" for f, g in P]
        DS = lambda P: [f"v_fma_f32 v{g+i}, v{f+i}, v{g+i}, v{f+i}" for f, g in P for i in (0, 1)]
        ZP = lambda P: [f"v_pk_fma_f32 {vr(f,2)}, {vr(f,2)}, {vr(g,2)}, {vr(g,2)} neg_lo:[1,0,0] neg_hi:[1,0,0]" for f, g in P]
        ZS = lambda P: [f"v_fma_f32 v{f+i}, -v{f+i}, v{g+i}, v{g+i}" for f, g in P for i in (0, 1)]
        CV = lambda P, o: [f"v_cvt_pk_bf16_f32 v{o+j}, v{f}, v{f+1}" for j, (f, g) in enumerate(P)]
        S0, S1 = pr("F8", "G8", 0, "P"), pr("F8", "G8", 0, "Q"); S = S0 + S1
        L = sum(self.bfly_ops([(acc("F8", 0, "P"), acc("F8", 0, "Q"), sCF), (acc("G8", 0, "P"), acc("G8", 0, "Q"), sCG)]), [])
        L += EF(S) + UP(S) + EG(S) + DP(S) + RC(S) + ZP(S) + CV(S0, 28) + ["ds_write_b64 v13, v[28:29]"] + CV(S1, 30) + ["ds_write_b64 v13, v[30:31] offset:4608"]
        for x in L: a(x)
        nb, nu, nd, nz = cfg.get("nb", 6), cfg.get("nu", 8), cfg.get("nd", 0), cfg.get("nz", 0)
        for q in range(5):
            Y = [pr("Fa", "Ga", q, wh) + pr("Fb", "Gb", q, wh) for wh in "PQ"]
            P = Y[0] + Y[1]
            L = B(q) + EF(P)
            bar = ["s_waitcnt lgkmcnt(0)", "s_barrier"] if q else []
            if q == 1:
                bar += ["ds_read_b64 v[44:45], v15", "ds_read_b64 v[46:47], v15 offset:2048"]
            L = L[:24 + nb] + bar + L[24 + nb:]
            L += UP(P) if q == 0 else UP(P[:nu]) + US(P[nu:])
            X = []
            if q == 1:
                X = [(44, 46)]
                L += EG(P[:2]) + ["s_waitcnt lgkmcnt(0)"] + EF(X) + EG(P[2:] + X) + US(X)
            else: L += EG(P)
            PX = X + P
            L += DP(P) if q == 0 else DS(PX[:len(PX) - nd]) + DP(PX[len(PX) - nd:])
            L += RC(PX)
            if X: L += ZS(X) + ZS(P[:nz]) + CV(X, 36) + ["ds_write_b32 v16, v36"] + ZP(P[nz:])
            else: L += ZP(P) if q == 0 else ZS(P[:nz]) + ZP(P[nz:])
            for y in (0, 1): L += CV(Y[y], 20 + 4 * y) + [f"ds_write_b128 v12, {vr(20+4*y)} offset:{(2*q+y)*4608}"]
            for x in L: a(x)
        a("s_waitcnt lgkmcnt(0)")
        a("s_barrier")
        self.stamp(4)
        if self.prof:
            a(f"s_cmp_lg_u32 s{sWV}, 0"); a("s_cbranch_scc1 L_cend")
            self.stamp(15, True)
            self.dump_stamps(0)
            a("L_cend:")
        a("s_endpgm")

    def compute_prologue(self):
        a = self.a
        a("L_compute:")
        a("v_lshrrev_b32 v12, 4, v0")
        a("v_bfe_u32 v13, v0, 2, 2")
        a("v_lshl_add_u32 v17, v12, 2, v13")
        a("v_lshl_add_u32 v13, v12, 3, v13")
        a("v_mul_u32_u24 v13, 576, v13"); a("v_mul_u32_u24 v17, 576, v17")
        a("v_and_b32 v14, 3, v0"); a("v_lshl_add_u32 v13, v14, 3, v13"); a("v_lshl_add_u32 v17, v14, 3, v17")
        a("v_and_b32 v14, 1, v12"); a("v_lshlrev_b32 v15, 5, v14")
        a(f"v_add_u32 v{vE}, v13, v15"); a(f"v_sub_u32 v{vO}, v13, v15")
        a(f"v_add_u32 v{vEh}, {3*SLOT}, v{vE}"); a(f"v_add_u32 v{vOh}, {3*SLOT}, v{vO}")
        a("v_and_b32 v15, 32, v0")
        a(f"v_add_u32 v{vE16}, v17, v15"); a(f"v_sub_u32 v{vO16}, v17, v15")
        a("v_and_b32 v13, 15, v0")
        a("v_lshlrev_b32 v15, 1, v12"); a("v_xor_b32 v15, v15, v13")
        a("v_lshl_add_u32 v15, v12, 4, v15"); a("v_lshlrev_b32 v15, 4, v15")
        a(f"v_add_u32 v{vUA}, {UB0}, v15")
        a("v_lshrrev_b32 v12, 1, v12")
        a("v_lshlrev_b32 v15, 1, v12"); a("v_xor_b32 v15, v15, v13")
        a("v_lshl_add_u32 v15, v12, 4, v15"); a("v_lshlrev_b32 v15, 4, v15")
        a("v_lshl_add_u32 v15, v14, 3, v15")
        a(f"v_add_u32 v{vU16}, {UB1}, v15")
        cF, cG = f2u(-LOG2E), f2u(-LOG2E / 2)
        for r, v in ((sCF, cF), (sCG, cG), (sONE, f2u(1.0)), (sM2, f2u(-2.0)), (sTWO, f2u(2.0))):
            a(f"s_mov_b32 s{r}, {v:#x}"); a(f"s_mov_b32 s{r+1}, {v:#x}")
        a(f"s_cmp_eq_u32 s{sWV}, 0"); a(f"s_cselect_b32 s{sCX}, s{sCF}, s{sCG}"); a(f"s_mov_b32 s{sCX+1}, s{sCX}")
        f32 = lambda v: struct.unpack("<f", struct.pack("<f", v))[0]
        hb = f32(BIAS / LOG2E / 2)
        ku = f2u(0.5 * 2.0 ** (2 * hb * f32(LOG2E)))
        a(f"s_mov_b32 s{sKU}, {ku:#x}"); a(f"s_mov_b32 s{sKU+1}, {ku:#x}")
        a(f"s_mov_b32 s46, {f2u(hb):#x}"); a(f"s_mov_b32 s47, {f2u(-hb):#x}")
        a(f"s_cselect_b32 s48, s46, 0"); a(f"s_cselect_b32 s49, s47, 0")
        self.stamp(7)
        self.epi_addr()
        for r in range(72, 256):
            t, h = (r - 72) // 8, (r - 72) // 4 & 1
            a(f"v_mov_b32 v{r}, {'s%d' % (48 + h) if t == 22 else 's%d' % (46 + h) if t == 20 or (t < 20 and t // 5 in (COL['Fa'], COL['Fb'])) else 0}")
        for x in self.xaddr(sWV, 36, [(1, 0, 30), (3, 0, 31), (1, 1, 8), (2, 1, 9), (3, 1, 10), (4, 1, 11)]): a(x)
        a("v_lshrrev_b32 v36, 2, v0"); a("v_and_b32 v37, 3, v0")
        a("v_lshlrev_b32 v38, 1, v37"); a("v_xor_b32 v36, v36, v38"); a("v_lshl_add_u32 v36, v37, 4, v36"); a("v_lshlrev_b32 v36, 4, v36")
        a(f"s_lshl_b32 s{sT0}, s{sWV}, 10"); a(f"s_sub_u32 s{sT0}, {UB0+9*1024}, s{sT0}"); a(f"v_add_u32 v34, s{sT0}, v36")
        a(f"s_lshl_b32 s{sT0}, s{sWV}, 2"); a(f"s_add_u32 s{sT0}, s{sT0}, {UB0}"); a(f"v_add_u32 v35, s{sT0}, v36")
        a(f"s_mov_b32 s{sMASK}, 0xffff0000")
        self.stamp(8)
        if self.prof: a("s_waitcnt lgkmcnt(0)")
        a("s_barrier")
        a("ds_read_b32 v28, v9 offset:1280"); a("ds_read_b32 v29, v11 offset:2560")
        a("ds_read_b32 v32, v8 offset:640"); a("ds_read_b32 v33, v10 offset:1920")
        a("ds_read_b128 v[20:23], v30 offset:640"); a("ds_read_b128 v[24:27], v31 offset:1920")
        U = lambda t, p, q: [f"v_lshlrev_b32 v{t}, 16, v{p}", f"v_and_b32 v{t+1}, s{sMASK}, v{p}", f"v_lshlrev_b32 v{t+2}, 16, v{q}", f"v_and_b32 v{t+3}, s{sMASK}, v{q}"]
        S = lambda t: [f"v_sub_f32 v{t}, v{t}, v{t+2}", f"v_sub_f32 v{t+1}, v{t+1}, v{t+3}"]
        a("s_waitcnt lgkmcnt(4)")
        for x in U(40, 28, 29): a(x)
        a("s_waitcnt lgkmcnt(2)")
        for x in U(64, 32, 33) + S(40) + S(64): a(x)
        a("v_cvt_pk_bf16_f32 v40, v40, v41"); a("v_cvt_pk_bf16_f32 v41, v64, v65")
        a("s_waitcnt lgkmcnt(0)")
        for d in range(4):
            for x in U(44 + 4 * d, 20 + d, 24 + d): a(x)
            if d == 0: a("ds_write2st64_b32 v35, v40, v41 offset0:20 offset1:40")
        for d in range(4):
            for x in S(44 + 4 * d): a(x)
        for d in range(4): a(f"v_cvt_pk_bf16_f32 v{60+d}, v{44+4*d}, v{45+4*d}")
        a("ds_write_b128 v34, v[60:63]")
        a("s_waitcnt lgkmcnt(0)")
        for w in (1, 2, 3):
            a(f"s_cmp_eq_u32 s{sWV}, {w}"); a(f"s_cbranch_scc1 L_cw{w}")
        a("s_branch L_cw0")

    def x_srd(self):
        a = self.a
        a(f"s_cmp_ge_u32 s{sGI}, 100"); a(f"s_cselect_b32 s{sT0}, 100, 0"); a(f"s_cselect_b32 s{sT1}, 4608000, 0")
        a(f"s_sub_u32 s{sT0}, s{sGI}, s{sT0}"); a(f"s_mul_i32 s{sT0}, s{sT0}, 160"); a(f"s_sub_u32 s{sT0}, s{sT0}, 30")
        a(f"s_add_u32 s{sX}, s4, s{sT1}"); a(f"s_addc_u32 s{sX+1}, s5, 0"); a(f"s_mov_b32 s{sX+2}, 4608000"); a(f"s_mov_b32 s{sX+3}, 0x20000")

    def xaddr(self, sw, t, regs):
        L = [f"v_lshrrev_b32 v{t}, 3, v0", f"v_mul_u32_u24 v{t+1}, 1280, v{t}", f"v_and_b32 v{t+2}, 7, v0", f"v_lshl_add_u32 v{t+1}, v{t+2}, 4, v{t+1}",
             f"v_and_b32 v{t}, 1, v{t}", f"v_lshlrev_b32 v{t}, 7, v{t}", f"v_xor_b32 v{t+2}, 0x80, v{t}"]
        if any(g0 for _, g0, _ in regs):
            L += [f"s_lshl_b32 s{sT0}, s{sw}, 2", f"s_add_u32 s{sT0}, s{sT0}, {STG}", f"v_add_u32 v{t+3}, s{sT0}, v{t+1}"]
            for i, g0, r in regs:
                if g0: L.append(f"{'v_sub_u32' if i & 1 else 'v_add_u32'} v{r}, v{t+3}, v{t if i in (1, 4) else t+2}")
        L += [f"s_lshl_b32 s{sT0}, s{sw}, 7", f"s_add_u32 s{sT0}, s{sT0}, {STG+128}", f"v_add_u32 v{t+3}, s{sT0}, v{t+1}",
              f"s_and_b32 s{sT0}, s{sw}, 1", f"s_lshl_b32 s{sT0}, s{sT0}, 1", f"s_sub_u32 s{sT0}, s{sT0}, 1",
              f"v_mul_i32_i24 v{t}, s{sT0}, v{t}", f"v_mul_i32_i24 v{t+2}, s{sT0}, v{t+2}"]
        for i, g0, r in regs:
            if not g0: L.append(f"{'v_sub_u32' if i & 1 else 'v_add_u32'} v{r}, v{t+3}, v{t if i in (0, 1, 4) else t+2}")
        return L

    def mk_srd(self, r, p, off, n):
        a = self.a
        if off == 0:
            a(f"s_mov_b32 s{r}, s{p}"); a(f"s_mov_b32 s{r+1}, s{p+1}")
        else:
            a(f"s_add_u32 s{r}, s{p}, {off}"); a(f"s_addc_u32 s{r+1}, s{p+1}, 0")
        a(f"s_mov_b32 s{r+2}, {n}"); a(f"s_mov_b32 s{r+3}, 0x20000")

    def loader(self):
        a = self.a; cfg = self.cfg
        VF, XG = 1, 16
        XAr = lambda i, g0: (10 + i - 1) if g0 else 6 + (0, 1, 2, 3, 0)[i]
        UWR, UWRH, UW0, UW0H = 25, 26, 27, 28
        X = lambda c, i: 32 + 20 * c + 4 * i
        X0 = lambda c, i: 132 + 4 * c + (i - 1)
        TU, TA, O = 152, 170, 186
        sP, sXM = 90, 95
        cur = [-1]
        Q = []
        D = []
        self.nlab = 0
        st8 = dict(m0=None, soff=None)

        def wait(tag):
            pos = max([i for i, (t, o) in enumerate(Q) if t == tag], default=-1)
            if pos < 0: return
            n = sum(1 for t, o in Q[pos + 1:] if not o)
            a(f"s_waitcnt vmcnt({n})")
            del Q[:pos + 1]

        def dwait(pred):
            pos = max([i for i, t in enumerate(D) if pred(t)], default=-1)
            if pos < 0: return
            a(f"s_waitcnt lgkmcnt({len(D)-1-pos})")
            for t in D[:pos + 1]:
                if t[0] == "xr": xdone[t[1]] = cur[0]
            del D[:pos + 1]
        xdone = {}

        def skip_unless(cond_reg, val, op="eq"):
            self.nlab += 1
            a(f"s_cmp_{op}_u32 s{cond_reg}, {val}"); a(f"s_cbranch_scc0 L_sk{self.nlab}")
            return f"L_sk{self.nlab}:"

        def xdma(c, j, lw=None):
            if c >= 2: assert xdone[c - 2] < cur[0] and not any(t[0] == "xr" and t[1] == c - 2 for t in D)
            a(f"s_add_u32 m0, s{sXM}, {(c&1)*STGB+1024*j}"); st8["m0"] = None
            if c and st8["soff"] != ("x", c): a(f"s_movk_i32 s{sOFF}, {64*c}"); st8["soff"] = ("x", c)
            if cfg.get("nox"): return
            if lw is not None: l = skip_unless(sLW, lw)
            a(f"buffer_load_dwordx4 v{XG+j}, {srd(sX)}, {'s%d' % sOFF if c else 0} offen lds")
            Q.append((("x", c), lw is not None))
            if lw is not None: a(l)

        def xread(c, i, g0):
            if g0: a(f"ds_read_b32 v{X0(c,i)}, v{XAr(i,1)} offset:{(c&1)*STGB+640*i}")
            else: a(f"ds_read_b128 {vr(X(c,i))}, v{XAr(i,0)} offset:{(c&1)*STGB+640*i}")
            D.append(("xr", c, i, g0))
        XRD = [(2, 0), (4, 0), (0, 0), (2, 1), (4, 1), (1, 1), (3, 1), (1, 0), (3, 0)]
        xw = lambda g0, *ii: (lambda: dwait(lambda t: t[0] == "xr" and t[3] == g0 and t[2] in ii))

        def piece(n, i):
            st = STEPS[n]; kind = st["kind"]
            d = srd(sW) if st["src"] == "W" else srd(sG)
            sc = "" if st["src"] == "W" else " sc1"
            m0 = (n, i == 4)
            if st8["m0"] != m0:
                a(f"s_add_u32 m0, s{sM5 if i == 4 else sM4}, {st['slot']*SLOT}"); st8["m0"] = m0
            if kind == "pair":
                a(f"s_add_u32 s{sOFF}, s{sP+i}, {st['soff']}"); st8["soff"] = None
            elif st8["soff"] != n:
                a(f"s_mov_b32 s{sOFF}, {st['soff'] + (73728 if kind == 'k16' else 0)}"); st8["soff"] = n
            l = None
            if i == 4: l = skip_unless(sHALF, n & 1)
            elif kind == "k16": l = skip_unless(sLW, 2 if i == 0 else 1, "le")
            off = f" offset:{1024*i}" if 0 < i < 4 else ""
            a(f"buffer_load_dwordx4 v{VF+i}, {d}, s{sOFF} offen{off}{sc} lds")
            Q.append((("w", n), l is not None))
            if l: a(l)
            assert len(Q) <= 60
        pieces = [(n, i) for n in range(92) for i in range(4 if STEPS[n]["kind"] == "k16" else 5)]

        def frag_job(srcs, outs, nd=4, ob=0):
            U = []; A = []; C = []
            for d in range(nd):
                tu = TU + 6 * (d % 3); ta = TA + 8 * (d % 2)
                u = []
                for k, r in enumerate(srcs):
                    u += [f"v_lshlrev_b32 v{tu+2*k}, 16, v{r+d}", f"v_and_b32 v{tu+2*k+1}, s{sMASK}, v{r+d}"]
                ad = []; cv = []
                for k, (op, i, j, _) in enumerate(outs):
                    ad += [f"{op} v{ta+2*k+h}, v{tu+2*i+h}, v{tu+2*j+h}" for h in (0, 1)]
                    cv.append(f"v_cvt_pk_bf16_f32 v{O+ob+nd*k+d}, v{ta+2*k}, v{ta+2*k+1}")
                U.append(u); A.append(ad); C.append(cv)
            L = list(U[0])
            for d in range(nd):
                if d + 1 < nd: L += U[d + 1]
                L += A[d]
                if d: L += C[d - 1]
            L += C[nd - 1]
            return L, [wt(O + ob + nd * k) for k, (_, _, _, wt) in enumerate(outs)]
        SUB, ADD = "v_sub_f32", "v_add_f32"
        first = lambda k: min(s["n"] for s in STEPS if s["kap"] == k)
        last = lambda k: max(s["n"] for s in STEPS if s["kap"] == k)

        def mid(L, x):
            return L[:len(L) // 2] + x + L[len(L) // 2:]

        def jobs_of(kap):
            c = kap % 5; ub = (UB1 if kap & 1 else UB0) - UB1
            f = first(kap); l = f - 1
            e0 = first(kap - 1) if kap else -1
            half = c == 4
            wr, w0 = (UWRH, UW0H) if half else (UWR, UW0)
            W4 = lambda idx, dl: (lambda o: (f"ds_write_b128 v{wr}, {vr(o)} offset:{ub+idx*1024}", dl, e0))
            W2 = lambda i0, i1: (f"ds_write2st64_b32 v{w0}, v{O+16}, v{O+17} offset0:{(ub+i0*1024)//256} offset1:{(ub+i1*1024)//256}", l, e0)
            no = lambda o: None
            if kap == 0:
                La, Wa = frag_job([X(c, 2), X(c, 4)], [(SUB, 0, 1, W4(5, l))])
                Lb, Wb = frag_job([X(c, 0), X(c, 2)], [(SUB, 0, 1, W4(15, f + 5))], 4, 4)
                return [[xw(0, 2, 4)] + La + Wa, [xw(0, 0)] + Lb + Wb]
            if kap < 5:
                d10, d15 = (l, l) if half else (f, f + 5)
                La, Wa = frag_job([X(c, 0), X(c, 2), X(c, 4)], [(SUB, 1, 2, W4(5, l)), (SUB, 0, 1, W4(15, d15))])
                Lg, _ = frag_job([X0(c, 2), X0(c, 4), X0(c, 1), X0(c, 3)], [(SUB, 0, 1, no), (SUB, 2, 3, no)], 1, 16)
                Lb, Wb = frag_job([X(c, 1), X(c, 3)], [(SUB, 0, 1, W4(10, d10))], 4, 8)
                return [[xw(0, 0, 2, 4)] + La + Wa, [xw(1, 1, 2, 3, 4)] + Lg + [W2(5, 10)], [xw(0, 1, 3)] + Lb + Wb]
            d10, d14, d19 = (l, f + 2, f + 2) if half else (f, f + 4, f + 5)
            La, Wa = frag_job([X(c, 2), X(c, 3)], [(ADD, 0, 1, W4(5, l)), (SUB, 1, 0, W4(14, d14))])
            Lb, Wb = frag_job([X(c, 1), X(c, 2)], [(ADD, 0, 1, W4(10, d10)), (SUB, 1, 0, W4(19, d19))], 4, 8)
            Lg, _ = frag_job([X0(c, 2), X0(c, 3)], [(ADD, 0, 1, no), (SUB, 1, 0, no)], 1, 16)
            return [La + Wa, Lg + [W2(5, 14)], Lb + Wb]
        pend = []; wat = set()

        def emit(x):
            if callable(x): x()
            elif isinstance(x, tuple): a(x[0]); D.append(("w", x[1]))
            else: a(x)

        def mix(ents, ops, head=(), defer=False):
            from asmlib import Ins
            k = max(1, len(ents) - 1)
            early = list(head)
            if defer:
                run = sum(1 for k in (1, 2) if all(cur[0] - m in wat for m in range(1, k + 1)))
                ok = pend and pend[0][2] <= cur[0] and (run < cfg.get("wrun", 2) or 35 <= cur[0] <= 39)
                nw = max([1 if ok else 0] + [1 for i, x in enumerate(pend) if x[1] - 1 - i <= cur[0]] + [i + 1 for i, x in enumerate(pend) if x[1] <= cur[0]])
                if nw: wat.add(cur[0])
                assert all(x[2] <= cur[0] for x in pend[:nw])
                if cfg.get("verbose") and nw: print("   writes", [(x[0][:40], x[1]) for x in pend[:nw]])
                early = early + pend[:nw]; del pend[:nw]
                for x in ops:
                    if isinstance(x, tuple): pend.append(x)
                    elif not callable(x):
                        for y in pend: assert not (Ins(x).w & Ins(y[0]).r), (x, y)
                ops = [x for x in ops if not isinstance(x, tuple)]
            j = 0
            for i, e in enumerate(ents or [lambda: None]):
                e()
                if i == 0:
                    for x in early: emit(x)
                if i < k:
                    j2 = (len(ops) * (i + 1) + k - 1) // k
                    for x in ops[j:j2]: emit(x)
                    j = j2
            for x in ops[j:]: emit(x)

        a("L_loader:")
        if cfg.get("lprio0", 3): a(f"s_setprio {cfg.get('lprio0', 3)}")
        a(f"s_sub_u32 s{sLW}, s{sWV}, 4")
        a("v_lshrrev_b32 v29, 2, v0"); a("v_and_b32 v31, 3, v0")
        a(f"s_mul_i32 s{sT2}, s{sLW}, 48"); a(f"v_add_u32 v{XG}, s{sT2}, v29")
        for j in (1, 2): a(f"v_add_u32 v{XG+j}, {16*j}, v{XG}")
        for j in range(3): a(f"v_mul_u32_u24 v{152+j}, 6554, v{XG+j}")
        for j in range(3): a(f"v_lshrrev_b32 v{152+j}, 16, v{152+j}")
        for j in range(3): a(f"v_and_b32 v{152+j}, 2, v{152+j}")
        for j in range(3): a(f"v_xor_b32 v{XG+j}, v{XG+j}, v{152+j}")
        for j in range(3): a(f"v_mul_u32_u24 v{XG+j}, 288, v{XG+j}")
        for j in range(3): a(f"v_lshl_add_u32 v{XG+j}, v31, 4, v{XG+j}")
        a(f"s_mul_i32 s{sXM}, s{sLW}, 3072"); a(f"s_add_u32 s{sXM}, s{sXM}, {STG}")
        a(f"s_lshl_b32 s{sM4}, s{sLW}, 12")
        a("s_waitcnt lgkmcnt(0)")
        self.stamp(6)
        self.x_srd()
        a(f"s_mul_i32 s{sT0}, s{sT0}, 288")
        for j in range(3): a(f"v_add_u32 v{XG+j}, s{sT0}, v{XG+j}")
        for j in range(3): xdma(0, j)
        self.stamp(7)
        self.mk_srd(sW, 6, 0, 15 * MAT)
        a(f"v_lshl_add_u32 v{VF+4}, v0, 4, s{sM4}")
        a(f"s_mul_i32 s{sT0}, s{sLW}, {256*3641}"); a(f"s_movk_i32 s{sT1}, 3641")
        a(f"v_mov_b32 v152, s{sT0}"); a(f"v_mad_u32_u24 v152, v0, s{sT1}, v152")
        for i in range(4):
            if i: a(f"v_add_u32 v{152+i}, {64*3641*i}, v152")
        for i in range(4): a(f"v_lshrrev_b32 v{152+i}, 15, v{152+i}")
        for i in range(4): a(f"v_and_b32 v{152+i}, 32, v{152+i}")
        for i in range(4): a(f"v_xor_b32 v{VF+i}, v{VF+4}, v{152+i}")
        a(f"s_and_b32 s{sM5}, s{sLW}, 1"); a(f"s_lshl_b32 s{sM5}, s{sM5}, 10"); a(f"s_add_u32 s{sM5}, s{sM5}, 16384")
        a(f"s_lshr_b32 s{sHALF}, s{sLW}, 1")
        a(f"v_lshl_add_u32 v{VF+4}, v0, 4, s{sM5}"); a(f"v_xor_b32 v{VF+4}, 32, v{VF+4}")
        self.stamp(8)
        ops = [f"s_mov_b32 s{sMASK}, 0xffff0000",
               "v_lshlrev_b32 v167, 1, v31", "v_xor_b32 v166, v29, v167",
               "v_lshl_add_u32 v166, v31, 4, v166", "v_lshlrev_b32 v166, 4, v166",
               f"s_lshl_b32 s{sT0}, s{sLW}, 10", f"s_sub_u32 s{sT0}, {UB1-1024}, s{sT0}", f"v_add_u32 v{UWR}, s{sT0}, v166",
               f"s_lshl_b32 s{sT0}, s{sLW}, 2", f"s_add_u32 s{sT1}, s{sT0}, {UB1}", f"v_add_u32 v{UW0}, s{sT1}, v166",
               "v_and_b32 v167, 2, v31", "v_lshlrev_b32 v167, 9, v167",
               f"v_sub_u32 v{UW0H}, v{UW0}, v167", f"v_sub_u32 v{UWRH}, v{UWR}, v167",
               ]
        ops += self.xaddr(sLW, 166, [(i, g0, XAr(i, g0)) for g0 in (0, 1) for i in ((1, 2, 3, 4) if g0 else (0, 1, 2, 3))])
        npro, nearly = cfg.get("npro", 3), cfg.get("nearly", 2)
        pp = 5 * nearly
        mix([lambda p=p: piece(*p) for p in pieces[:pp]], ops)
        if cfg.get("x1pro", 1):
            for j in range(3): xdma(1, j)
        self.stamp(9)
        wait(("x", 0))
        self.stamp(10)
        a("s_barrier")
        J0 = jobs_of(0)
        for i in (2, 4, 0): xread(0, i, 0)
        mix([lambda p=p: piece(*p) for p in pieces[pp:5 * npro]], J0[0] + J0[1]); pp = max(pp, 5 * npro)
        XR0 = [(1, 0), (3, 0), (2, 1), (3, 1)]
        self.stamp(11)
        wait(("w", 0))
        dwait(lambda t: t[0] == "w" and t[1] < 0)
        self.stamp(12)
        if cfg.get("lprio0", 3) != cfg.get("lprio", 0): a(f"s_setprio {cfg.get('lprio', 0)}")
        a("s_barrier")
        self.stamp(1)
        jobs = []
        misc = [f"s_mov_b32 s{sP+4}, 73728"]
        for r, p, n in ((sG, 14, 10 * MAT), (sWO, 8, 41472)):
            misc += [f"s_mov_b32 s{r}, s{p}", f"s_mov_b32 s{r+1}, s{p+1}", f"s_mov_b32 s{r+2}, {n}", f"s_mov_b32 s{r+3}, 0x20000"]
        misc += [f"s_mul_i32 s{sT0}, s{sGI}, 46080", (lambda: (a(f"s_add_u32 s{sO}, s10, s{sT0}"), a(f"s_addc_u32 s{sO+1}, s11, 0"))),
                 f"s_mov_b32 s{sO+2}, 46080", f"s_mov_b32 s{sO+3}, 0x20000"]
        for i in range(4): misc.append(lambda i=i: (a(f"s_cmp_ge_u32 s{sLW}, {3 if i == 0 else 2}"), a(f"s_cselect_b32 s{sP+i}, {2*73728}, s{sP+4}")))
        misc.append(f"s_mov_b32 s{sP+4}, {2*73728}")
        misc.append("v_mov_b32 v21, 0")
        xl = {n: [] for n in range(92)}; head = {n: [] for n in range(92)}; tail = {n: [] for n in range(92)}
        x1 = cfg.get("x1at", 1 if cfg.get("x1pro", 1) else 3)
        for j, (i, g0) in enumerate(XR0): head[j // 2].append(lambda i=i, g0=g0: xread(0, i, g0))
        jobs.append((misc, 0, x1 + 1))
        x2 = cfg.get("x2at", 5)
        tail[x2 - 1].append(lambda: dwait(lambda t: t[0] == "xr" and t[1] == 0))
        for kap in range(1, 10):
            f = first(kap - 1)
            if kap < 5:
                r = x1 + 1 if kap == 1 else f
                if kap > 1 and cfg.get("xthin", 0):
                    n0, n1 = (x2, cfg.get("x2end", 8)) if kap == 2 else (f - 10 + cfg.get("xs", 3), f - 10 + cfg.get("xe", 8))
                    if kap > 2: tail[n0 - 1].append(lambda c=kap: dwait(lambda t: t[0] == "xr" and t[1] == c - 2))
                    for m in range(12): xl[n0 + m * (n1 - n0 + 1) // 12].append(lambda c=kap, m=m: xdma(c, m // 4, m % 4))
                elif kap > 1 or not cfg.get("x1pro", 1):
                    for j in range(3): xl[(0 if kap == 1 else x2 if kap == 2 else f - 10) + j].append(lambda c=kap, j=j: xdma(c, j))
                tail[r - 1].append(lambda c=kap: wait(("x", c)))
                if kap == 4: jobs.append((["v_and_b32 v204, 2, v0", "v_lshlrev_b32 v204, 4, v204"] + [f"v_sub_u32 v{r}, v{r}, v204" for r in range(6, 14)], 23, 29))
                for j, (i, g0) in enumerate(XRD): head[r + j // 3].append(lambda c=kap, i=i, g0=g0: xread(c, i, g0))
                st_ = r + 1
                tg = {1: (5, 6, 8), 4: (34, 35, 37)}.get(kap, (f + 4, f + 6, f + 8))
            elif kap == 5: st_, tg = 38, (40, 41, 44)
            elif kap == 6: st_, tg = 46, (49, 50, 54)
            else: st_, tg = f - 1, (f + 3, f + cfg.get("tg1", 4), f + 7)
            for L, t in zip(jobs_of(kap), tg): jobs.append((L, st_, t))
        npoll = cfg.get("npoll", 33)

        def poll():
            a("global_load_dword v22, v21, s[12:13] sc1"); Q.append(("poll", False))

        def check():
            wait("poll")
            a(f"v_readfirstlane_b32 s{sT0}, v22"); a(f"s_cmp_lt_u32 s{sT0}, {NPROD}"); a("s_cbranch_scc1 L_spin"); a("L_gok:")
        if cfg.get("nopoll"): tail[npoll + 4].append(lambda: a("L_gok:"))
        else: xl[npoll].append(poll); tail[npoll + 4].append(check)

        def wo_dma(j):
            a(f"s_add_u32 m0, s{sT3}, {WO+4096*j}"); st8["m0"] = None
            a(f"s_add_u32 s{sOFF}, s{sT3}, {4096*j}"); st8["soff"] = None
            if j == 10: l = skip_unless(sLW, 0)
            a(f"buffer_load_dwordx4 v29, {srd(sWO)}, s{sOFF} offen lds")
            Q.append(("wo", j == 10))
            if j == 10: a(l)
        for j in range(11): xl[87 + (j + 1) // 4].append(lambda j=j: wo_dma(j))
        ZA, Z16, WA, SA, SR, GO = 216, 217, 218, 219, 220, 223
        E = ["v_lshlrev_b32 v29, 4, v0", f"s_lshl_b32 s{sT3}, s{sLW}, 10"]
        E2 = []
        b = E2.append
        b(f"s_lshr_b32 s{sT0}, s{sLW}, 1"); b(f"s_and_b32 s{sT1}, s{sLW}, 1")
        b(f"s_mul_i32 s{sT2}, s{sT0}, 4608")
        b(f"v_lshlrev_b32 v166, 4, v0"); b(f"v_add_u32 v{ZA}, s{sT2}, v166")
        b(f"s_add_u32 s{sT2}, s{sT2}, 4096"); b(f"v_lshlrev_b32 v166, 3, v0"); b(f"v_add_u32 v{Z16}, s{sT2}, v166")
        b(f"s_mul_i32 s{sT1}, s{sT1}, 160")
        b("v_lshrrev_b32 v166, 2, v0"); b("v_mul_u32_u24 v166, 288, v166")
        b("v_and_b32 v167, 3, v0"); b("v_lshl_add_u32 v166, v167, 3, v166")
        b(f"s_add_u32 s{sT2}, s{sT1}, {WO}"); b(f"v_add_u32 v{WA}, s{sT2}, v166")
        b("v_and_b32 v166, 15, v0"); b(f"v_mul_u32_u24 v166, {STROW}, v166")
        b("v_lshrrev_b32 v167, 4, v0"); b("v_lshl_add_u32 v166, v167, 3, v166")
        b(f"s_mul_i32 s{sT2}, s{sT0}, {16*STROW}"); b(f"s_add_u32 s{sT2}, s{sT2}, s{sT1}"); b(f"s_add_u32 s{sT2}, s{sT2}, {ST}")
        b(f"v_add_u32 v{SA}, s{sT2}, v166")
        for m in range(3):
            if m < 2: b(f"s_lshl_b32 s{sT0}, s{sLW}, 6"); b(f"s_add_u32 s{sT0}, s{sT0}, {256*m}")
            else: b(f"s_mov_b32 s{sT0}, 512")
            b(f"v_add_u32 v166, s{sT0}, v0")
            b("v_mul_u32_u24 v167, 3641, v166"); b("v_lshrrev_b32 v167, 16, v167")
            b("v_mul_u32_u24 v168, 18, v167"); b("v_sub_u32 v166, v166, v168"); b("v_lshlrev_b32 v166, 4, v166")
            b(f"v_mul_u32_u24 v168, {STROW}, v167"); b("v_add_u32 v168, v168, v166"); b(f"v_add_u32 v{SR+m}, {ST}, v168")
            b("v_bfe_u32 v168, v167, 1, 3"); b("v_mul_u32_u24 v168, 20, v168")
            b("v_lshrrev_b32 v169, 4, v167"); b("v_mul_u32_u24 v169, 10, v169"); b("v_add_u32 v168, v168, v169")
            b("v_and_b32 v169, 1, v167"); b("v_add_u32 v168, v168, v169")
            b("v_mul_u32_u24 v168, 288, v168"); b(f"v_add_u32 v{GO+m}, v168, v166")
        jobs.append((E, 85, 86)); jobs.append((E2, 86, 91))
        flat = [(x, j) for j, jb in enumerate(jobs) for x in jb[0]]
        p2 = cfg.get("prof2")

        def st2(n, k):
            if p2:
                r = 50 + 6 * (n & 1) + 2 * k
                a(f"s_memtime s[{r}:{r+1}]")

        def sv2(n):
            if p2 and n >= 0:
                for k in range(3): a(f"v_writelane_b32 v{210+2*k+n//64}, s{50+6*(n&1)+2*k}, {n%64}")
        fp = 0
        rate = cfg.get("rate", 6)
        for n in range(92):
            st2(n, 0)
            ents = []
            while pp < len(pieces) and pieces[pp][0] <= n + cfg.get('dist', 3) and len(ents) < rate:
                ents.append(lambda p=pieces[pp]: piece(*p)); pp += 1
            ents += xl[n]
            cur[0] = n
            need_ = 0; cum = 0
            for j, jb in enumerate(jobs):
                rem = sum(1 for x, jj in flat[fp:] if jj == j)
                if not rem: continue
                cum += rem
                need_ = max(need_, -(-cum // max(1, jb[2] - n + 1)))
            ops = []
            while len(ops) < need_ and fp < len(flat) and jobs[flat[fp][1]][1] <= n:
                ops.append(flat[fp][0]); fp += 1
            if cfg.get("drop") and n < 85:
                dr = dict(w=["ds_write"], v=["v_cvt", "v_sub_f32", "v_add_f32", "v_lshlrev_b32 v15", "v_lshlrev_b32 v16", "v_and_b32 v15", "v_and_b32 v16"])[cfg["drop"]]
                ops = [x for x in ops if callable(x) or not any((x[0] if isinstance(x, tuple) else x).startswith(p) for p in dr)]
            if cfg.get("verbose"): print("interval", n, "ents", len(ents), "ops", len(ops))
            mix(ents, ops, head[n], True)
            assert all(x[1] > n for x in pend), (n, pend)
            for j, jb in enumerate(jobs):
                if jb[2] <= n: assert not any(jj == j for x, jj in flat[fp:]), (n, j)
            sv2(n - 1)
            st2(n, 1)
            if n + 1 <= 91:
                assert pp == len(pieces) or pieces[pp][0] > n + 1
                wait(("w", n + 1))
            for f in tail[n]: f()
            if n == 91: wait("wo"); assert not Q and not pend
            dwait(lambda t: t[0] == "w" and t[1] <= n)
            st2(n, 2)
            a("s_barrier")
        if p2:
            a("s_waitcnt lgkmcnt(0)"); sv2(91)
            a(f"s_add_u32 s{sG}, s14, 0x200000"); a(f"s_addc_u32 s{sG+1}, s15, 0"); a(f"s_mov_b32 s{sG+2}, 0x200000")
            a(f"s_lshl_b32 s{sT0}, s2, 2"); a(f"s_add_u32 s{sT0}, s{sT0}, s{sLW}"); a(f"s_lshl_b32 s{sT0}, s{sT0}, 11")
            a("v_lshlrev_b32 v166, 2, v0")
            for k in range(6): a(f"buffer_store_dword v{210+k}, v166, {srd(sG)}, s{sT0} offen offset:{256*k}")
        self.stamp(3)
        AF = lambda i, k: 32 + 18 * i + 4 * k
        AC, BF, CV, SD = 124, 144, 164, 176
        for i in range(5):
            for k in range(5):
                a(f"ds_read_b64_tr_b16 {vr(AF(i,k),2)}, v{WA} offset:{k*9216+i*32}")
                if k < 4: a(f"ds_read_b64_tr_b16 {vr(AF(i,k)+2,2)}, v{WA} offset:{k*9216+4608+i*32}")
        a(f"s_and_b32 s{sHALF}, s{sLW}, 1")
        if cfg.get("eprio", 2): a(f"s_setprio {cfg.get('eprio', 2)}")

        epx = cfg.get("epx", 0)

        def stage_out(q):
            if epx & 4: return 0
            for j in range(3): a(f"ds_read_b128 {vr(SD+4*j)}, v{SR+j} offset:{q*STBUF}")
            return 3

        def stage_store(q):
            if epx & 2: return
            sm = self.cfg.get("stmod", " sc1 nt")
            a(f"buffer_store_dwordx4 {vr(SD)}, v{GO}, {srd(sO)}, 0 offen offset:{576*q}{sm}")
            a(f"buffer_store_dwordx4 {vr(SD+4)}, v{GO+1}, {srd(sO)}, 0 offen offset:{576*q}{sm}")
            l = skip_unless(sLW, 0)
            a(f"buffer_store_dwordx4 {vr(SD+8)}, v{GO+2}, {srd(sO)}, 0 offen offset:{576*q}{sm}")
            a(l)

        def mm(i, k):
            if epx & 1: return
            n2 = 4 if k < 4 else 2
            opn = "v_mfma_f32_16x16x32_bf16" if k < 4 else "v_mfma_f32_16x16x16_bf16"
            a(f"{opn} {vr(AC+4*i)}, {vr(AF(i,k),n2)}, {vr(BF+4*k,n2)}, {vr(AC+4*i) if k != 4 else 0}")

        def fin(i, q):
            if epx & 4: return
            a(f"v_cvt_pk_bf16_f32 v{CV+2*i}, v{AC+4*i}, v{AC+4*i+1}"); a(f"v_cvt_pk_bf16_f32 v{CV+2*i+1}, v{AC+4*i+2}, v{AC+4*i+3}")
            a(f"ds_write_b64 v{SA}, {vr(CV+2*i,2)} offset:{q*STBUF+32*i}")

        def fin_all(q):
            l = skip_unless(sHALF, 0)
            fin(4, q)
            a(l)
            for i in range(4): fin(i, q)
            return 0 if epx & 4 else 4
        KO = (4, 0, 1, 2, 3)
        for q in range(5):
            a("s_waitcnt lgkmcnt(0)")
            a("s_barrier")
            a(f"ds_read_b64 {vr(BF+16,2)}, v{Z16} offset:{q*9216}")
            for k in range(4): a(f"ds_read_b128 {vr(BF+4*k)}, v{ZA} offset:{q*9216+k*1024}")
            nr = stage_out(q - 2) if q >= 2 else 0
            nw = fin_all(q - 1) if q >= 1 else 0
            for j, k in enumerate(KO):
                a(f"s_waitcnt lgkmcnt({4-j+nr+nw})")
                for i in range(5 if k == 4 else 4): mm(i, k)
                if j == 1 and q >= 2:
                    a(f"s_waitcnt lgkmcnt({nw})")
                    stage_store(q - 2)
                if j == 2 and q == 4:
                    a("s_waitcnt lgkmcnt(0)")
                    a("s_barrier")
                    stage_out(3)
            l = skip_unless(sHALF, 0)
            for k in KO[1:]: mm(4, k)
            a(l)
        a("s_waitcnt lgkmcnt(0)")
        stage_store(3)
        for i in range(4): fin(i, 4)
        l = skip_unless(sHALF, 0)
        fin(4, 4)
        a(l)
        a("s_waitcnt lgkmcnt(0)")
        a("s_barrier")
        stage_out(4)
        a("s_waitcnt lgkmcnt(0)")
        stage_store(4)
        if self.prof:
            self.stamp(4)
            a("s_waitcnt vmcnt(0)")
            self.stamp(5)
            self.stamp(15, True)
            a(f"s_cmp_lg_u32 s{sLW}, 0"); a("s_cbranch_scc1 L_lend")
            self.dump_stamps(64)
            a("L_lend:")
        a("s_endpgm")
        a("L_spin:")
        if cfg.get("spinmax"): a(f"s_mov_b32 s{sT1}, 0")
        a("L_spin2:")
        if cfg.get("spinmax"):
            a(f"s_add_u32 s{sT1}, s{sT1}, 1"); a(f"s_cmp_ge_u32 s{sT1}, {cfg['spinmax']}"); a("s_cbranch_scc1 L_gok")
        a("global_load_dword v22, v21, s[12:13] sc1")
        a("s_waitcnt vmcnt(0)")
        a(f"v_readfirstlane_b32 s{sT0}, v22"); a(f"s_cmp_lt_u32 s{sT0}, {NPROD}"); a("s_cbranch_scc1 L_spin2")
        a("s_branch L_gok")

    def producer(self):
        a = self.a; cfg = self.cfg
        a("L_prod:")
        if cfg.get("hexit"): a("s_endpgm")
        a(f"s_lshr_b32 s{sT3}, s2, 3")
        a(f"s_lshl_b32 s{sT0}, s{sWV}, 6"); a(f"v_add_u32 v40, s{sT0}, v0")
        a("v_and_b32 v41, 255, v40")
        a(f"s_cmp_lt_u32 s{sWV}, 4"); a("s_cbranch_scc1 L_pnocode")
        NL = f"((L_code_end-{KN})/128/7+1)"
        a(f"s_mul_i32 s{sT0}, s{sT3}, {NL}"); a(f"v_min_u32 v42, {NL}-1, v41"); a(f"v_add_u32 v42, s{sT0}, v42")
        a("v_lshlrev_b32 v42, 7, v42"); a(f"v_min_u32 v42, L_code_end-{KN}-4, v42")
        a(f"global_load_dword v50, v42, s[{sPC}:{sPC+1}]")
        a("L_pnocode:")
        a(f"s_mul_i32 s{sT1}, s{sT3}, 206"); a(f"v_min_u32 v41, 205, v41"); a(f"v_add_u32 v41, s{sT1}, v41")
        a("v_mul_u32_u24 v42, 29128, v41"); a("v_lshrrev_b32 v42, 22, v42")
        a("v_mul_u32_u24 v43, 64512, v42"); a("v_lshl_add_u32 v41, v41, 7, v43")
        a("v_cmp_le_u32 vcc, 5, v42")
        a("v_mov_b32 v43, 0"); a(f"v_mov_b32 v44, {5*MAT}")
        a("v_cndmask_b32 v43, v43, v44, vcc"); a("v_add_u32 v41, v41, v43")
        a("s_mul_i32 s3, s2, 464"); a("v_add_u32 v1, s3, v40")
        a("s_add_u32 s3, s3, 464"); a("s_min_u32 s3, s3, 25920")
        a("v_cmp_gt_u32 vcc, s3, v1")
        a("v_lshlrev_b32 v1, 4, v1"); a(f"v_mov_b32 v2, {OOB:#x}")
        a("v_cndmask_b32 v1, v2, v1, vcc")
        a(f"s_mov_b32 s{sMASK}, 0xffff0000")
        a(f"s_mov_b32 s{sT0}, {5*MAT}"); a(f"s_mov_b32 s{sT1}, {10*MAT}")
        a("s_waitcnt lgkmcnt(0)")
        self.mk_srd(sW, 6, 0, 15 * MAT)
        a(f"s_cmp_ge_u32 s{sWV}, 4"); a("s_cbranch_scc1 L_pnow")
        a(f"buffer_load_dword v50, v41, {srd(sW)}, 0 offen")
        a("L_pnow:")
        self.mk_srd(sG, 14, 0, 10 * MAT); self.mk_srd(sX, 4, 0, 2 * 4608000); self.mk_srd(sWO, 8, 0, 41472)
        a(f"v_mul_u32_u24 v42, 7, v40"); a(f"v_add_u32 v42, s{sT3}, v42")
        a("v_mul_u32_u24 v43, 10923, v42"); a("v_lshrrev_b32 v43, 20, v43")
        a("v_mul_u32_u24 v44, 96, v43"); a("v_sub_u32 v44, v42, v44")
        a("v_cmp_gt_u32 vcc, 2400, v42")
        a(f"v_mul_u32_u24 v43, {46080 if cfg.get('xmap', 1) else 8*46080}, v43"); a("v_lshrrev_b32 v45, 1, v44"); a("v_mul_u32_u24 v45, 1152, v45"); a("v_add_u32 v43, v43, v45")
        a(f"s_and_b32 s{sT2}, s2, 7"); a(f"s_mul_i32 s{sT2}, s{sT2}, {25*46080 if cfg.get('xmap', 1) else 46080}"); a(f"s_sub_u32 s{sT2}, s{sT2}, {32*288}")
        a(f"v_add_u32 v43, s{sT2}, v43"); a("v_and_b32 v44, 1, v44")
        a("v_lshl_add_u32 v45, v44, 8, v43"); a("v_add_u32 v45, 384, v45"); a("v_cndmask_b32 v45, v2, v45, vcc")
        a("v_mul_u32_u24 v44, 896, v44"); a("v_add_u32 v46, v43, v44"); a("v_add_u32 v46, 128, v46"); a("v_cndmask_b32 v46, v2, v46, vcc")
        a(f"s_mul_i32 s{sT2}, s{sT3}, 47"); a("v_min_u32 v47, 46, v40"); a(f"v_add_u32 v47, s{sT2}, v47"); a("v_lshlrev_b32 v47, 7, v47")
        a(f"s_mul_i32 s{sT2}, s{sT3}, 926"); a(f"v_add_u32 v48, s{sT2}, v40"); a("v_min_u32 v49, 413, v40"); a(f"v_add_u32 v49, s{sT2}, v49")
        a("v_lshlrev_b32 v48, 7, v48"); a("v_lshlrev_b32 v49, 7, v49"); a("v_add_u32 v49, 0x10000, v49")
        hx, hw, hd = cfg.get("hx", 2), cfg.get("hw", 1), cfg.get("hd", 3)
        a(f"s_lshr_b32 s{sT2}, s{sWV}, 2"); a(f"s_mul_i32 s{sT2}, s{sT2}, {SLOT}"); a(f"s_add_u32 s{sT2}, s{sT2}, {SLOT}")
        a(f"s_add_u32 s{sT3}, s{sT2}, {2*SLOT}")
        if hd & 1: a("s_waitcnt vmcnt(0)")
        if hw: a(f"buffer_load_dword v50, v41, {srd(sW)}, s{sT2} offen")
        a(f"buffer_load_dword v50, v47, {srd(sWO)}, 0 offen")
        if hd & 2: a("s_waitcnt vmcnt(0)")
        if not cfg.get("noprod"):
            a(f"buffer_load_dwordx4 v[4:7], v1, {srd(sW)}, 0 offen")
            a(f"buffer_load_dwordx4 v[8:11], v1, {srd(sW)}, s{sT0} offen")
            a(f"buffer_load_dwordx4 v[12:15], v1, {srd(sW)}, s{sT1} offen")
        nt = 0
        if hx & 1: a(f"buffer_load_dword v50, v45, {srd(sX)}, 0 offen"); nt += 1
        if hx & 2: a(f"buffer_load_dword v50, v46, {srd(sX)}, 0 offen"); nt += 1
        a(f"s_waitcnt vmcnt({nt})")
        for d in range(4):
            for j, s in enumerate((4, 8, 12)):
                a(f"v_lshlrev_b32 v{24+2*j}, 16, v{s+d}"); a(f"v_and_b32 v{25+2*j}, s{sMASK}, v{s+d}")
            a("v_add_f32 v24, v24, v28"); a("v_add_f32 v25, v25, v29")
            a("v_add_f32 v28, v24, v26"); a("v_add_f32 v29, v25, v27")
            a("v_sub_f32 v24, v24, v26"); a("v_sub_f32 v25, v25, v27")
            a(f"v_cvt_pk_bf16_f32 v{16+d}, v28, v29"); a(f"v_cvt_pk_bf16_f32 v{20+d}, v24, v25")
        if not cfg.get("noprod"):
            a(f"buffer_store_dwordx4 v[16:19], v1, {srd(sG)}, 0 offen sc1")
            a(f"buffer_store_dwordx4 v[20:23], v1, {srd(sG)}, s{sT0} offen sc1")
        a("s_waitcnt vmcnt(0)")
        a("s_barrier")
        a("v_mov_b32 v1, 0"); a("v_mov_b32 v2, 1")
        a(f"s_cmp_lg_u32 s{sWV}, 0"); a("s_cbranch_scc1 L_pnoat")
        a("s_mov_b64 exec, 1")
        if not cfg.get("hnoatom"): a("global_atomic_add v3, v1, v2, s[12:13] sc0 sc1")
        a("s_mov_b64 exec, -1")
        a("s_waitcnt vmcnt(0)")
        a("L_pnoat:")
        if hw: a(f"buffer_load_dword v50, v41, {srd(sW)}, s{sT3} offen")
        a(f"s_cmp_lg_u32 s{sWV}, 0"); a("s_cbranch_scc1 L_pwait")
        a("s_waitcnt vmcnt(0)")
        a("L_ppoll:")
        if cfg.get("hnopoll"): a("s_branch L_pwait")
        if cfg.get("spinmax"): a(f"s_mov_b32 s{sT1}, 0")
        a("L_ppoll2:")
        if cfg.get("spinmax"):
            a(f"s_add_u32 s{sT1}, s{sT1}, 1"); a(f"s_cmp_ge_u32 s{sT1}, {cfg['spinmax']}"); a("s_cbranch_scc1 L_pwait")
        a("global_load_dword v3, v1, s[12:13] sc1")
        a("s_waitcnt vmcnt(0)")
        a(f"v_readfirstlane_b32 s{sT0}, v3"); a(f"s_cmp_lt_u32 s{sT0}, {NPROD}"); a("s_cbranch_scc1 L_ppoll2")
        a("L_pwait:")
        a("s_barrier")
        if cfg.get("hg", 1):
            a(f"buffer_load_dword v50, v48, {srd(sG)}, 0 offen sc1")
            a(f"buffer_load_dword v50, v49, {srd(sG)}, 0 offen sc1")
        a("s_waitcnt vmcnt(0)")
        a("L_exit:")
        a("s_endpgm")

    def build(self):
        a = self.a
        a(f"s_getpc_b64 s[{sPC}:{sPC+1}]")
        a("s_load_dwordx8 s[4:11], s[0:1], 0")
        a("s_load_dwordx4 s[12:15], s[0:1], 32")
        a(f"s_sub_u32 s{sPC}, s{sPC}, 4"); a(f"s_subb_u32 s{sPC+1}, s{sPC+1}, 0")
        a("v_lshrrev_b32 v1, 6, v0")
        a(f"s_sub_u32 s{sGI}, s2, {NHELP}")
        if self.cfg.get("xmap", 1):
            a(f"s_and_b32 s3, s2, 7"); a(f"s_mul_i32 s3, s3, 25"); a(f"s_lshr_b32 s{sGI}, s{sGI}, 3"); a(f"s_add_u32 s{sGI}, s{sGI}, s3")
        a(f"v_readfirstlane_b32 s{sWV}, v1")
        a("v_and_b32 v0, 63, v0")
        if self.prof:
            a(f"s_memtime s[{sTS}:{sTS+1}]"); a(f"s_memrealtime s[{sTS+14}:{sTS+15}]")
        a(f"s_cmp_lt_u32 s2, {NHELP}"); a("s_cbranch_scc1 L_prod")
        a(f"s_cmp_ge_u32 s2, {NHELP+NMAIN}"); a("s_cbranch_scc1 L_exit")
        a(f"s_cmp_ge_u32 s{sWV}, 4"); a("s_cbranch_scc1 L_loader")
        self.compute_prologue()
        self.producer()
        a(".p2align 6")
        self.loader()
        for w in range(4): self.compute_main(w)
        self.compute_epilogue()
        a("L_code_end:")
        nn = a.fix(verbose=self.cfg.get("verbose", False))
        hdr = open("standalone__autoregressive_conv_wavenet__speech.s.ref").read().split("\n")
        i0 = next(i for i, x in enumerate(hdr) if x.startswith("; @launch"))
        i1 = next(i for i, x in enumerate(hdr) if x.startswith(KN + ":"))
        i2 = next(i for i, x in enumerate(hdr) if x.startswith(".section .rodata"))
        hdr[i0] = f"; @launch grid=({NHELP+NMAIN},1,1) block=(512,1,1) lds={LDS}"
        txt = "\n".join(hdr[:i1 + 1]) + "\n" + a.text() + "\n".join(hdr[i2:]) + "\n"
        return txt, nn


if __name__ == "__main__":
    assert all((i * 3641) >> 20 == i // 288 for i in range(1152))
    assert all((i * 10923) >> 20 == i // 96 for i in range(2400))
    assert all((i * 3641) >> 16 == i // 18 for i in range(640))
    assert all((i * 29128) >> 22 == i // 144 for i in range(1500))
    assert all((i * 6554) >> 16 == i // 10 for i in range(192))
    out = sys.argv[1]
    cfg = {}
    for x in sys.argv[2:]:
        k, v = x.split("=", 1)
        try: v = int(v)
        except ValueError: pass
        cfg[k] = v
    txt, nn = Gen(prof=bool(cfg.get("prof", 0)), cfg=cfg).build()
    open(out, "w").write(txt)
    print(out, "lines", txt.count("\n"), "hazard nops", nn)
```

```python
import sys, struct
from asmlib import Asm

KN = "standalone__autoregressive_conv_wavenet__speech_kernel"
NPROD, NHELP, NMAIN = 56, 56, 200
SLOT, MAT = 18432, 82944
UB1, UB0 = 92160, 111616
UXOR = UB0 ^ UB1
WO, LDS = 121856, 163840
ST, STROW, STBUF, EX = 46080, 304, 9728, 98304
OOB = 0x80000000
STG, STGB = 131072, 12288
LOG2E = 1.4426950408889634


def f2u(f):
    return struct.unpack("<I", struct.pack("<f", f))[0]


def vr(b, n=4):
    return f"v[{b}:{b+n-1}]"


def build_steps():
    S = []
    for c in range(4):
        for s in range(10):
            S.append(dict(kind="full", src="W", soff=(s if s < 5 else s + 5) * MAT + c * SLOT, acc="Q" if s < 5 else "P",
                          kap=c, idx=[10 - (q - s + 5) for q in range(5)]))
    for kind, mat, acc, e0 in [("pair", 0, "Q", 5), ("pair", 2, "Q", 3), ("k16", 4, "Q", 1), ("pair", 10, "P", 0), ("pair", 12, "P", -2), ("k16", 14, "P", -4)]:
        S.append(dict(kind=kind, src="W", soff=mat * MAT, acc=acc, kap=4, idx=[10 - (q + e0) for q in range(5)]))
    for c in range(4):
        for s in range(10):
            S.append(dict(kind="full", src="G", soff=s * MAT + c * SLOT, acc="P" if s < 5 else "Q",
                          kap=5 + c, idx=[(5 if s < 5 else 14) - (q - s % 5) for q in range(5)]))
    for kind, mat, acc, e0 in [("pair", 0, "P", 0), ("pair", 2, "P", -2), ("k16", 4, "P", -4), ("pair", 5, "Q", 0), ("pair", 7, "Q", -2), ("k16", 9, "Q", -4)]:
        S.append(dict(kind=kind, src="G", soff=mat * MAT, acc=acc, kap=9, idx=[(5 if acc == "P" else 14) - (q + e0) for q in range(5)]))
    for n, s in enumerate(S):
        s["n"] = n; s["slot"] = n % 5
        s["keys"] = [(s["kap"], i, s["kind"] == "k16") for i in s["idx"]]
    return S


STEPS = build_steps()

sX, sW, sG, sO, sWO = 16, 20, 24, 28, 32
sWV, sGI, sLW = 36, 37, 38
sCNT, sT0, sT1, sT2, sT3 = 40, 41, 42, 43, 44
sM4, sM5, sHALF, sOFF = 46, 47, 48, 49
sCF, sCG, sCX, sONE, sM2, sTWO = 50, 52, 54, 56, 58, 60
sPC = 62
sMASK, sKU = 65, 66
BIAS = 24
sTS = 68


def srd(r):
    return f"s[{r}:{r+3}]"


vE, vO, vEh, vOh, vUA, vU16, vT, vE16, vO16 = 1, 2, 3, 4, 5, 6, 7, 18, 19
WB = dict(Fa=20, Ga=24, F8=28, G8=32, Fb=36, Gb=40)
UBUF = [44 + 4 * i for i in range(7)]
COL = dict(Fa=0, Ga=1, Fb=2, Gb=3)


def acc(name, q, which):
    t = COL[name] * 5 + q if name in COL else dict(F8=20, G8=21, X=22)[name]
    return 72 + 8 * t + (0 if which == "P" else 4)


class Gen:
    def __init__(self, prof=False, cfg=None):
        self.a = Asm(); self.prof = prof; self.cfg = cfg or {}
        self.nst = 0

    def stamp(self, i, real=False):
        if self.prof:
            self.a(f"s_memtime s[96:97]" if not real else f"s_memrealtime s[96:97]")
            self.a("s_waitcnt lgkmcnt(0)")
            self.a(f"s_mov_b32 s{sTS+i}, s96")

    def dump_stamps(self, off):
        if not self.prof: return
        a = self.a
        a(f"s_add_u32 s{sT0}, s14, 0x100000"); a(f"s_addc_u32 s{sT1}, s15, 0")
        a(f"s_mov_b32 s{sG}, s{sT0}"); a(f"s_mov_b32 s{sG+1}, s{sT1}"); a(f"s_mov_b32 s{sG+2}, 0x100000"); a(f"s_mov_b32 s{sG+3}, 0x20000")
        a(f"s_lshl_b32 s{sT0}, s2, 7"); a(f"s_add_u32 s{sT0}, s{sT0}, {off}")
        for i in range(16): a(f"v_mov_b32 v{8+i}, s{sTS+i}")
        a(f"v_mov_b32 v1, s{sT0}")
        a("s_mov_b64 exec, 1")
        for i in range(4): a(f"buffer_store_dwordx4 {vr(8+4*i)}, v1, {srd(sG)}, 0 offen offset:{16*i}")
        a("s_waitcnt vmcnt(0)")
        if self.cfg.get("dbg"):
            a("v_mov_b32 v1, 0")
            if off:
                a(f"v_mov_b32 v2, s{sTS+15}"); a(f"v_not_b32 v3, s{sTS+14}")
                a("global_atomic_umax v1, v2, s[12:13] offset:20 sc1"); a("global_atomic_umax v1, v3, s[12:13] offset:24 sc1")
            a("s_cmp_lg_u32 s2, 156"); a(f"s_cbranch_scc1 L_nodbg{off}")
            for j, m in enumerate((6, 10, 1, 3, 5, 15) if off else (1, 2, 3, 4)):
                a(f"s_sub_u32 s{sT0}, s{sTS+m}, s{sTS+(14 if m == 15 else 0)}"); a(f"v_mov_b32 v2, s{sT0}")
                a(f"global_store_dword v1, v2, s[12:13] offset:{(32 if off else 4)+4*j}")
            a(f"L_nodbg{off}:")
            a("s_waitcnt vmcnt(0)")

    def wread(self, w, name, st):
        T = dict(Fa=2 * w, Fb=2 * w + 1, Ga=9 + 2 * w, Gb=10 + 2 * w, F8=8, G8=17)[name]
        hi = st["slot"] >= 3
        base = (vO if T & 1 else vE) + (2 if hi else 0)
        off = st["slot"] * SLOT - (3 * SLOT if hi else 0) + 32 * T
        b = WB[name]
        if st["kind"] == "k16":
            assert st["slot"] <= 3
            base = vO16 if T & 1 else vE16
            off = st["slot"] * SLOT + 32 * T
        L = [f"ds_read_b64_tr_b16 {vr(b,2)}, v{base} offset:{off}"]
        if st["kind"] != "k16":
            L.append(f"ds_read_b64_tr_b16 {vr(b+2,2)}, v{base} offset:{off+2304}")
        return [(x, ("W", name, st["n"])) for x in L]

    def uread(self, key, buf):
        kap, idx, k16 = key
        if k16:
            ub = UB1 if kap & 1 else UB0
            return (f"ds_read_b64 {vr(UBUF[buf],2)}, v{vU16} offset:{ub-UB1+idx*1024}", ("U", key))
        return (f"ds_read_b128 {vr(UBUF[buf])}, v{vUA} offset:{idx*1024}", ("U", key))

    def emit_step(self, w, st, nxt, S, force=None, extra_gb=None, out=None):
        e = out.append
        Q = S["queue"]; umap = S["umap"]
        k16 = st["kind"] == "k16"
        n2 = 2 if k16 else 4
        opn = "v_mfma_f32_16x16x16_bf16" if k16 else "v_mfma_f32_16x16x32_bf16"

        AG = S.setdefault("age", {})
        mrg = self.cfg.get("mrg", 99); cap0 = self.cfg.get("cap", 2)

        def waitfor(keys):
            pos = -1
            for i, k in enumerate(Q):
                if k in keys: pos = i
            if pos < 0: return None
            while pos + 1 < len(Q) and AG[len(Q) - 2 - pos] >= mrg: pos += 1
            return len(Q) - 1 - pos, pos

        def dowait(keys):
            r = waitfor(keys)
            if r is None: return
            e(f"s_waitcnt lgkmcnt({min(15, r[0])})")
            del Q[:r[1] + 1]
            for i in list(AG):
                if i >= len(Q): del AG[i]

        def push(k):
            Q.append(k)
            for i in range(len(Q) - 1, 0, -1): AG[i] = AG[i - 1]
            AG[0] = 0

        def run(ms, loads, last_cap, pre=0):
            loads = list(loads)
            for i, (an, q, wn) in enumerate(ms):
                uk = st["keys"][q]
                dowait({("W", wn, st["n"]), ("U", uk)} | ({("W", "Fb", st["n"]), ("W", "Gb", st["n"])} if pre and i == len(ms) - pre else set()))
                d = acc(an, q, st["acc"])
                e(f"{opn} {vr(d)}, {vr(WB[wn], n2)}, {vr(UBUF[umap[uk]], n2)}, {vr(d)}")
                for j in AG: AG[j] += 1
                cap = cap0
                if len(loads) > len(ms) - last_cap - i: cap = 2
                if i + 1 < len(ms):
                    an2, q2, wn2 = ms[i + 1]
                    if waitfor({("W", wn2, st["n"]), ("U", st["keys"][q2])}) is not None: cap = min(cap, 1) if cap0 == 2 or self.cfg.get("capw", 1) else cap - 1
                else:
                    cap -= 1
                j = 0
                while cap > 0 and j < len(loads):
                    if loads[j][2] <= i:
                        t, k, _ = loads.pop(j)
                        e(t)
                        if k is not None: push(k)
                        cap -= 1
                    else:
                        j += 1
            for t, k, _ in loads:
                e(t)
                if k is not None: push(k)

        ga = [(c, q, c) for q in (4, 3, 2, 1, 0) for c in ("Fa", "Ga")]
        gs = [("F8", w, "F8"), ("G8", w, "G8")]
        if w == 0: gs.append(("X", 4, "F8"))
        if w == 1: gs.append(("X", 4, "G8"))
        gb = [(c, q, c) for q in (4, 3, 2, 1, 0) for c in ("Fb", "Gb")]
        la = [(t, k, 0) for nm in ("F8", "G8") for t, k in self.wread(w, nm, st)]
        la += [(t, k, 2) for nm in ("Fb", "Gb") for t, k in self.wread(w, nm, st)]
        run(ga + gs, la, self.cfg.get('lca', 4), self.cfg.get('wpre', 0))
        dowait({("W", "Fb", st["n"]), ("W", "Gb", st["n"])})
        assert not Q
        e("s_barrier")
        lb = []
        if nxt is not None:
            if nxt["kap"] != st["kap"]:
                e(f"v_xor_b32 v{vUA}, {UXOR:#x}, v{vUA}")
            cur = st["keys"]
            keep = set(cur) | set(nxt["keys"])
            for k in list(umap):
                if k not in keep: del umap[k]
            freeat = {b: 0 for b in range(7) if b not in umap.values()}
            for q in range(5):
                if cur[q] not in nxt["keys"]:
                    freeat[umap[cur[q]]] = 2 * (4 - q) + 1
            newm = {}
            ul = []
            for q in (4, 3, 2, 1, 0):
                k = nxt["keys"][q]
                if k in umap: continue
                if force is not None:
                    b = force(k)
                    assert b in freeat, (st["n"], k, b, umap, freeat)
                else:
                    b = min(freeat, key=lambda x: (freeat[x], x))
                t, kk = self.uread(k, b)
                ul.append((2 * (4 - q), t, kk, freeat.pop(b)))
                newm[k] = b
            fa = self.wread(w, "Fa", nxt); gaa = self.wread(w, "Ga", nxt)
            allr = [(0, t, k, 0) for t, k in fa] + [(1, t, k, 0) for t, k in gaa] + ul
            allr.sort(key=lambda x: x[0])
            lb = [(t, k, g) for _, t, k, g in allr]
        if extra_gb:
            lb += [(t, None, 6) for t in extra_gb]
        run(gb, lb, self.cfg.get('lcb', 3))
        if nxt is not None:
            for k in list(umap):
                if k not in nxt["keys"]: del umap[k]
            umap.update(newm)

    @staticmethod
    def shift_state(S, dn, dk):
        q = []
        for k in S["queue"]:
            if k[0] == "W": q.append(("W", k[1], k[2] + dn))
            else: q.append(("U", (k[1][0] + dk, k[1][1], k[1][2])))
        return dict(queue=q, umap={(k[0] + dk, k[1], k[2]): b for k, b in S["umap"].items()}, age=dict(S.get("age", {})))

    def al8(self, L):
        m = self.cfg.get("al8", 0)
        if not m: return L
        out = []; par = 0
        for x in L:
            sz = 4 if x.startswith("s_") else 8
            if sz == 8 and par != (m - 1) * 4:
                out.append("s_nop 0"); par ^= 4
            out.append(x); par = (par + sz) % 8
        if par: out.append("s_nop 0")
        return out

    def phase(self, w, n0, force, S0, hooks):
        a = self.a
        lab = f"L_c{w}_{n0}"
        Send = dict(queue=[], umap=dict(S0), age={})
        for it in range(5):
            S = dict(queue=list(Send["queue"]), umap=dict(Send["umap"]), age=dict(Send["age"]))
            body = []
            for n in range(n0, n0 + 10):
                ex = [f"s_add_u32 s{sCNT}, s{sCNT}, 1", f"s_cmp_lt_u32 s{sCNT}, {3 if hooks else 4}"] if n == n0 + 9 else None
                self.emit_step(w, STEPS[n], STEPS[n + 1], S, force, ex, body)
            chk = self.shift_state(S, -10, -1)
            assert chk["umap"] == S0
            if chk == Send: break
            Send = chk
        assert chk == Send
        a(f"s_mov_b32 s{sCNT}, 0")
        a(".p2align 3")
        a(lab + ":")
        for x in self.al8(body): a(x)
        if hooks:
            a(f"s_cbranch_scc1 {lab}_hook")
            a(f"s_cmp_lt_u32 s{sCNT}, 4")
        a(f"s_cbranch_scc1 {lab}")
        S = self.shift_state(S, 30, 3)
        return S, lab

    def compute_main(self, w):
        a = self.a
        a(".p2align 6")
        a(f"L_cw{w}:")
        fA = lambda k: (k[1] - 1) % 7
        fB = lambda k: (k[1] - 1) % 6
        st0 = STEPS[0]
        S0 = {k: fA(k) for k in st0["keys"]}
        a("s_barrier")
        self.stamp(1)
        for nm in ("Fa", "Ga"):
            for t, _ in self.wread(w, nm, st0): a(t)
        for q in (4, 3, 2, 1, 0):
            a(self.uread(st0["keys"][q], S0[st0["keys"][q]])[0])
        a("s_waitcnt lgkmcnt(0)")
        S, labA = self.phase(w, 0, fA, S0, False)
        out = []
        for n in range(40, 46):
            self.emit_step(w, STEPS[n], STEPS[n + 1], S, fB if n == 45 else None, None, out)
        if self.cfg.get("al8"): a("s_nop 0")
        for x in self.al8(out): a(x)
        self.stamp(2)
        tiles = [COL["Fa"] * 5 + q for q in (4, 3, 2, 1, 0)] + [COL["Ga"] * 5 + q for q in (4, 3, 2, 1, 0)] + [20, 21] + ([22] if w < 2 else [])
        tiles += [COL[c] * 5 + q for q in (4, 3, 2, 1, 0) for c in ("Fb", "Gb")]
        prs = [(72 + 8 * t + h, 76 + 8 * t + h) for t in tiles for h in (0, 2)]
        for i in range(0, len(prs), 4):
            for p, q in prs[i:i + 4]: a(f"v_pk_add_f32 {vr(p,2)}, {vr(p,2)}, {vr(q,2)} neg_lo:[0,1] neg_hi:[0,1]")
            for p, q in prs[i:i + 4]: a(f"v_pk_fma_f32 {vr(q,2)}, {vr(q,2)}, s[{sTWO}:{sTWO+1}], {vr(p,2)}")
        a("s_waitcnt lgkmcnt(0)")
        S0 = {k: fB(k) for k in STEPS[46]["keys"]}
        assert S["umap"] == S0
        S, labB = self.phase(w, 46, fB, S0, False)
        out = []
        for n in range(86, 92):
            self.emit_step(w, STEPS[n], STEPS[n + 1] if n < 91 else None, S, None, None, out)
        if self.cfg.get("al8"): a("s_nop 0")
        for x in self.al8(out): a(x)
        a("s_branch L_cepi")

    def epi_addr(self):
        a = self.a
        a("v_lshlrev_b32 v13, 3, v0"); a("v_lshlrev_b32 v14, 4, v0")
        a(f"s_lshl_b32 s{sT0}, s{sWV}, 10"); a(f"v_add_u32 v12, s{sT0}, v14")
        a(f"s_lshr_b32 s{sT1}, s{sWV}, 1"); a(f"s_and_b32 s{sT2}, s{sWV}, 1")
        a(f"s_lshl_b32 s{sT0}, s{sT1}, 10"); a(f"s_lshl_b32 s{sT3}, s{sT2}, 3"); a(f"s_add_u32 s{sT0}, s{sT0}, s{sT3}")
        a(f"s_add_u32 s{sT0}, s{sT0}, {EX}"); a(f"v_add_u32 v15, s{sT0}, v14")
        a(f"s_mul_i32 s{sT0}, s{sT1}, 4608"); a(f"s_lshl_b32 s{sT3}, s{sT2}, 2"); a(f"s_add_u32 s{sT0}, s{sT0}, s{sT3}")
        a(f"s_add_u32 s{sT0}, s{sT0}, {4096+8*4608}"); a(f"v_add_u32 v16, s{sT0}, v13")
        a(f"s_lshl_b32 s{sT0}, s{sWV}, 11"); a(f"s_add_u32 s{sT0}, s{sT0}, {EX}"); a(f"v_add_u32 v14, s{sT0}, v14")
        a(f"s_mul_i32 s{sT0}, s{sWV}, 9216"); a(f"s_add_u32 s{sT0}, s{sT0}, 4096"); a(f"v_add_u32 v13, s{sT0}, v13")

    @staticmethod
    def bfly_ops(prs):
        L = [(p + h, q + h, c) for p, q, c in prs for h in (0, 2)]
        return ([f"v_pk_mul_f32 {vr(q,2)}, {vr(q,2)}, s[{c}:{c+1}]" for p, q, c in L],
                [f"v_pk_fma_f32 {vr(p,2)}, {vr(p,2)}, s[{c}:{c+1}], {vr(q,2)}" for p, q, c in L],
                [f"v_pk_fma_f32 {vr(q,2)}, {vr(q,2)}, s[{sM2}:{sM2+1}], {vr(p,2)}" for p, q, c in L])

    def compute_epilogue(self):
        a = self.a; cfg = self.cfg
        a(".p2align 6")
        a("L_cepi:")
        self.stamp(3)
        if cfg.get("cprio"): a(f"s_setprio {cfg['cprio']}")
        a("v_mov_b32 v32, 0.5"); a("v_mov_b32 v33, 0.5")
        a(f"s_cmp_ge_u32 s{sWV}, 2"); a("s_cbranch_scc1 L_nox")
        for L in self.bfly_ops([(acc("X", 0, "P"), acc("X", 0, "Q"), sCX), ]):
            for x in L: a(x)
        a(f"ds_write_b128 v14, {vr(acc('X',0,'P'))}")
        a(f"ds_write_b128 v14, {vr(acc('X',0,'Q'))} offset:1024")
        a("L_nox:")
        B = lambda q: sum(self.bfly_ops([(acc(c, q, "P"), acc(c, q, "Q"), sCF if c[0] == "F" else sCG) for c in ("Fa", "Ga", "Fb", "Gb")]), [])
        pr = lambda f, g, q, wh: [(acc(f, q, wh) + h, acc(g, q, wh) + h) for h in (0, 2)]
        EF = lambda P: [f"v_exp_f32_e64 v{f+i}, v{f+i} clamp" for f, g in P for i in (0, 1)]
        EG = lambda P: [f"v_exp_f32 v{g+i}, v{g+i}" for f, g in P for i in (0, 1)]
        RC = lambda P: [f"v_rcp_f32 v{g+i}, v{g+i}" for f, g in P for i in (0, 1)]
        UP = lambda P: [f"v_pk_fma_f32 {vr(f,2)}, {vr(f,2)}, s[{sKU}:{sKU+1}], v[32:33]" for f, g in P]
        US = lambda P: [f"v_fma_f32 v{f+i}, v{f+i}, s{sKU}, 0.5" for f, g in P for i in (0, 1)]
        DP = lambda P: [f"v_pk_fma_f32 {vr(g,2)}, {vr(f,2)}, {vr(g,2)}, {vr(f,2)}" for f, g in P]
        DS = lambda P: [f"v_fma_f32 v{g+i}, v{f+i}, v{g+i}, v{f+i}" for f, g in P for i in (0, 1)]
        ZP = lambda P: [f"v_pk_fma_f32 {vr(f,2)}, {vr(f,2)}, {vr(g,2)}, {vr(g,2)} neg_lo:[1,0,0] neg_hi:[1,0,0]" for f, g in P]
        ZS = lambda P: [f"v_fma_f32 v{f+i}, -v{f+i}, v{g+i}, v{g+i}" for f, g in P for i in (0, 1)]
        CV = lambda P, o: [f"v_cvt_pk_bf16_f32 v{o+j}, v{f}, v{f+1}" for j, (f, g) in enumerate(P)]
        S0, S1 = pr("F8", "G8", 0, "P"), pr("F8", "G8", 0, "Q"); S = S0 + S1
        L = sum(self.bfly_ops([(acc("F8", 0, "P"), acc("F8", 0, "Q"), sCF), (acc("G8", 0, "P"), acc("G8", 0, "Q"), sCG)]), [])
        L += EF(S) + UP(S) + EG(S) + DP(S) + RC(S) + ZP(S) + CV(S0, 28) + ["ds_write_b64 v13, v[28:29]"] + CV(S1, 30) + ["ds_write_b64 v13, v[30:31] offset:4608"]
        for x in L: a(x)
        nb, nu, nd, nz = cfg.get("nb", 6), cfg.get("nu", 8), cfg.get("nd", 0), cfg.get("nz", 0)
        for q in range(5):
            Y = [pr("Fa", "Ga", q, wh) + pr("Fb", "Gb", q, wh) for wh in "PQ"]
            P = Y[0] + Y[1]
            L = B(q) + EF(P)
            bar = ["s_waitcnt lgkmcnt(0)", "s_barrier"] if q else []
            if q == 1:
                bar += ["ds_read_b64 v[44:45], v15", "ds_read_b64 v[46:47], v15 offset:2048"]
            L = L[:24 + nb] + bar + L[24 + nb:]
            L += UP(P) if q == 0 else UP(P[:nu]) + US(P[nu:])
            X = []
            if q == 1:
                X = [(44, 46)]
                L += EG(P[:2]) + ["s_waitcnt lgkmcnt(0)"] + EF(X) + EG(P[2:] + X) + US(X)
            else: L += EG(P)
            PX = X + P
            L += DP(P) if q == 0 else DS(PX[:len(PX) - nd]) + DP(PX[len(PX) - nd:])
            L += RC(PX)
            if X: L += ZS(X) + ZS(P[:nz]) + CV(X, 36) + ["ds_write_b32 v16, v36"] + ZP(P[nz:])
            else: L += ZP(P) if q == 0 else ZS(P[:nz]) + ZP(P[nz:])
            for y in (0, 1): L += CV(Y[y], 20 + 4 * y) + [f"ds_write_b128 v12, {vr(20+4*y)} offset:{(2*q+y)*4608}"]
            for x in L: a(x)
        a("s_waitcnt lgkmcnt(0)")
        a("s_barrier")
        self.stamp(4)
        if self.prof:
            a(f"s_cmp_lg_u32 s{sWV}, 0"); a("s_cbranch_scc1 L_cend")
            self.stamp(15, True)
            self.dump_stamps(0)
            a("L_cend:")
        a("s_endpgm")

    def compute_prologue(self):
        a = self.a
        a("L_compute:")
        a("v_lshrrev_b32 v12, 4, v0")
        a("v_bfe_u32 v13, v0, 2, 2")
        a("v_lshl_add_u32 v17, v12, 2, v13")
        a("v_lshl_add_u32 v13, v12, 3, v13")
        a("v_mul_u32_u24 v13, 576, v13"); a("v_mul_u32_u24 v17, 576, v17")
        a("v_and_b32 v14, 3, v0"); a("v_lshl_add_u32 v13, v14, 3, v13"); a("v_lshl_add_u32 v17, v14, 3, v17")
        a("v_and_b32 v14, 1, v12"); a("v_lshlrev_b32 v15, 5, v14")
        a(f"v_add_u32 v{vE}, v13, v15"); a(f"v_sub_u32 v{vO}, v13, v15")
        a(f"v_add_u32 v{vEh}, {3*SLOT}, v{vE}"); a(f"v_add_u32 v{vOh}, {3*SLOT}, v{vO}")
        a("v_and_b32 v15, 32, v0")
        a(f"v_add_u32 v{vE16}, v17, v15"); a(f"v_sub_u32 v{vO16}, v17, v15")
        a("v_and_b32 v13, 15, v0")
        a("v_lshlrev_b32 v15, 1, v12"); a("v_xor_b32 v15, v15, v13")
        a("v_lshl_add_u32 v15, v12, 4, v15"); a("v_lshlrev_b32 v15, 4, v15")
        a(f"v_add_u32 v{vUA}, {UB0}, v15")
        a("v_lshrrev_b32 v12, 1, v12")
        a("v_lshlrev_b32 v15, 1, v12"); a("v_xor_b32 v15, v15, v13")
        a("v_lshl_add_u32 v15, v12, 4, v15"); a("v_lshlrev_b32 v15, 4, v15")
        a("v_lshl_add_u32 v15, v14, 3, v15")
        a(f"v_add_u32 v{vU16}, {UB1}, v15")
        cF, cG = f2u(-LOG2E), f2u(-LOG2E / 2)
        for r, v in ((sCF, cF), (sCG, cG), (sONE, f2u(1.0)), (sM2, f2u(-2.0)), (sTWO, f2u(2.0))):
            a(f"s_mov_b32 s{r}, {v:#x}"); a(f"s_mov_b32 s{r+1}, {v:#x}")
        a(f"s_cmp_eq_u32 s{sWV}, 0"); a(f"s_cselect_b32 s{sCX}, s{sCF}, s{sCG}"); a(f"s_mov_b32 s{sCX+1}, s{sCX}")
        f32 = lambda v: struct.unpack("<f", struct.pack("<f", v))[0]
        hb = f32(BIAS / LOG2E / 2)
        ku = f2u(0.5 * 2.0 ** (2 * hb * f32(LOG2E)))
        a(f"s_mov_b32 s{sKU}, {ku:#x}"); a(f"s_mov_b32 s{sKU+1}, {ku:#x}")
        a(f"s_mov_b32 s46, {f2u(hb):#x}"); a(f"s_mov_b32 s47, {f2u(-hb):#x}")
        a(f"s_cselect_b32 s48, s46, 0"); a(f"s_cselect_b32 s49, s47, 0")
        self.stamp(7)
        self.epi_addr()
        for r in range(72, 256):
            t, h = (r - 72) // 8, (r - 72) // 4 & 1
            a(f"v_mov_b32 v{r}, {'s%d' % (48 + h) if t == 22 else 's%d' % (46 + h) if t == 20 or (t < 20 and t // 5 in (COL['Fa'], COL['Fb'])) else 0}")
        for x in self.xaddr(sWV, 36, [(1, 0, 30), (3, 0, 31), (1, 1, 8), (2, 1, 9), (3, 1, 10), (4, 1, 11)]): a(x)
        a("v_lshrrev_b32 v36, 2, v0"); a("v_and_b32 v37, 3, v0")
        a("v_lshlrev_b32 v38, 1, v37"); a("v_xor_b32 v36, v36, v38"); a("v_lshl_add_u32 v36, v37, 4, v36"); a("v_lshlrev_b32 v36, 4, v36")
        a(f"s_lshl_b32 s{sT0}, s{sWV}, 10"); a(f"s_sub_u32 s{sT0}, {UB0+9*1024}, s{sT0}"); a(f"v_add_u32 v34, s{sT0}, v36")
        a(f"s_lshl_b32 s{sT0}, s{sWV}, 2"); a(f"s_add_u32 s{sT0}, s{sT0}, {UB0}"); a(f"v_add_u32 v35, s{sT0}, v36")
        a(f"s_mov_b32 s{sMASK}, 0xffff0000")
        self.stamp(8)
        if self.prof: a("s_waitcnt lgkmcnt(0)")
        a("s_barrier")
        a("ds_read_b32 v28, v9 offset:1280"); a("ds_read_b32 v29, v11 offset:2560")
        a("ds_read_b32 v32, v8 offset:640"); a("ds_read_b32 v33, v10 offset:1920")
        a("ds_read_b128 v[20:23], v30 offset:640"); a("ds_read_b128 v[24:27], v31 offset:1920")
        U = lambda t, p, q: [f"v_lshlrev_b32 v{t}, 16, v{p}", f"v_and_b32 v{t+1}, s{sMASK}, v{p}", f"v_lshlrev_b32 v{t+2}, 16, v{q}", f"v_and_b32 v{t+3}, s{sMASK}, v{q}"]
        S = lambda t: [f"v_sub_f32 v{t}, v{t}, v{t+2}", f"v_sub_f32 v{t+1}, v{t+1}, v{t+3}"]
        a("s_waitcnt lgkmcnt(4)")
        for x in U(40, 28, 29): a(x)
        a("s_waitcnt lgkmcnt(2)")
        for x in U(64, 32, 33) + S(40) + S(64): a(x)
        a("v_cvt_pk_bf16_f32 v40, v40, v41"); a("v_cvt_pk_bf16_f32 v41, v64, v65")
        a("s_waitcnt lgkmcnt(0)")
        for d in range(4):
            for x in U(44 + 4 * d, 20 + d, 24 + d): a(x)
            if d == 0: a("ds_write2st64_b32 v35, v40, v41 offset0:20 offset1:40")
        for d in range(4):
            for x in S(44 + 4 * d): a(x)
        for d in range(4): a(f"v_cvt_pk_bf16_f32 v{60+d}, v{44+4*d}, v{45+4*d}")
        a("ds_write_b128 v34, v[60:63]")
        a("s_waitcnt lgkmcnt(0)")
        for w in (1, 2, 3):
            a(f"s_cmp_eq_u32 s{sWV}, {w}"); a(f"s_cbranch_scc1 L_cw{w}")
        a("s_branch L_cw0")

    def x_srd(self):
        a = self.a
        a(f"s_cmp_ge_u32 s{sGI}, 100"); a(f"s_cselect_b32 s{sT0}, 100, 0"); a(f"s_cselect_b32 s{sT1}, 4608000, 0")
        a(f"s_sub_u32 s{sT0}, s{sGI}, s{sT0}"); a(f"s_mul_i32 s{sT0}, s{sT0}, 160"); a(f"s_sub_u32 s{sT0}, s{sT0}, 30")
        a(f"s_add_u32 s{sX}, s4, s{sT1}"); a(f"s_addc_u32 s{sX+1}, s5, 0"); a(f"s_mov_b32 s{sX+2}, 4608000"); a(f"s_mov_b32 s{sX+3}, 0x20000")

    def xaddr(self, sw, t, regs):
        L = [f"v_lshrrev_b32 v{t}, 3, v0", f"v_mul_u32_u24 v{t+1}, 1280, v{t}", f"v_and_b32 v{t+2}, 7, v0", f"v_lshl_add_u32 v{t+1}, v{t+2}, 4, v{t+1}",
             f"v_and_b32 v{t}, 1, v{t}", f"v_lshlrev_b32 v{t}, 7, v{t}", f"v_xor_b32 v{t+2}, 0x80, v{t}"]
        if any(g0 for _, g0, _ in regs):
            L += [f"s_lshl_b32 s{sT0}, s{sw}, 2", f"s_add_u32 s{sT0}, s{sT0}, {STG}", f"v_add_u32 v{t+3}, s{sT0}, v{t+1}"]
            for i, g0, r in regs:
                if g0: L.append(f"{'v_sub_u32' if i & 1 else 'v_add_u32'} v{r}, v{t+3}, v{t if i in (1, 4) else t+2}")
        L += [f"s_lshl_b32 s{sT0}, s{sw}, 7", f"s_add_u32 s{sT0}, s{sT0}, {STG+128}", f"v_add_u32 v{t+3}, s{sT0}, v{t+1}",
              f"s_and_b32 s{sT0}, s{sw}, 1", f"s_lshl_b32 s{sT0}, s{sT0}, 1", f"s_sub_u32 s{sT0}, s{sT0}, 1",
              f"v_mul_i32_i24 v{t}, s{sT0}, v{t}", f"v_mul_i32_i24 v{t+2}, s{sT0}, v{t+2}"]
        for i, g0, r in regs:
            if not g0: L.append(f"{'v_sub_u32' if i & 1 else 'v_add_u32'} v{r}, v{t+3}, v{t if i in (0, 1, 4) else t+2}")
        return L

    def mk_srd(self, r, p, off, n):
        a = self.a
        if off == 0:
            a(f"s_mov_b32 s{r}, s{p}"); a(f"s_mov_b32 s{r+1}, s{p+1}")
        else:
            a(f"s_add_u32 s{r}, s{p}, {off}"); a(f"s_addc_u32 s{r+1}, s{p+1}, 0")
        a(f"s_mov_b32 s{r+2}, {n}"); a(f"s_mov_b32 s{r+3}, 0x20000")

    def loader(self):
        a = self.a; cfg = self.cfg
        VF, XG = 1, 16
        XAr = lambda i, g0: (10 + i - 1) if g0 else 6 + (0, 1, 2, 3, 0)[i]
        UWR, UWRH, UW0, UW0H = 25, 26, 27, 28
        X = lambda c, i: 32 + 20 * c + 4 * i
        X0 = lambda c, i: 132 + 4 * c + (i - 1)
        TU, TA, O = 152, 170, 186
        sP, sXM = 90, 95
        cur = [-1]
        Q = []
        D = []
        self.nlab = 0
        st8 = dict(m0=None, soff=None)

        def wait(tag):
            pos = max([i for i, (t, o) in enumerate(Q) if t == tag], default=-1)
            if pos < 0: return
            n = sum(1 for t, o in Q[pos + 1:] if not o)
            a(f"s_waitcnt vmcnt({n})")
            del Q[:pos + 1]

        def dwait(pred):
            pos = max([i for i, t in enumerate(D) if pred(t)], default=-1)
            if pos < 0: return
            a(f"s_waitcnt lgkmcnt({sum(1 for t in D[pos+1:] if t[-1] != 'opt')})")
            for t in D[:pos + 1]:
                if t[0] == "xr": xdone[t[1]] = cur[0]
            del D[:pos + 1]
        xdone = {}

        def skip_unless(cond_reg, val, op="eq"):
            self.nlab += 1
            a(f"s_cmp_{op}_u32 s{cond_reg}, {val}"); a(f"s_cbranch_scc0 L_sk{self.nlab}")
            return f"L_sk{self.nlab}:"

        def xdma(c, j, lw=None):
            if c >= 2: assert xdone[c - 2] < cur[0] and not any(t[0] == "xr" and t[1] == c - 2 for t in D)
            a(f"s_add_u32 m0, s{sXM}, {(c&1)*STGB+1024*j}"); st8["m0"] = None
            if c and st8["soff"] != ("x", c): a(f"s_movk_i32 s{sOFF}, {64*c}"); st8["soff"] = ("x", c)
            if cfg.get("nox"): return
            if lw is not None: l = skip_unless(sLW, lw)
            a(f"buffer_load_dwordx4 v{XG+j}, {srd(sX)}, {'s%d' % sOFF if c else 0} offen lds")
            Q.append((("x", c), lw is not None))
            if lw is not None: a(l)

        def xread(c, i, g0):
            if g0: a(f"ds_read_b32 v{X0(c,i)}, v{XAr(i,1)} offset:{(c&1)*STGB+640*i}")
            else: a(f"ds_read_b128 {vr(X(c,i))}, v{XAr(i,0)} offset:{(c&1)*STGB+640*i}")
            D.append(("xr", c, i, g0)); xiss.add((c, i, g0))
        XRD = [(2, 0), (4, 0), (0, 0), (2, 1), (4, 1), (1, 1), (3, 1), (1, 0), (3, 0)]
        xiss = set()

        def xw(c, g0, *ii):
            def f():
                assert all((c, i, g0) in xiss for i in ii), (c, g0, ii)
                dwait(lambda t: t[0] == "xr" and t[3] == g0 and t[2] in ii)
            return f

        def piece(n, i):
            st = STEPS[n]; kind = st["kind"]
            d = srd(sW) if st["src"] == "W" else srd(sG)
            sc = "" if st["src"] == "W" else " sc1"
            m0 = (n, i == 4)
            if st8["m0"] != m0:
                a(f"s_add_u32 m0, s{sM5 if i == 4 else sM4}, {st['slot']*SLOT}"); st8["m0"] = m0
            st8["last"] = None
            if kind == "pair":
                a(f"s_add_u32 s{sOFF}, s{sP+i}, {st['soff']}"); st8["soff"] = None
            elif st8["soff"] != n:
                a(f"s_mov_b32 s{sOFF}, {st['soff'] + (73728 if kind == 'k16' else 0)}"); st8["soff"] = n
            l = None
            if i == 4: l = skip_unless(sHALF, n & 1)
            elif kind == "k16": l = skip_unless(sLW, 2 if i == 0 else 1, "le")
            off = f" offset:{1024*i}" if 0 < i < 4 else ""
            a(f"buffer_load_dwordx4 v{VF+i}, {d}, s{sOFF} offen{off}{sc} lds")
            Q.append((("w", n), l is not None))
            if i == 4 and altw:
                self.nlab += 1
                a(f"s_branch L_sk{self.nlab}"); a(l); l = f"L_sk{self.nlab}:"
                for x in altw: a(x[0]); D.append(("w", x[1], "opt"))
                altw.clear()
            if l: a(l)
            assert len(Q) <= 60
        p4f = cfg.get("p4f", cfg.get("wst", 0))
        pieces = [(n, i) for n in range(92) for i in (range(4) if STEPS[n]["kind"] == "k16" else (4, 0, 1, 2, 3) if p4f and n >= cfg.get("npro", 3) else range(5))]

        def frag_job(srcs, outs, nd=4, ob=0):
            U = []; A = []; C = []
            for d in range(nd):
                tu = TU + 6 * (d % 3); ta = TA + 8 * (d % 2)
                u = []
                for k, r in enumerate(srcs):
                    u += [f"v_lshlrev_b32 v{tu+2*k}, 16, v{r+d}", f"v_and_b32 v{tu+2*k+1}, s{sMASK}, v{r+d}"]
                ad = []; cv = []
                for k, (op, i, j, _) in enumerate(outs):
                    ad += [f"{op} v{ta+2*k+h}, v{tu+2*i+h}, v{tu+2*j+h}" for h in (0, 1)]
                    cv.append(f"v_cvt_pk_bf16_f32 v{O+ob+nd*k+d}, v{ta+2*k}, v{ta+2*k+1}")
                U.append(u); A.append(ad); C.append(cv)
            L = list(U[0])
            for d in range(nd):
                if d + 1 < nd: L += U[d + 1]
                L += A[d]
                if d: L += C[d - 1]
            L += C[nd - 1]
            return L, [wt(O + ob + nd * k) for k, (_, _, _, wt) in enumerate(outs)]
        SUB, ADD = "v_sub_f32", "v_add_f32"
        first = lambda k: min(s["n"] for s in STEPS if s["kap"] == k)
        last = lambda k: max(s["n"] for s in STEPS if s["kap"] == k)

        def mid(L, x):
            return L[:len(L) // 2] + x + L[len(L) // 2:]

        def jobs_of(kap):
            c = kap % 5; ub = (UB1 if kap & 1 else UB0) - UB1
            f = first(kap); l = f - 1
            e0 = first(kap - 1) if kap else -1
            half = c == 4
            wr, w0 = (UWRH, UW0H) if half else (UWR, UW0)
            W4 = lambda idx, dl: (lambda o: (f"ds_write_b128 v{wr}, {vr(o)} offset:{ub+idx*1024}", dl, e0))
            W2 = lambda i0, i1: (f"ds_write2st64_b32 v{w0}, v{O+16}, v{O+17} offset0:{(ub+i0*1024)//256} offset1:{(ub+i1*1024)//256}", l, e0)
            no = lambda o: None
            if kap == 0:
                La, Wa = frag_job([X(c, 2), X(c, 4)], [(SUB, 0, 1, W4(5, l))])
                Lb, Wb = frag_job([X(c, 0), X(c, 2)], [(SUB, 0, 1, W4(15, f + 5))], 4, 4)
                return [[xw(c, 0, 2, 4)] + La + Wa, [xw(c, 0, 0)] + Lb + Wb]
            if kap < 5:
                d10, d15 = (l, l) if half else (f, f + 5)
                La, Wa = frag_job([X(c, 0), X(c, 2), X(c, 4)], [(SUB, 1, 2, W4(5, l)), (SUB, 0, 1, W4(15, d15))])
                Lg, _ = frag_job([X0(c, 2), X0(c, 4), X0(c, 1), X0(c, 3)], [(SUB, 0, 1, no), (SUB, 2, 3, no)], 1, 16)
                Lb, Wb = frag_job([X(c, 1), X(c, 3)], [(SUB, 0, 1, W4(10, d10))], 4, 8)
                return [[xw(c, 0, 0, 2, 4)] + La + Wa, [xw(c, 1, 1, 2, 3, 4)] + Lg + [W2(5, 10)], [xw(c, 0, 1, 3)] + Lb + Wb]
            d10, d14, d19 = (l, f + 2, f + 2) if half else (f, f + 4, f + 5)
            La, Wa = frag_job([X(c, 2), X(c, 3)], [(ADD, 0, 1, W4(5, l)), (SUB, 1, 0, W4(14, d14))])
            Lb, Wb = frag_job([X(c, 1), X(c, 2)], [(ADD, 0, 1, W4(10, d10)), (SUB, 1, 0, W4(19, d19))], 4, 8)
            Lg, _ = frag_job([X0(c, 2), X0(c, 3)], [(ADD, 0, 1, no), (SUB, 1, 0, no)], 1, 16)
            return [La + Wa, Lg + [W2(5, 14)], Lb + Wb]
        pend = []; wat = set()

        def emit(x):
            if callable(x): x()
            elif isinstance(x, tuple) and cfg.get("wx") and x[0].startswith("ds_write_b128"):
                import re
                ad, r0, off = map(int, re.match(r"ds_write_b128 v(\d+), v\[(\d+):\d+\] offset:(\d+)", x[0]).groups())
                wx = cfg["wx"]
                if wx == 1:
                    a("s_mov_b32 m0, s39"); a("s_nop 0"); st8["m0"] = None
                    for d in range(4): a(f"ds_write_addtid_b32 v{r0+d} offset:{25604+off+256*d}"); D.append(("w", x[1]))
                    if st8.get("last"): a(st8["last"]); st8["m0"] = st8["lastm"]
                elif wx == 2:
                    for d in range(2): a(f"ds_write_b64 v{ad}, {vr(r0+2*d,2)} offset:{off+8*d}"); D.append(("w", x[1]))
                elif wx == 3:
                    for d in range(4): a(f"ds_write_b32 v{ad}, v{r0+d} offset:{off+4*d}"); D.append(("w", x[1]))
                elif wx == 4:
                    a(f"ds_write_b32 v{ad}, v{r0} offset:{off}"); D.append(("w", x[1]))
                elif wx == 5:
                    a(f"ds_write_b64 v{ad}, {vr(r0,2)} offset:{off}"); D.append(("w", x[1]))
            elif isinstance(x, tuple): a(x[0]); D.append(("w", x[1]))
            else: a(x)

        second = []; altw = []

        def nwrites():
            run = sum(1 for k in (1, 2) if all(cur[0] - m in wat for m in range(1, k + 1)))
            ok = pend and pend[0][2] <= cur[0] and (run < cfg.get("wrun", 2) or 35 <= cur[0] <= 39)
            return max([1 if ok else 0] + [1 for i, x in enumerate(pend) if x[1] - 1 - i <= cur[0]] + [i + 1 for i, x in enumerate(pend) if x[1] <= cur[0]])

        def bunch_clash(ops):
            from asmlib import Ins
            return any(Ins(x).w & Ins(y[0]).r for x in ops if not callable(x) and not isinstance(x, tuple) for y in pend)

        def mix(ents, ops, head=(), defer=False, has5=False, has5n=False):
            from asmlib import Ins
            k = max(1, len(ents) - 1)
            early = list(head); late = []
            if defer:
                nw = nwrites()
                if cfg.get("wbun"):
                    av = [x for x in pend if x[2] <= cur[0]]
                    nw = len(av) if av and (len(av) >= cfg["wbun"] or min(x[1] for x in av) <= cur[0] + cfg.get("wbm", 1) or bunch_clash(ops)) else 0
                    assert pend[:nw] == av[:nw]
                if nw: wat.add(cur[0])
                assert all(x[2] <= cur[0] for x in pend[:nw])
                if cfg.get("verbose") and nw: print("   writes", [(x[0][:40], x[1]) for x in pend[:nw]])
                wl = cfg.get("wlate", 0)
                if cfg.get("wst"):
                    assert not second or len(ents) >= 5
                    nw = 0
                    if second:
                        alt = list(second); second.clear(); del pend[:len(alt)]
                        for y in [y for y in pend if y[1] <= cur[0]]:
                            if cfg.get("verbose"): print("   alt-urgent", y)
                            early.append(y); pend.remove(y)
                    else:
                        pend.sort(key=lambda x: (x[2] > cur[0], x[1]))
                        while pend and pend[0][1] <= cur[0]:
                            if cfg.get("verbose"): print("   alt-urgent", pend[0])
                            early.append(pend.pop(0))
                        ok = pend and pend[0][2] <= cur[0]
                        nw = 1 if ok else 0
                        if ok and len(pend) > 1 and pend[1][2] <= cur[0] and ("write2" in pend[1][0] or "write2" in pend[0][0] or min(x[1] - 2 * i for i, x in enumerate(pend)) <= cur[0]): nw = 2
                        alt = pend[:nw]
                        if alt and (not has5 or not has5n): early = early + alt; del pend[:nw]; alt = []
                        else: second.extend(alt)
                    nw = 0
                    if cfg.get("verbose") and alt: print("   alt", [(x[0][:40], x[1]) for x in alt])
                    altw[:] = alt
                if wl & 2: late += early; early = []
                if wl & 1:
                    from asmlib import Ins as I2
                    for y in pend[:nw]:
                        clash = any(not callable(x) and not isinstance(x, tuple) and (I2(x).w & I2(y[0]).r) for x in ops)
                        (early if y[1] <= cur[0] or clash else late).append(y)
                        if cfg.get("verbose") and (y[1] <= cur[0] or clash): print("      early", y[1] <= cur[0], clash)
                else: early = early + pend[:nw]
                del pend[:nw]
                for x in ops:
                    if isinstance(x, tuple): pend.append(x)
                    elif not callable(x):
                        for y in pend: assert not (Ins(x).w & Ins(y[0]).r), (x, y)
                ops = [x for x in ops if not isinstance(x, tuple)]
                if cfg.get("wpos"):
                    for y in early:
                        if isinstance(y, tuple): assert not any(Ins(x).w & Ins(y[0]).r for x in ops if not callable(x)), y
            j = 0
            wf = cfg.get("wfirst", 0) if defer else 0
            for x in [x for x in early if wf == 2 or (wf == 1 and isinstance(x, tuple))]: emit(x); early.remove(x)
            for i, e in enumerate(ents or [lambda: None]):
                e()
                if i == 0:
                    for x in early:
                        if not (defer and isinstance(x, tuple) and cfg.get("wpos", 0) and len(ents) > cfg["wpos"]): emit(x)
                elif defer and i == cfg.get("wpos", 0):
                    for x in early:
                        if isinstance(x, tuple): emit(x)
                if i < k:
                    j2 = (len(ops) * (i + 1) + k - 1) // k
                    for x in ops[j:j2]: emit(x)
                    j = j2
            for x in ops[j:]: emit(x)
            for x in late: emit(x)

        a("L_loader:")
        if cfg.get("lprio0", 3): a(f"s_setprio {cfg.get('lprio0', 3)}")
        a(f"s_sub_u32 s{sLW}, s{sWV}, 4")
        a("v_lshrrev_b32 v29, 2, v0"); a("v_and_b32 v31, 3, v0")
        a(f"s_mul_i32 s{sT2}, s{sLW}, 48"); a(f"v_add_u32 v{XG}, s{sT2}, v29")
        for j in (1, 2): a(f"v_add_u32 v{XG+j}, {16*j}, v{XG}")
        for j in range(3): a(f"v_mul_u32_u24 v{152+j}, 6554, v{XG+j}")
        for j in range(3): a(f"v_lshrrev_b32 v{152+j}, 16, v{152+j}")
        for j in range(3): a(f"v_and_b32 v{152+j}, 2, v{152+j}")
        for j in range(3): a(f"v_xor_b32 v{XG+j}, v{XG+j}, v{152+j}")
        for j in range(3): a(f"v_mul_u32_u24 v{XG+j}, 288, v{XG+j}")
        for j in range(3): a(f"v_lshl_add_u32 v{XG+j}, v31, 4, v{XG+j}")
        a(f"s_mul_i32 s{sXM}, s{sLW}, 3072"); a(f"s_add_u32 s{sXM}, s{sXM}, {STG}")
        a(f"s_lshl_b32 s{sM4}, s{sLW}, 12")
        if cfg.get("wx") == 1: a(f"s_lshl_b32 s39, s{sLW}, 10"); a("s_sub_u32 s39, 65532, s39")
        a("s_waitcnt lgkmcnt(0)")
        self.stamp(6)
        self.x_srd()
        a(f"s_mul_i32 s{sT0}, s{sT0}, 288")
        for j in range(3): a(f"v_add_u32 v{XG+j}, s{sT0}, v{XG+j}")
        for j in range(3): xdma(0, j)
        self.stamp(7)
        self.mk_srd(sW, 6, 0, 15 * MAT)
        a(f"v_lshl_add_u32 v{VF+4}, v0, 4, s{sM4}")
        a(f"s_mul_i32 s{sT0}, s{sLW}, {256*3641}"); a(f"s_movk_i32 s{sT1}, 3641")
        a(f"v_mov_b32 v152, s{sT0}"); a(f"v_mad_u32_u24 v152, v0, s{sT1}, v152")
        for i in range(4):
            if i: a(f"v_add_u32 v{152+i}, {64*3641*i}, v152")
        for i in range(4): a(f"v_lshrrev_b32 v{152+i}, 15, v{152+i}")
        for i in range(4): a(f"v_and_b32 v{152+i}, 32, v{152+i}")
        for i in range(4): a(f"v_xor_b32 v{VF+i}, v{VF+4}, v{152+i}")
        a(f"s_and_b32 s{sM5}, s{sLW}, 1"); a(f"s_lshl_b32 s{sM5}, s{sM5}, 10"); a(f"s_add_u32 s{sM5}, s{sM5}, 16384")
        a(f"s_lshr_b32 s{sHALF}, s{sLW}, 1")
        a(f"v_lshl_add_u32 v{VF+4}, v0, 4, s{sM5}"); a(f"v_xor_b32 v{VF+4}, 32, v{VF+4}")
        self.stamp(8)
        ops = [f"s_mov_b32 s{sMASK}, 0xffff0000",
               "v_lshlrev_b32 v167, 1, v31", "v_xor_b32 v166, v29, v167",
               "v_lshl_add_u32 v166, v31, 4, v166", "v_lshlrev_b32 v166, 4, v166",
               f"s_lshl_b32 s{sT0}, s{sLW}, 10", f"s_sub_u32 s{sT0}, {UB1-1024}, s{sT0}", f"v_add_u32 v{UWR}, s{sT0}, v166",
               f"s_lshl_b32 s{sT0}, s{sLW}, 2", f"s_add_u32 s{sT1}, s{sT0}, {UB1}", f"v_add_u32 v{UW0}, s{sT1}, v166",
               "v_and_b32 v167, 2, v31", "v_lshlrev_b32 v167, 9, v167",
               f"v_sub_u32 v{UW0H}, v{UW0}, v167", f"v_sub_u32 v{UWRH}, v{UWR}, v167",
               ]
        ops += self.xaddr(sLW, 166, [(i, g0, XAr(i, g0)) for g0 in (0, 1) for i in ((1, 2, 3, 4) if g0 else (0, 1, 2, 3))])
        npro, nearly = cfg.get("npro", 3), cfg.get("nearly", 2)
        pp = 5 * nearly
        mix([lambda p=p: piece(*p) for p in pieces[:pp]], ops)
        if cfg.get("x1pro", 1):
            for j in range(3): xdma(1, j)
        self.stamp(9)
        wait(("x", 0))
        self.stamp(10)
        a("s_barrier")
        J0 = jobs_of(0)
        for i in (2, 4, 0): xread(0, i, 0)
        mix([lambda p=p: piece(*p) for p in pieces[pp:5 * npro]], J0[0] + J0[1]); pp = max(pp, 5 * npro)
        XR0 = [(1, 0), (3, 0), (2, 1), (3, 1)]
        self.stamp(11)
        wait(("w", 0))
        dwait(lambda t: t[0] == "w" and t[1] < 0)
        self.stamp(12)
        if cfg.get("lprio0", 3) != cfg.get("lprio", 0): a(f"s_setprio {cfg.get('lprio', 0)}")
        a("s_barrier")
        self.stamp(1)
        jobs = []
        misc = [f"s_mov_b32 s{sP+4}, 73728"]
        for r, p, n in ((sG, 14, 10 * MAT), (sWO, 8, 41472)):
            misc += [f"s_mov_b32 s{r}, s{p}", f"s_mov_b32 s{r+1}, s{p+1}", f"s_mov_b32 s{r+2}, {n}", f"s_mov_b32 s{r+3}, 0x20000"]
        misc += [f"s_mul_i32 s{sT0}, s{sGI}, 46080", (lambda: (a(f"s_add_u32 s{sO}, s10, s{sT0}"), a(f"s_addc_u32 s{sO+1}, s11, 0"))),
                 f"s_mov_b32 s{sO+2}, 46080", f"s_mov_b32 s{sO+3}, 0x20000"]
        for i in range(4): misc.append(lambda i=i: (a(f"s_cmp_ge_u32 s{sLW}, {3 if i == 0 else 2}"), a(f"s_cselect_b32 s{sP+i}, {2*73728}, s{sP+4}")))
        misc.append(f"s_mov_b32 s{sP+4}, {2*73728}")
        misc.append("v_mov_b32 v21, 0")
        xl = {n: [] for n in range(92)}; head = {n: [] for n in range(92)}; tail = {n: [] for n in range(92)}
        x1 = cfg.get("x1at", 1 if cfg.get("x1pro", 1) else 3)
        for j, (i, g0) in enumerate(XR0): head[j // 2].append(lambda i=i, g0=g0: xread(0, i, g0))
        jobs.append((misc, 0, x1 + 1))
        x2 = cfg.get("x2at", 5)
        tail[x2 - 1].append(lambda: dwait(lambda t: t[0] == "xr" and t[1] == 0))
        for kap in range(1, 10):
            f = first(kap - 1)
            if kap < 5:
                r = x1 + 1 if kap == 1 else f
                if kap > 1 and cfg.get("xthin", 0):
                    n0, n1 = (x2, cfg.get("x2end", 8)) if kap == 2 else (f - 10 + cfg.get("xs", 3), f - 10 + cfg.get("xe", 8))
                    if kap > 2: tail[n0 - 1].append(lambda c=kap: dwait(lambda t: t[0] == "xr" and t[1] == c - 2))
                    for m in range(12): xl[n0 + m * (n1 - n0 + 1) // 12].append(lambda c=kap, m=m: xdma(c, m // 4, m % 4))
                elif kap > 1 or not cfg.get("x1pro", 1):
                    for j in range(3): xl[(0 if kap == 1 else x2 if kap == 2 else f - 10) + j].append(lambda c=kap, j=j: xdma(c, j))
                tail[r - 1].append(lambda c=kap: wait(("x", c)))
                if kap == 4: jobs.append((["v_and_b32 v204, 2, v0", "v_lshlrev_b32 v204, 4, v204"] + [f"v_sub_u32 v{r}, v{r}, v204" for r in range(6, 14)], 23, 29))
                for j, (i, g0) in enumerate(XRD): head[r + j // 3].append(lambda c=kap, i=i, g0=g0: xread(c, i, g0))
                if cfg.get("wst"): tail[r + 2].append(lambda: dwait(lambda t: t[0] == "xr"))
                st_ = r + 1
                tg = {1: (5, 6, 8), 4: (34, 35, 37)}.get(kap, (f + 4, f + 6, f + 8))
            elif kap == 5: st_, tg = 38, (40, 41, 44)
            elif kap == 6: st_, tg = 46, (49, 50, 54)
            else: st_, tg = f - 1, (f + 3, f + cfg.get("tg1", 4), f + 7)
            for L, t in zip(jobs_of(kap), tg): jobs.append((L, st_, t))
        npoll = cfg.get("npoll", 33)

        def poll():
            a("global_load_dword v22, v21, s[12:13] sc1"); Q.append(("poll", False))

        def check():
            wait("poll")
            a(f"v_readfirstlane_b32 s{sT0}, v22"); a(f"s_cmp_lt_u32 s{sT0}, {NPROD}"); a("s_cbranch_scc1 L_spin"); a("L_gok:")
        if cfg.get("nopoll"): tail[npoll + 4].append(lambda: a("L_gok:"))
        else: xl[npoll].append(poll); tail[npoll + 4].append(check)

        def wo_dma(j):
            a(f"s_add_u32 m0, s{sT3}, {WO+4096*j}"); st8["m0"] = None
            a(f"s_add_u32 s{sOFF}, s{sT3}, {4096*j}"); st8["soff"] = None
            if j == 10: l = skip_unless(sLW, 0)
            a(f"buffer_load_dwordx4 v29, {srd(sWO)}, s{sOFF} offen lds")
            Q.append(("wo", j == 10))
            if j == 10: a(l)
        for j in range(11): xl[87 + (j + 1) // 4].append(lambda j=j: wo_dma(j))
        E, E2 = self.lepi_addr()
        jobs.append((E, 85, 86)); jobs.append((E2, 86, 91))
        flat = [(x, j) for j, jb in enumerate(jobs) for x in jb[0]]
        p2 = cfg.get("prof2")

        def st2(n, k):
            if p2:
                r = 50 + 6 * (n & 1) + 2 * k
                a(f"s_memtime s[{r}:{r+1}]")

        def sv2(n):
            if p2 and n >= 0:
                for k in range(3): a(f"v_writelane_b32 v{210+2*k+n//64}, s{50+6*(n&1)+2*k}, {n%64}")
        fp = 0
        rate = cfg.get("rate", 6)
        for n in range(92):
            st2(n, 0)
            ents = []
            cur[0] = n
            bud = cfg.get("bud")
            if bud:
                pc = lambda m, i: (48 if i == 0 else 32) if STEPS[m]["kind"] == "k16" else 32 if i == 4 else 64
                cost = 64 * len(xl[n]) + sum(cfg.get("c2", 48) if "write2" in x[0] else cfg.get("c4", 104) for x in pend[:nwrites()]) + cfg.get("cr", 10) * len(head[n])
                if cfg.get("wpl"): cost = 64 * len(xl[n]) + (cfg.get("c4", 104) if n + 1 in self.wplan else 0) + (cfg.get("c5", 0) if n in self.wplan else 0)
                while pp < len(pieces) and pieces[pp][0] <= n + 4 and (pieces[pp][0] <= n + cfg.get("dmin", 2) or cost + pc(*pieces[pp]) <= bud):
                    cost += pc(*pieces[pp])
                    ents.append(lambda p=pieces[pp]: piece(*p)); pp += 1
                if cfg.get("verbose"): print("   cost", cost, "next piece", pieces[pp] if pp < len(pieces) else None)
            while not bud and pp < len(pieces) and pieces[pp][0] <= n + cfg.get('dist', 3) and len(ents) < rate:
                ents.append(lambda p=pieces[pp]: piece(*p)); pp += 1
            ents += xl[n]
            need_ = 0; cum = 0
            for j, jb in enumerate(jobs):
                rem = sum(1 for x, jj in flat[fp:] if jj == j)
                if not rem: continue
                cum += rem
                need_ = max(need_, -(-cum // max(1, jb[2] - n + 1)))
            ops = []
            while len(ops) < need_ and fp < len(flat) and jobs[flat[fp][1]][1] <= n:
                ops.append(flat[fp][0]); fp += 1
            if cfg.get("drop") and n < 85:
                dr = dict(w=["ds_write"], v=["v_cvt", "v_sub_f32", "v_add_f32", "v_lshlrev_b32 v15", "v_lshlrev_b32 v16", "v_and_b32 v15", "v_and_b32 v16"])[cfg["drop"]]
                ops = [x for x in ops if callable(x) or not any((x[0] if isinstance(x, tuple) else x).startswith(p) for p in dr)]
            if cfg.get("verbose"): print("interval", n, "ents", len(ents), "ops", len(ops))
            h5 = lambda m: m + cfg.get('dist', 3) < 92 and STEPS[m + cfg.get('dist', 3)]["kind"] != "k16"
            mix(ents, ops, head[n], True, h5(n), h5(n + 1))
            assert not altw
            assert all(x[1] > n for x in pend), (n, pend)
            assert not second or pend[:len(second)] == second
            for j, jb in enumerate(jobs):
                if jb[2] <= n: assert not any(jj == j for x, jj in flat[fp:]), (n, j)
            sv2(n - 1)
            st2(n, 1)
            if n + 1 <= 91:
                assert pp == len(pieces) or pieces[pp][0] > n + 1
                wait(("w", n + 1))
            for f in tail[n]: f()
            if n == 91: wait("wo"); assert not Q and not pend
            dwait(lambda t: t[0] == "w" and t[1] <= n)
            st2(n, 2)
            a("s_barrier")
        if p2:
            a("s_waitcnt lgkmcnt(0)"); sv2(91)
            a(f"s_add_u32 s{sG}, s14, 0x200000"); a(f"s_addc_u32 s{sG+1}, s15, 0"); a(f"s_mov_b32 s{sG+2}, 0x200000")
            a(f"s_lshl_b32 s{sT0}, s2, 2"); a(f"s_add_u32 s{sT0}, s{sT0}, s{sLW}"); a(f"s_lshl_b32 s{sT0}, s{sT0}, 11")
            a("v_lshlrev_b32 v166, 2, v0")
            for k in range(6): a(f"buffer_store_dword v{210+k}, v166, {srd(sG)}, s{sT0} offen offset:{256*k}")
        self.wat = set(wat)
        self.lepi()

    def lepi_addr(self):
        ZA, Z16, WA, SA, SR, GO = 216, 217, 218, 219, 220, 223
        E = ["v_lshlrev_b32 v29, 4, v0", f"s_lshl_b32 s{sT3}, s{sLW}, 10"]
        E2 = []
        b = E2.append
        b(f"s_lshr_b32 s{sT0}, s{sLW}, 1"); b(f"s_and_b32 s{sT1}, s{sLW}, 1")
        b(f"s_mul_i32 s{sT2}, s{sT0}, 4608")
        b(f"v_lshlrev_b32 v166, 4, v0"); b(f"v_add_u32 v{ZA}, s{sT2}, v166")
        b(f"s_add_u32 s{sT2}, s{sT2}, 4096"); b(f"v_lshlrev_b32 v166, 3, v0"); b(f"v_add_u32 v{Z16}, s{sT2}, v166")
        b(f"s_mul_i32 s{sT1}, s{sT1}, 160")
        b("v_lshrrev_b32 v166, 2, v0"); b("v_mul_u32_u24 v166, 288, v166")
        b("v_and_b32 v167, 3, v0"); b("v_lshl_add_u32 v166, v167, 3, v166")
        b(f"s_add_u32 s{sT2}, s{sT1}, {WO}"); b(f"v_add_u32 v{WA}, s{sT2}, v166")
        b("v_and_b32 v166, 15, v0"); b(f"v_mul_u32_u24 v166, {STROW}, v166")
        b("v_lshrrev_b32 v167, 4, v0"); b("v_lshl_add_u32 v166, v167, 3, v166")
        b(f"s_mul_i32 s{sT2}, s{sT0}, {16*STROW}"); b(f"s_add_u32 s{sT2}, s{sT2}, s{sT1}"); b(f"s_add_u32 s{sT2}, s{sT2}, {ST}")
        b(f"v_add_u32 v{SA}, s{sT2}, v166")
        for m in range(3):
            if m < 2: b(f"s_lshl_b32 s{sT0}, s{sLW}, 6"); b(f"s_add_u32 s{sT0}, s{sT0}, {256*m}")
            else: b(f"s_mov_b32 s{sT0}, 512")
            b(f"v_add_u32 v166, s{sT0}, v0")
            b("v_mul_u32_u24 v167, 3641, v166"); b("v_lshrrev_b32 v167, 16, v167")
            b("v_mul_u32_u24 v168, 18, v167"); b("v_sub_u32 v166, v166, v168"); b("v_lshlrev_b32 v166, 4, v166")
            b(f"v_mul_u32_u24 v168, {STROW}, v167"); b("v_add_u32 v168, v168, v166"); b(f"v_add_u32 v{SR+m}, {ST}, v168")
            b("v_bfe_u32 v168, v167, 1, 3"); b("v_mul_u32_u24 v168, 20, v168")
            b("v_lshrrev_b32 v169, 4, v167"); b("v_mul_u32_u24 v169, 10, v169"); b("v_add_u32 v168, v168, v169")
            b("v_and_b32 v169, 1, v167"); b("v_add_u32 v168, v168, v169")
            b("v_mul_u32_u24 v168, 288, v168"); b(f"v_add_u32 v{GO+m}, v168, v166")
        return E, E2

    def skip_unless(self, cond_reg, val, op="eq"):
        self.nlab += 1
        self.a(f"s_cmp_{op}_u32 s{cond_reg}, {val}"); self.a(f"s_cbranch_scc0 L_sk{self.nlab}")
        return f"L_sk{self.nlab}:"

    def lepi(self):
        a = self.a; cfg = self.cfg; skip_unless = self.skip_unless
        ZA, Z16, WA, SA, SR, GO = 216, 217, 218, 219, 220, 223
        self.stamp(3)
        AF = lambda i, k: 32 + 18 * i + 4 * k
        AC, BF, CV, SD = 124, 144, 164, 176
        for i in range(5):
            for k in range(5):
                a(f"ds_read_b64_tr_b16 {vr(AF(i,k),2)}, v{WA} offset:{k*9216+i*32}")
                if k < 4: a(f"ds_read_b64_tr_b16 {vr(AF(i,k)+2,2)}, v{WA} offset:{k*9216+4608+i*32}")
        a(f"s_and_b32 s{sHALF}, s{sLW}, 1")
        if cfg.get("eprio", 2): a(f"s_setprio {cfg.get('eprio', 2)}")

        epx = cfg.get("epx", 0)

        def stage_out(q):
            if epx & 4: return 0
            for j in range(3): a(f"ds_read_b128 {vr(SD+4*j)}, v{SR+j} offset:{q*STBUF}")
            return 3

        def stage_store(q):
            if epx & 2: return
            sm = self.cfg.get("stmod", " sc1 nt")
            a(f"buffer_store_dwordx4 {vr(SD)}, v{GO}, {srd(sO)}, 0 offen offset:{576*q}{sm}")
            a(f"buffer_store_dwordx4 {vr(SD+4)}, v{GO+1}, {srd(sO)}, 0 offen offset:{576*q}{sm}")
            l = skip_unless(sLW, 0)
            a(f"buffer_store_dwordx4 {vr(SD+8)}, v{GO+2}, {srd(sO)}, 0 offen offset:{576*q}{sm}")
            a(l)

        def mm(i, k):
            if epx & 1: return
            n2 = 4 if k < 4 else 2
            opn = "v_mfma_f32_16x16x32_bf16" if k < 4 else "v_mfma_f32_16x16x16_bf16"
            a(f"{opn} {vr(AC+4*i)}, {vr(AF(i,k),n2)}, {vr(BF+4*k,n2)}, {vr(AC+4*i) if k != 4 else 0}")

        def fin(i, q):
            if epx & 4: return
            a(f"v_cvt_pk_bf16_f32 v{CV+2*i}, v{AC+4*i}, v{AC+4*i+1}"); a(f"v_cvt_pk_bf16_f32 v{CV+2*i+1}, v{AC+4*i+2}, v{AC+4*i+3}")
            a(f"ds_write_b64 v{SA}, {vr(CV+2*i,2)} offset:{q*STBUF+32*i}")

        def fin_all(q):
            l = skip_unless(sHALF, 0)
            fin(4, q)
            a(l)
            for i in range(4): fin(i, q)
            return 0 if epx & 4 else 4
        KO = (4, 0, 1, 2, 3)
        for q in range(5):
            a("s_waitcnt lgkmcnt(0)")
            a("s_barrier")
            a(f"ds_read_b64 {vr(BF+16,2)}, v{Z16} offset:{q*9216}")
            for k in range(4): a(f"ds_read_b128 {vr(BF+4*k)}, v{ZA} offset:{q*9216+k*1024}")
            nr = stage_out(q - 2) if q >= 2 else 0
            nw = fin_all(q - 1) if q >= 1 else 0
            for j, k in enumerate(KO):
                a(f"s_waitcnt lgkmcnt({4-j+nr+nw})")
                for i in range(5 if k == 4 else 4): mm(i, k)
                if j == 1 and q >= 2:
                    a(f"s_waitcnt lgkmcnt({nw})")
                    stage_store(q - 2)
                if j == 2 and q == 4:
                    a("s_waitcnt lgkmcnt(0)")
                    a("s_barrier")
                    stage_out(3)
            l = skip_unless(sHALF, 0)
            for k in KO[1:]: mm(4, k)
            a(l)
        a("s_waitcnt lgkmcnt(0)")
        stage_store(3)
        for i in range(4): fin(i, 4)
        l = skip_unless(sHALF, 0)
        fin(4, 4)
        a(l)
        a("s_waitcnt lgkmcnt(0)")
        a("s_barrier")
        stage_out(4)
        a("s_waitcnt lgkmcnt(0)")
        stage_store(4)
        if self.prof:
            self.stamp(4)
            a("s_waitcnt vmcnt(0)")
            self.stamp(5)
            self.stamp(15, True)
            a(f"s_cmp_lg_u32 s{sLW}, {cfg.get('plw', 0)}"); a("s_cbranch_scc1 L_lend")
            self.dump_stamps(64)
            a("L_lend:")
        a("s_endpgm")
        a("L_spin:")
        if cfg.get("spinmax"): a(f"s_mov_b32 s{sT1}, 0")
        a("L_spin2:")
        if cfg.get("spinmax"):
            a(f"s_add_u32 s{sT1}, s{sT1}, 1"); a(f"s_cmp_ge_u32 s{sT1}, {cfg['spinmax']}"); a("s_cbranch_scc1 L_gok")
        a("global_load_dword v22, v21, s[12:13] sc1")
        a("s_waitcnt vmcnt(0)")
        a(f"v_readfirstlane_b32 s{sT0}, v22"); a(f"s_cmp_lt_u32 s{sT0}, {NPROD}"); a("s_cbranch_scc1 L_spin2")
        a("s_branch L_gok")

    def loader2(self):
        from asmlib import Ins
        a = self.a; cfg = self.cfg; skip_unless = self.skip_unless
        self.nlab = 0
        XG, DA, DK, DX = 16, 32, 42, 48
        XAr = lambda i, g0: (10 + i - 1) if g0 else 6 + (0, 1, 2, 3, 0)[i]
        UWR, UWRH, UW0, UW0H = 25, 26, 27, 28
        XP = lambda c, v, i: 32 + 24 * c + 12 * v + 4 * (i - 1)
        X = lambda c, v, i: XP(c, v, i) if 1 <= i <= 3 else XP(4, v, 1) if (c, i) == (0, 0) else 152 + 8 * v + i
        X0 = lambda c, i: 168 + 4 * c + 2 * (i - 2) if i in (2, 3) else 188 + (2 if i == 4 else 0)
        TU, TA, O = 192, 210, 226
        sP, sXM, sXB, sD = 90, 95, 39, 45
        cur = [-1]; Q = []; D = []
        st8 = dict(m0=None, soff=None)
        first = lambda k: min(s["n"] for s in STEPS if s["kap"] == k)
        dist = cfg.get("dist", 3); npro = cfg.get("npro", 3); nearly = cfg.get("nearly", 2)
        x1 = cfg.get("x1at", 1)
        xrd = {c: x1 + 1 if c == 1 else first(c - 1) for c in range(1, 5)}
        nrd = cfg.get("nrd", 5)
        xfree = {c: xrd[c] + 13 // nrd if c else 1 for c in range(5)}
        p2 = cfg.get("prof2")

        def wait(tag):
            pos = max([i for i, (t, o) in enumerate(Q) if t == tag], default=-1)
            if pos < 0: return
            a(f"s_waitcnt vmcnt({sum(1 for t, o in Q[pos + 1:] if not o)})")
            del Q[:pos + 1]

        def dwait(pred):
            pos = max([i for i, t in enumerate(D) if pred(t)], default=-1)
            if pos < 0: return
            a(f"s_waitcnt lgkmcnt({min(15, len(D)-1-pos)})")
            del D[:pos + 1]

        def setm0(reg, off):
            if st8["m0"] != (reg, off): a(f"s_add_u32 m0, s{reg}, {off}"); st8["m0"] = (reg, off)

        def setoff(key, txt):
            if st8["soff"] != key: a(txt); st8["soff"] = key

        def xdma(c, j):
            assert c < 2 or xfree[c - 2] < cur[0]
            setm0(sXM, (c & 1) * STGB + 1024 * j)
            setoff(("x", c), f"s_movk_i32 s{sOFF}, {64*c}")
            a(f"buffer_load_dwordx4 v{DX+j}, {srd(sX)}, s{sOFF} offen lds")
            Q.append((("x", c), False))

        def piece(n, i):
            st = STEPS[n]; kind = st["kind"]
            d = srd(sW) if st["src"] == "W" else srd(sG)
            sc = "" if st["src"] == "W" else " sc1"
            setm0(sM5 if kind == "k16" else sM4, st["slot"] * SLOT + 4096 * (i // 4))
            setoff(n, f"s_add_u32 s{sOFF}, s{sP}, {st['soff']}" if kind == "pair" else f"s_mov_b32 s{sOFF}, {st['soff'] + (73728 if kind == 'k16' else 0)}")
            off = f" offset:{1024*(i%4)}" if i % 4 else ""
            a(f"buffer_load_dwordx4 v{(DK if kind == 'k16' else DA)+i}, {d}, s{sOFF} offen{off}{sc} lds")
            Q.append((("w", n), False))
            assert len(Q) <= 60
        pieces = [(n, i) for n in range(92) for i in range(5 if STEPS[n]["kind"] == "k16" else 9)]

        def waddr(r, base, n, t):
            L = [f"v_lshl_add_u32 v{t}, v0, 4, s{base}", f"s_lshr_b32 s{sT0}, s{base}, 4", f"v_add_u32 v{t+1}, s{sT0}, v0", f"v_mul_u32_u24 v{t+1}, 3641, v{t+1}"]
            for i in range(n):
                L += [f"v_add_u32 v{t+2}, {64*3641*i}, v{t+1}" if i else f"v_mov_b32 v{t+2}, v{t+1}", f"v_lshrrev_b32 v{t+2}, 15, v{t+2}", f"v_and_b32 v{t+2}, 32, v{t+2}"]
                if i and i % 4 == 0: L.append(f"v_add_u32 v{t}, 4096, v{t}")
                L.append(f"v_xor_b32 v{r+i}, v{t}, v{t+2}")
            return L

        def xrows(r, n, t):
            L = []
            for j in range(1, n): L.append(f"v_add_u32 v{r+j}, {16*j}, v{r}")
            for j in range(n): L.append(f"v_mul_u32_u24 v{t+j}, 6554, v{r+j}")
            for j in range(n): L.append(f"v_lshrrev_b32 v{t+j}, 16, v{t+j}")
            for j in range(n): L.append(f"v_and_b32 v{t+j}, 2, v{t+j}")
            for j in range(n): L.append(f"v_xor_b32 v{r+j}, v{r+j}, v{t+j}")
            for j in range(n): L.append(f"v_mul_u32_u24 v{r+j}, 288, v{r+j}")
            for j in range(n): L.append(f"v_lshl_add_u32 v{r+j}, v31, 4, v{r+j}")
            return L

        def emit(x):
            if callable(x): x()
            elif isinstance(x, tuple):
                assert x[2] <= cur[0] <= x[1], (x, cur)
                a(x[0]); D.append(("w", x[1]))
            else: a(x)

        def mix(ents, ops):
            k = max(1, len(ents) - 1); j = 0
            for i, e in enumerate(ents or [lambda: None]):
                e()
                if i < k:
                    j2 = (len(ops) * (i + 1) + k - 1) // k
                    for x in ops[j:j2]: emit(x)
                    j = j2
            for x in ops[j:]: emit(x)

        def st2(n, k):
            if p2:
                r = 50 + 6 * (n & 1) + 2 * k
                a(f"s_memtime s[{r}:{r+1}]")

        def sv2(n):
            if p2 and n >= 0:
                for k in range(3): a(f"v_writelane_b32 v{246+2*k+n//64}, s{50+6*(n&1)+2*k}, {n%64}")

        def take(jobs, flat, fp, n):
            need_ = 0; cum = 0
            for j, jb in enumerate(jobs):
                rem = sum(1 for x, jj in flat[fp:] if jj == j)
                if not rem: continue
                cum += rem
                need_ = max(need_, -(-cum // max(1, jb[2] - n + 1)))
            ops = []
            while len(ops) < need_ and fp < len(flat) and jobs[flat[fp][1]][1] <= n and not (isinstance(flat[fp][0], tuple) and flat[fp][0][2] > n + 1):
                ops.append(flat[fp][0]); fp += 1
            for j, jb in enumerate(jobs):
                if jb[2] <= n: assert not any(jj == j for x, jj in flat[fp:]), (n, j)
            return ops, fp

        def wo_dma(j):
            setm0(sT3, WO + 4096 * j)
            setoff(("wo", j), f"s_add_u32 s{sOFF}, s{sT3}, {4096*j}")
            if j == 10: l = skip_unless(sLW, 0)
            a(f"buffer_load_dwordx4 v29, {srd(sWO)}, s{sOFF} offen lds")
            Q.append(("wo", j == 10))
            if j == 10: a(l)

        def misc(regs):
            L = []
            for r, p, n in regs:
                L += [f"s_mov_b32 s{r}, s{p}", f"s_mov_b32 s{r+1}, s{p+1}", f"s_mov_b32 s{r+2}, {n}", f"s_mov_b32 s{r+3}, 0x20000"]
            return L + [f"s_mul_i32 s{sT0}, s{sGI}, 46080", (lambda: (a(f"s_add_u32 s{sO}, s10, s{sT0}"), a(f"s_addc_u32 s{sO+1}, s11, 0"))),
                        f"s_mov_b32 s{sO+2}, 46080", f"s_mov_b32 s{sO+3}, 0x20000"]

        def run(name, jobs, ent, head, tail):
            flat = [(x, j) for j, jb in enumerate(jobs) for x in jb[0]]
            fp = 0; pend = []
            for n in range(92):
                st2(n, 0)
                cur[0] = n
                ents = ent(n)
                ops, fp = take(jobs, flat, fp, n)
                pend.sort(key=lambda x: (x[2] > n, x[1]))
                wr = set().union(*[Ins(x).w for x in ops if isinstance(x, str)])
                av = [x for x in pend if x[2] <= n]
                now = [x for x in pend if Ins(x[0]).r & wr or x[1] <= n]
                k = max([1] + [i + 1 - (x[1] - n) for i, x in enumerate(av)])
                for x in av:
                    if len(now) < k and x not in now: now.append(x)
                for x in now: pend.remove(x)
                for i, y in enumerate(ops):
                    if isinstance(y, tuple): assert not any(Ins(y[0]).r & Ins(x).w for x in ops[i:] if isinstance(x, str))
                pend.extend(x for x in ops if isinstance(x, tuple))
                ops = [x for x in ops if not isinstance(x, tuple)]
                if cfg.get("verbose"): print(name, "interval", n, "ents", len(ents), "reads", len(head[n]), "ops", len(ops), "writes", [x[1] for x in now])
                for x in now[:1]: emit(x)
                for f in head[n]: f()
                g2 = cfg.get("gap2", 4)
                mix(ents, ops[:g2] + now[1:] + ops[g2:] if not any(Ins(y[0]).r & Ins(x).w for y in now[1:] for x in ops[:g2] if isinstance(x, str)) else now[1:] + ops)
                sv2(n - 1)
                st2(n, 1)
                wait(("w", n + 1))
                for f in tail[n]: f()
                if n == 91: wait("wo"); assert not Q and not pend
                assert all(x[1] > n for x in pend), (n, pend)
                dwait(lambda t: t[0] == "w" and t[1] <= n)
                st2(n, 2)
                a("s_barrier")
            if p2:
                a("s_waitcnt lgkmcnt(0)"); sv2(91)
                a(f"s_add_u32 s{sG}, s14, 0x200000"); a(f"s_addc_u32 s{sG+1}, s15, 0"); a(f"s_mov_b32 s{sG+2}, 0x200000"); a(f"s_mov_b32 s{sG+3}, 0x20000")
                a(f"s_lshl_b32 s{sT0}, s2, 2"); a(f"s_add_u32 s{sT0}, s{sT0}, s{sLW}"); a(f"s_lshl_b32 s{sT0}, s{sT0}, 11")
                a("v_lshlrev_b32 v166, 2, v0")
                for k in range(6): a(f"buffer_store_dword v{246+k}, v166, {srd(sG)}, s{sT0} offen offset:{256*k}")

        def pre_end():
            self.stamp(12)
            if cfg.get("lprio0", 3) != cfg.get("lprio", 0): a(f"s_setprio {cfg.get('lprio', 0)}")
            a("s_barrier")
            self.stamp(1)
        mk = lambda: {n: [] for n in range(92)}
        E, E2 = self.lepi_addr()

        a("L_loader:")
        if cfg.get("lprio0", 3): a(f"s_setprio {cfg.get('lprio0', 3)}")
        a(f"s_sub_u32 s{sLW}, s{sWV}, 4")
        a("v_lshrrev_b32 v29, 2, v0"); a("v_and_b32 v31, 3, v0")
        a(f"s_mul_i32 s{sT2}, s{sLW}, 48"); a(f"v_add_u32 v{XG}, s{sT2}, v29")
        for x in xrows(XG, 3, 152): a(x)
        a(f"s_mul_i32 s{sXM}, s{sLW}, 3072"); a(f"s_add_u32 s{sXM}, s{sXM}, {STG}")
        a(f"s_and_b32 s{sD}, s{sLW}, 1")
        a("s_waitcnt lgkmcnt(0)")
        self.stamp(6)
        self.x_srd()
        a(f"s_mul_i32 s{sXB}, s{sT0}, 288")
        for j in range(3): a(f"v_add_u32 v{XG+j}, s{sXB}, v{XG+j}")
        for j in range(3):
            setm0(sXM, 1024 * j)
            a(f"buffer_load_dwordx4 v{XG+j}, {srd(sX)}, 0 offen lds"); Q.append((("x", 0), False))
        self.stamp(7)
        a(f"s_cmp_ge_u32 s{sLW}, 2"); a("s_cbranch_scc1 L_xf")
        Q0 = list(Q)

        self.mk_srd(sW, 6, 0, 15 * MAT)
        a(f"s_mul_i32 s{sM4}, s{sD}, 9216")
        L = waddr(DA, sM4, 9, 60)
        for x in L[:8]: a(x)
        L = L[8:]
        for i in range(9):
            piece(0, i)
            if i < 8:
                k = 5 if i % 4 == 3 else 4
                for x in L[:k]: a(x)
                L = L[k:]
        assert not L
        self.stamp(8)
        ops = [f"s_mul_i32 s{sT2}, s{sD}, 96", f"v_add_u32 v{DX}, s{sT2}, v29"] + xrows(DX, 6, 60) + [f"v_add_u32 v{DX+j}, s{sXB}, v{DX+j}" for j in range(6)]
        ops += [f"s_mul_i32 s{sXM}, s{sD}, 6144", f"s_add_u32 s{sXM}, s{sXM}, {STG}"]
        pp = 9 * nearly
        mix([lambda p=p: piece(*p) for p in pieces[9:pp]], ops)
        st8["m0"] = None
        for j in range(6): xdma(1, j)
        self.stamp(9)
        wait(("x", 0))
        self.stamp(10)
        a("s_barrier")
        for p in pieces[pp:9 * npro]: piece(*p)
        pp = [max(pp, 9 * npro)]
        self.stamp(11)
        wait(("w", 0))
        pre_end()
        jobs = [(misc(((sG, 14, 10 * MAT), (sWO, 8, 41472))) + [f"s_add_u32 s{sP}, s{sD}, 1", f"s_mul_i32 s{sP}, s{sP}, 73728", f"s_lshl_b32 s{sM5}, s{sD}, 12", "v_mov_b32 v21, 0"]
                 + waddr(DK, sM5, 5, 60), 2, 25), (E, 85, 86), (E2, 86, 91)]
        xl = mk(); head = mk(); tail = mk()
        for c in range(1, 5):
            tail[xrd[c] - 1].append(lambda c=c: wait(("x", c)))
            if c > 1:
                n1 = xrd[c] - cfg.get("xe", 3); n0 = max(xfree[c - 2] + 1, n1 - 9 if c > 2 else 0, xrd[c - 1] - cfg.get("xe", 3) + 1)
                for j in range(6): xl[n0 + j * (n1 - n0 + 1) // 6].append(lambda c=c, j=j: xdma(c, j))
        npoll = cfg.get("npoll", 33)

        def poll():
            a("global_load_dword v22, v21, s[12:13] sc1"); Q.append(("poll", False))

        def check():
            wait("poll")
            a(f"v_readfirstlane_b32 s{sT0}, v22"); a(f"s_cmp_lt_u32 s{sT0}, {NPROD}"); a("s_cbranch_scc1 L_spin"); a("L_gok:")
        xl[npoll].append(poll); tail[npoll + 4].append(check)
        for j in range(11): xl[87 + (j + 1) // 4].append(lambda j=j: wo_dma(j))

        def ent(n):
            ents = []
            while pp[0] < len(pieces) and pieces[pp[0]][0] <= n + dist and len(ents) < cfg.get("rate", 11):
                ents.append(lambda p=pieces[pp[0]]: piece(*p)); pp[0] += 1
            assert pp[0] == len(pieces) or pieces[pp[0]][0] > n + 1
            return ents + xl[n]
        run("dma", jobs, ent, head, tail)
        a("s_branch L_lepi")

        a(".p2align 6")
        a("L_xf:")
        Q[:] = Q0; D[:] = []; st8.update(m0=None, soff=None); cur[0] = -1
        xiss = set()

        def xread(c, v, i):
            if v == 2: a(f"ds_read_b64 {vr(X0(c,i),2)}, v{XAr(i,1)} offset:{(c&1)*STGB+640*i}")
            else: a(f"ds_read_b128 {vr(X(c,v,i))}, v{XAr(i,0)} offset:{(c&1)*STGB+640*i+256*v}")
            assert cur[0] <= xfree[c]
            D.append(("xr", c, v, i)); xiss.add((c, v, i))

        def xw(c, v, *ii):
            def f():
                assert all((c, v, i) in xiss for i in ii), (c, v, ii)
                dwait(lambda t: t[0] == "xr" and t[1:3] == (c, v) and t[3] in ii)
            return f

        def frag_job(srcs, outs, nd=4, ob=0):
            U = []; A = []; C = []
            for d in range(nd):
                tu = TU + (8 * d if len(srcs) == 4 else 6 * (d % 3)); ta = TA + 8 * (d % 2)
                u = []
                for k, r in enumerate(srcs):
                    u += [f"v_lshlrev_b32 v{tu+2*k}, 16, v{r+d}", f"v_and_b32 v{tu+2*k+1}, s{sMASK}, v{r+d}"]
                ad = []; cv = []
                for k, (op, i, j, _) in enumerate(outs):
                    ad += [f"{op} v{ta+2*k+h}, v{tu+2*i+h}, v{tu+2*j+h}" for h in (0, 1)]
                    cv.append(f"v_cvt_pk_bf16_f32 v{O+ob+nd*k+d}, v{ta+2*k}, v{ta+2*k+1}")
                U.append(u); A.append(ad); C.append(cv)
            L = list(U[0])
            for d in range(nd):
                if d + 1 < nd: L += U[d + 1]
                L += A[d]
                if d: L += C[d - 1]
            L += C[nd - 1]
            return L, [wt(O + ob + nd * k) for k, (_, _, _, wt) in enumerate(outs) if wt]
        SUB, ADD = "v_sub_f32", "v_add_f32"

        def jobs_of(kap):
            c = kap % 5; ub = (UB1 if kap & 1 else UB0) - UB1
            f = first(kap); l = f - 1
            e0 = first(kap - 1) if kap else -1
            half = c == 4
            wr, w0 = (UWRH, UW0H) if half else (UWR, UW0)
            W4 = lambda v, idx, dl: (lambda o: (f"ds_write_b128 v{wr}, {vr(o)} offset:{ub+idx*1024+2048*(1-v)}", dl, e0))
            W2 = lambda i0, i1: (f"ds_write2st64_b64 v{w0}, {vr(O+16,2)}, {vr(O+18,2)} offset0:{(ub+i0*1024)//512} offset1:{(ub+i1*1024)//512}", l, e0)
            J = lambda w, v, ii, outs: (lambda L, W: (w + L, W))(*frag_job([X(c, v, i) for i in ii], outs, 4, 8 * v))
            if kap == 0:
                return [J([xw(c, v, 2, 4)], v, (2, 4), [(SUB, 0, 1, W4(v, 5, l))]) for v in (0, 1)] + [J([xw(c, v, 0)], v, (0, 2), [(SUB, 0, 1, W4(v, 15, f + 5))]) for v in (0, 1)]
            if kap < 5:
                d10, d15 = (l, l) if half else (f, f + 5)
                Ja = [J([xw(c, v, 0, 2, 4)], v, (0, 2, 4), [(SUB, 1, 2, W4(v, 5, l)), (SUB, 0, 1, W4(v, 15, d15))]) for v in (0, 1)]
                Jb = [J([xw(c, v, 1, 3)], v, (1, 3), [(SUB, 0, 1, W4(v, 10, d10))]) for v in (0, 1)]
                Lg, _ = frag_job([X0(c, 2), X0(c, 4), X0(c, 1), X0(c, 3)], [(SUB, 0, 1, None), (SUB, 2, 3, None)], 2, 16)
                return Ja + [([xw(c, 2, 1, 2, 3, 4)] + Lg, [W2(5, 10)])] + Jb
            d10, d14, d19 = (l, f + 2, f + 2) if half else (f, f + 4, f + 5)
            Ja = [J([], v, (2, 3), [(ADD, 0, 1, W4(v, 5, l)), (SUB, 1, 0, W4(v, 14, d14))]) for v in (0, 1)]
            Jb = [J([], v, (1, 2), [(ADD, 0, 1, W4(v, 10, d10)), (SUB, 1, 0, W4(v, 19, d19))]) for v in (0, 1)]
            Lg, _ = frag_job([X0(c, 2), X0(c, 3)], [(ADD, 0, 1, None), (SUB, 1, 0, None)], 2, 16)
            return Ja + [(Lg, [W2(5, 14)])] + Jb

        for x in [f"s_mov_b32 s{sMASK}, 0xffff0000",
                  "v_lshlrev_b32 v167, 1, v31", "v_xor_b32 v166, v29, v167",
                  "v_lshl_add_u32 v166, v31, 4, v166", "v_lshlrev_b32 v166, 4, v166",
                  f"s_lshl_b32 s{sT0}, s{sLW}, 10", f"s_sub_u32 s{sT0}, {UB1-1024}, s{sT0}", f"v_add_u32 v{UWR}, s{sT0}, v166",
                  f"s_lshl_b32 s{sT0}, s{sD}, 3", f"s_add_u32 s{sT1}, s{sT0}, {UB1}", f"v_add_u32 v{UW0}, s{sT1}, v166",
                  "v_and_b32 v167, 2, v31", "v_lshlrev_b32 v167, 9, v167",
                  f"v_sub_u32 v{UW0H}, v{UW0}, v167", f"v_sub_u32 v{UWRH}, v{UWR}, v167"]: a(x)
        for x in self.xaddr(sD, 166, [(i, 0, XAr(i, 0)) for i in range(4)]): a(x)
        a(f"s_lshl_b32 s{sT2}, s{sD}, 1")
        for x in self.xaddr(sT2, 166, [(i, 1, XAr(i, 1)) for i in (1, 2, 3, 4)]): a(x)
        for x in misc(((sWO, 8, 41472),)): emit(x)
        self.stamp(9)
        wait(("x", 0))
        self.stamp(10)
        a("s_barrier")
        J0 = jobs_of(0)
        for v in (0, 1):
            for i in (2, 4): xread(0, v, i)
        for L, W in J0[:2]:
            for x in L + W: emit(x)
        self.stamp(11)
        dwait(lambda t: t[0] == "w")
        pre_end()
        jobs = []; xl = mk(); head = mk(); tail = mk()
        for j, (v, i) in enumerate([(0, 0), (1, 0), (0, 1), (0, 3), (1, 1), (1, 3), (2, 2), (2, 3)]): head[j // 4].append(lambda v=v, i=i: xread(0, v, i))
        for L, W in J0[2:]: jobs.append((L + W, 0, cfg.get("tg0", 2)))
        XRD = [(0, 2), (0, 4), (0, 0), (1, 2), (1, 4), (1, 0), (2, 2), (2, 4), (2, 1), (2, 3), (0, 1), (0, 3), (1, 1), (1, 3)]
        for c in range(5): tail[xfree[c]].append(lambda c=c: dwait(lambda t: t[0] == "xr" and t[1] == c))
        for kap in range(1, 10):
            f = first(kap - 1); l = first(kap) - 1
            if kap < 5:
                r = xrd[kap]
                if kap == 4: jobs.append((["v_and_b32 v30, 2, v0", "v_lshlrev_b32 v30, 4, v30"] + [f"v_sub_u32 v{r}, v{r}, v30" for r in range(6, 14)], 23, 29))
                for j, (v, i) in enumerate(XRD): head[r + j // nrd].append(lambda c=kap, v=v, i=i: xread(c, v, i))
                st_ = r + cfg.get("xst", 0)
            else: st_ = f - 1 if kap >= 6 else 37
            tg = {1: (5, 6, 7, 8, 9), 4: (31, 33, 34, 36, 37), 5: (39, 41, 42, 44, 45), 9: (77, 79, 80, 82, 83)}.get(kap, (l - 4, l - 3, l - 2, l - 1, l - 1 if kap < 5 else l - 1))
            for (L, W), t in zip(jobs_of(kap), tg): jobs.append((L + W, st_, t))
        jobs += [(E, 85, 86), (E2, 86, 91)]
        for j in range(11): xl[87 + (j + 1) // 4].append(lambda j=j: wo_dma(j))
        run("xf", jobs, lambda n: xl[n], head, tail)
        a("L_lepi:")
        self.wat = set()
        self.lepi()

    def producer(self):
        a = self.a; cfg = self.cfg
        a("L_prod:")
        if cfg.get("hexit"): a("s_endpgm")
        a(f"s_lshr_b32 s{sT3}, s2, 3")
        a(f"s_lshl_b32 s{sT0}, s{sWV}, 6"); a(f"v_add_u32 v40, s{sT0}, v0")
        a("v_and_b32 v41, 255, v40")
        a(f"s_cmp_lt_u32 s{sWV}, 4"); a("s_cbranch_scc1 L_pnocode")
        NL = f"((L_code_end-{KN})/128/7+1)"
        a(f"s_mul_i32 s{sT0}, s{sT3}, {NL}"); a(f"v_min_u32 v42, {NL}-1, v41"); a(f"v_add_u32 v42, s{sT0}, v42")
        a("v_lshlrev_b32 v42, 7, v42"); a(f"v_min_u32 v42, L_code_end-{KN}-4, v42")
        a(f"global_load_dword v50, v42, s[{sPC}:{sPC+1}]")
        a("L_pnocode:")
        a(f"s_mul_i32 s{sT1}, s{sT3}, 206"); a(f"v_min_u32 v41, 205, v41"); a(f"v_add_u32 v41, s{sT1}, v41")
        a("v_mul_u32_u24 v42, 29128, v41"); a("v_lshrrev_b32 v42, 22, v42")
        a("v_mul_u32_u24 v43, 64512, v42"); a("v_lshl_add_u32 v41, v41, 7, v43")
        a("v_cmp_le_u32 vcc, 5, v42")
        a("v_mov_b32 v43, 0"); a(f"v_mov_b32 v44, {5*MAT}")
        a("v_cndmask_b32 v43, v43, v44, vcc"); a("v_add_u32 v41, v41, v43")
        a("s_mul_i32 s3, s2, 464"); a("v_add_u32 v1, s3, v40")
        a("s_add_u32 s3, s3, 464"); a("s_min_u32 s3, s3, 25920")
        a("v_cmp_gt_u32 vcc, s3, v1")
        a("v_lshlrev_b32 v1, 4, v1"); a(f"v_mov_b32 v2, {OOB:#x}")
        a("v_cndmask_b32 v1, v2, v1, vcc")
        a(f"s_mov_b32 s{sMASK}, 0xffff0000")
        a(f"s_mov_b32 s{sT0}, {5*MAT}"); a(f"s_mov_b32 s{sT1}, {10*MAT}")
        a("s_waitcnt lgkmcnt(0)")
        self.mk_srd(sW, 6, 0, 15 * MAT)
        a(f"s_cmp_ge_u32 s{sWV}, 4"); a("s_cbranch_scc1 L_pnow")
        a(f"buffer_load_dword v50, v41, {srd(sW)}, 0 offen")
        a("L_pnow:")
        self.mk_srd(sG, 14, 0, 10 * MAT); self.mk_srd(sX, 4, 0, 2 * 4608000); self.mk_srd(sWO, 8, 0, 41472)
        a(f"v_mul_u32_u24 v42, 7, v40"); a(f"v_add_u32 v42, s{sT3}, v42")
        a("v_mul_u32_u24 v43, 10923, v42"); a("v_lshrrev_b32 v43, 20, v43")
        a("v_mul_u32_u24 v44, 96, v43"); a("v_sub_u32 v44, v42, v44")
        a("v_cmp_gt_u32 vcc, 2400, v42")
        a(f"v_mul_u32_u24 v43, {46080 if cfg.get('xmap', 1) else 8*46080}, v43"); a("v_lshrrev_b32 v45, 1, v44"); a("v_mul_u32_u24 v45, 1152, v45"); a("v_add_u32 v43, v43, v45")
        a(f"s_and_b32 s{sT2}, s2, 7"); a(f"s_mul_i32 s{sT2}, s{sT2}, {25*46080 if cfg.get('xmap', 1) else 46080}"); a(f"s_sub_u32 s{sT2}, s{sT2}, {32*288}")
        a(f"v_add_u32 v43, s{sT2}, v43"); a("v_and_b32 v44, 1, v44")
        a("v_lshl_add_u32 v45, v44, 8, v43"); a("v_add_u32 v45, 384, v45"); a("v_cndmask_b32 v45, v2, v45, vcc")
        a("v_mul_u32_u24 v44, 896, v44"); a("v_add_u32 v46, v43, v44"); a("v_add_u32 v46, 128, v46"); a("v_cndmask_b32 v46, v2, v46, vcc")
        a(f"s_mul_i32 s{sT2}, s{sT3}, 47"); a("v_min_u32 v47, 46, v40"); a(f"v_add_u32 v47, s{sT2}, v47"); a("v_lshlrev_b32 v47, 7, v47")
        a(f"s_mul_i32 s{sT2}, s{sT3}, 926"); a(f"v_add_u32 v48, s{sT2}, v40"); a("v_min_u32 v49, 413, v40"); a(f"v_add_u32 v49, s{sT2}, v49")
        a("v_lshlrev_b32 v48, 7, v48"); a("v_lshlrev_b32 v49, 7, v49"); a("v_add_u32 v49, 0x10000, v49")
        hx, hw, hd = cfg.get("hx", 2), cfg.get("hw", 1), cfg.get("hd", 3)
        a(f"s_lshr_b32 s{sT2}, s{sWV}, 2"); a(f"s_mul_i32 s{sT2}, s{sT2}, {SLOT}"); a(f"s_add_u32 s{sT2}, s{sT2}, {SLOT}")
        a(f"s_add_u32 s{sT3}, s{sT2}, {2*SLOT}")
        if hd & 1: a("s_waitcnt vmcnt(0)")
        if hw: a(f"buffer_load_dword v50, v41, {srd(sW)}, s{sT2} offen")
        a(f"buffer_load_dword v50, v47, {srd(sWO)}, 0 offen")
        if hd & 2: a("s_waitcnt vmcnt(0)")
        if not cfg.get("noprod"):
            a(f"buffer_load_dwordx4 v[4:7], v1, {srd(sW)}, 0 offen")
            a(f"buffer_load_dwordx4 v[8:11], v1, {srd(sW)}, s{sT0} offen")
            a(f"buffer_load_dwordx4 v[12:15], v1, {srd(sW)}, s{sT1} offen")
        nt = 0
        if hx & 1: a(f"buffer_load_dword v50, v45, {srd(sX)}, 0 offen"); nt += 1
        if hx & 2: a(f"buffer_load_dword v50, v46, {srd(sX)}, 0 offen"); nt += 1
        a(f"s_waitcnt vmcnt({nt})")
        for d in range(4):
            for j, s in enumerate((4, 8, 12)):
                a(f"v_lshlrev_b32 v{24+2*j}, 16, v{s+d}"); a(f"v_and_b32 v{25+2*j}, s{sMASK}, v{s+d}")
            a("v_add_f32 v24, v24, v28"); a("v_add_f32 v25, v25, v29")
            a("v_add_f32 v28, v24, v26"); a("v_add_f32 v29, v25, v27")
            a("v_sub_f32 v24, v24, v26"); a("v_sub_f32 v25, v25, v27")
            a(f"v_cvt_pk_bf16_f32 v{16+d}, v28, v29"); a(f"v_cvt_pk_bf16_f32 v{20+d}, v24, v25")
        if not cfg.get("noprod"):
            a(f"buffer_store_dwordx4 v[16:19], v1, {srd(sG)}, 0 offen sc1")
            a(f"buffer_store_dwordx4 v[20:23], v1, {srd(sG)}, s{sT0} offen sc1")
        a("s_waitcnt vmcnt(0)")
        a("s_barrier")
        a("v_mov_b32 v1, 0"); a("v_mov_b32 v2, 1")
        a(f"s_cmp_lg_u32 s{sWV}, 0"); a("s_cbranch_scc1 L_pnoat")
        a("s_mov_b64 exec, 1")
        if not cfg.get("hnoatom"): a("global_atomic_add v3, v1, v2, s[12:13] sc0 sc1")
        a("s_mov_b64 exec, -1")
        a("s_waitcnt vmcnt(0)")
        a("L_pnoat:")
        if hw: a(f"buffer_load_dword v50, v41, {srd(sW)}, s{sT3} offen")
        a(f"s_cmp_lg_u32 s{sWV}, 0"); a("s_cbranch_scc1 L_pwait")
        a("s_waitcnt vmcnt(0)")
        a("L_ppoll:")
        if cfg.get("hnopoll"): a("s_branch L_pwait")
        if cfg.get("spinmax"): a(f"s_mov_b32 s{sT1}, 0")
        a("L_ppoll2:")
        if cfg.get("spinmax"):
            a(f"s_add_u32 s{sT1}, s{sT1}, 1"); a(f"s_cmp_ge_u32 s{sT1}, {cfg['spinmax']}"); a("s_cbranch_scc1 L_pwait")
        a("global_load_dword v3, v1, s[12:13] sc1")
        a("s_waitcnt vmcnt(0)")
        a(f"v_readfirstlane_b32 s{sT0}, v3"); a(f"s_cmp_lt_u32 s{sT0}, {NPROD}"); a("s_cbranch_scc1 L_ppoll2")
        a("L_pwait:")
        a("s_barrier")
        if cfg.get("hg", 1):
            a(f"buffer_load_dword v50, v48, {srd(sG)}, 0 offen sc1")
            a(f"buffer_load_dword v50, v49, {srd(sG)}, 0 offen sc1")
        a("s_waitcnt vmcnt(0)")
        a("L_exit:")
        a("s_endpgm")

    def build(self):
        a = self.a
        a(f"s_getpc_b64 s[{sPC}:{sPC+1}]")
        a("s_load_dwordx8 s[4:11], s[0:1], 0")
        a("s_load_dwordx4 s[12:15], s[0:1], 32")
        a(f"s_sub_u32 s{sPC}, s{sPC}, 4"); a(f"s_subb_u32 s{sPC+1}, s{sPC+1}, 0")
        a("v_lshrrev_b32 v1, 6, v0")
        a(f"s_sub_u32 s{sGI}, s2, {NHELP}")
        if self.cfg.get("xmap", 1):
            a(f"s_and_b32 s3, s2, 7"); a(f"s_mul_i32 s3, s3, 25"); a(f"s_lshr_b32 s{sGI}, s{sGI}, 3"); a(f"s_add_u32 s{sGI}, s{sGI}, s3")
        a(f"v_readfirstlane_b32 s{sWV}, v1")
        a("v_and_b32 v0, 63, v0")
        if self.prof:
            a(f"s_memtime s[{sTS}:{sTS+1}]"); a(f"s_memrealtime s[{sTS+14}:{sTS+15}]")
        a(f"s_cmp_lt_u32 s2, {NHELP}"); a("s_cbranch_scc1 L_prod")
        a(f"s_cmp_ge_u32 s2, {NHELP+NMAIN}"); a("s_cbranch_scc1 L_exit")
        a(f"s_cmp_ge_u32 s{sWV}, 4"); a("s_cbranch_scc1 L_loader")
        self.compute_prologue()
        self.producer()
        a(".p2align 6")
        self.loader2() if self.cfg.get("split") else self.loader()
        for w in range(4): self.compute_main(w)
        self.compute_epilogue()
        a("L_code_end:")
        nn = a.fix(verbose=self.cfg.get("verbose", False))
        hdr = open("standalone__autoregressive_conv_wavenet__speech.s.ref").read().split("\n")
        i0 = next(i for i, x in enumerate(hdr) if x.startswith("; @launch"))
        i1 = next(i for i, x in enumerate(hdr) if x.startswith(KN + ":"))
        i2 = next(i for i, x in enumerate(hdr) if x.startswith(".section .rodata"))
        hdr[i0] = f"; @launch grid=({NHELP+NMAIN},1,1) block=(512,1,1) lds={LDS}"
        txt = "\n".join(hdr[:i1 + 1]) + "\n" + a.text() + "\n".join(hdr[i2:]) + "\n"
        return txt, nn


if __name__ == "__main__":
    assert all((i * 3641) >> 20 == i // 288 for i in range(1152))
    assert all((i * 10923) >> 20 == i // 96 for i in range(2400))
    assert all((i * 3641) >> 16 == i // 18 for i in range(640))
    assert all((i * 29128) >> 22 == i // 144 for i in range(1500))
    assert all((i * 6554) >> 16 == i // 10 for i in range(192))
    out = sys.argv[1]
    cfg = {}
    for x in sys.argv[2:]:
        k, v = x.split("=", 1)
        try: v = int(v)
        except ValueError: pass
        cfg[k] = v
    g0 = Gen(prof=False, cfg=dict(cfg, verbose=0, wpl=0)); g0.build()
    g1 = Gen(prof=bool(cfg.get("prof", 0)), cfg=cfg); g1.wplan = g0.wat
    txt, nn = g1.build()
    assert g1.wat == g0.wat
    open(out, "w").write(txt)
    print(out, "lines", txt.count("\n"), "hazard nops", nn)
```

```python
import sys, struct
from asmlib import Asm

KN = "standalone__autoregressive_conv_wavenet__speech_kernel"
NPROD, NHELP, NMAIN = 56, 56, 200
SLOT, MAT = 18432, 82944
UB1, UB0 = 92160, 111616
UXOR = UB0 ^ UB1
WO, LDS = 121856, 163840
ST, STROW, STBUF, EX = 46080, 304, 9728, 98304
OOB = 0x80000000
STG, STGB = 131072, 12288
LOG2E = 1.4426950408889634


def f2u(f):
    return struct.unpack("<I", struct.pack("<f", f))[0]


def vr(b, n=4):
    return f"v[{b}:{b+n-1}]"


def build_steps():
    S = []
    for c in range(4):
        for s in range(10):
            S.append(dict(kind="full", src="W", soff=(s if s < 5 else s + 5) * MAT + c * SLOT, acc="Q" if s < 5 else "P",
                          kap=c, idx=[10 - (q - s + 5) for q in range(5)]))
    for kind, mat, acc, e0 in [("pair", 0, "Q", 5), ("pair", 2, "Q", 3), ("k16", 4, "Q", 1), ("pair", 10, "P", 0), ("pair", 12, "P", -2), ("k16", 14, "P", -4)]:
        S.append(dict(kind=kind, src="W", soff=mat * MAT, acc=acc, kap=4, idx=[10 - (q + e0) for q in range(5)]))
    for c in range(4):
        for s in range(10):
            S.append(dict(kind="full", src="G", soff=s * MAT + c * SLOT, acc="P" if s < 5 else "Q",
                          kap=5 + c, idx=[(5 if s < 5 else 14) - (q - s % 5) for q in range(5)]))
    for kind, mat, acc, e0 in [("pair", 0, "P", 0), ("pair", 2, "P", -2), ("k16", 4, "P", -4), ("pair", 5, "Q", 0), ("pair", 7, "Q", -2), ("k16", 9, "Q", -4)]:
        S.append(dict(kind=kind, src="G", soff=mat * MAT, acc=acc, kap=9, idx=[(5 if acc == "P" else 14) - (q + e0) for q in range(5)]))
    for n, s in enumerate(S):
        s["n"] = n; s["slot"] = n % 5
        s["keys"] = [(s["kap"], i, s["kind"] == "k16") for i in s["idx"]]
    return S


STEPS = build_steps()

sX, sW, sG, sO, sWO = 16, 20, 24, 28, 32
sWV, sGI, sLW = 36, 37, 38
sCNT, sT0, sT1, sT2, sT3 = 40, 41, 42, 43, 44
sM4, sM5, sHALF, sOFF = 46, 47, 48, 49
sCF, sCG, sCX, sONE, sM2, sTWO = 50, 52, 54, 56, 58, 60
sPC = 62
sMASK, sKU = 65, 66
BIAS = 24
sTS = 68


def srd(r):
    return f"s[{r}:{r+3}]"


vE, vO, vEh, vOh, vUA, vU16, vT, vE16, vO16 = 1, 2, 3, 4, 5, 6, 7, 18, 19
WB = dict(Fa=20, Ga=24, F8=28, G8=32, Fb=36, Gb=40)
UBUF = [44 + 4 * i for i in range(7)]
COL = dict(Fa=0, Ga=1, Fb=2, Gb=3)


def acc(name, q, which):
    t = COL[name] * 5 + q if name in COL else dict(F8=20, G8=21, X=22)[name]
    return 72 + 8 * t + (0 if which == "P" else 4)


class Gen:
    def __init__(self, prof=False, cfg=None):
        self.a = Asm(); self.prof = prof; self.cfg = cfg or {}
        self.nst = 0

    def stamp(self, i, real=False):
        if self.prof:
            self.a(f"s_memtime s[96:97]" if not real else f"s_memrealtime s[96:97]")
            self.a("s_waitcnt lgkmcnt(0)")
            self.a(f"s_mov_b32 s{sTS+i}, s96")

    def dump_stamps(self, off):
        if not self.prof: return
        a = self.a
        a(f"s_add_u32 s{sT0}, s14, 0x100000"); a(f"s_addc_u32 s{sT1}, s15, 0")
        a(f"s_mov_b32 s{sG}, s{sT0}"); a(f"s_mov_b32 s{sG+1}, s{sT1}"); a(f"s_mov_b32 s{sG+2}, 0x100000"); a(f"s_mov_b32 s{sG+3}, 0x20000")
        a(f"s_lshl_b32 s{sT0}, s2, 7"); a(f"s_add_u32 s{sT0}, s{sT0}, {off}")
        for i in range(16): a(f"v_mov_b32 v{8+i}, s{sTS+i}")
        a(f"v_mov_b32 v1, s{sT0}")
        a("s_mov_b64 exec, 1")
        for i in range(4): a(f"buffer_store_dwordx4 {vr(8+4*i)}, v1, {srd(sG)}, 0 offen offset:{16*i}")
        a("s_waitcnt vmcnt(0)")
        if self.cfg.get("dbg"):
            a("v_mov_b32 v1, 0")
            if off:
                a(f"v_mov_b32 v2, s{sTS+15}"); a(f"v_not_b32 v3, s{sTS+14}")
                a("global_atomic_umax v1, v2, s[12:13] offset:20 sc1"); a("global_atomic_umax v1, v3, s[12:13] offset:24 sc1")
            a("s_cmp_lg_u32 s2, 156"); a(f"s_cbranch_scc1 L_nodbg{off}")
            for j, m in enumerate((6, 10, 1, 3, 5, 15) if off else (1, 2, 3, 4)):
                a(f"s_sub_u32 s{sT0}, s{sTS+m}, s{sTS+(14 if m == 15 else 0)}"); a(f"v_mov_b32 v2, s{sT0}")
                a(f"global_store_dword v1, v2, s[12:13] offset:{(32 if off else 4)+4*j}")
            a(f"L_nodbg{off}:")
            a("s_waitcnt vmcnt(0)")

    def wread(self, w, name, st):
        T = dict(Fa=2 * w, Fb=2 * w + 1, Ga=9 + 2 * w, Gb=10 + 2 * w, F8=8, G8=17)[name]
        hi = st["slot"] >= 3
        base = (vO if T & 1 else vE) + (2 if hi else 0)
        off = st["slot"] * SLOT - (3 * SLOT if hi else 0) + 32 * T
        b = WB[name]
        if st["kind"] == "k16":
            assert st["slot"] <= 3
            base = vO16 if T & 1 else vE16
            off = st["slot"] * SLOT + 32 * T
        L = [f"ds_read_b64_tr_b16 {vr(b,2)}, v{base} offset:{off}"]
        if st["kind"] != "k16":
            L.append(f"ds_read_b64_tr_b16 {vr(b+2,2)}, v{base} offset:{off+2304}")
        return [(x, ("W", name, st["n"])) for x in L]

    def uread(self, key, buf):
        kap, idx, k16 = key
        if k16:
            ub = UB1 if kap & 1 else UB0
            return (f"ds_read_b64 {vr(UBUF[buf],2)}, v{vU16} offset:{ub-UB1+idx*1024}", ("U", key))
        return (f"ds_read_b128 {vr(UBUF[buf])}, v{vUA} offset:{idx*1024}", ("U", key))

    def emit_step(self, w, st, nxt, S, force=None, extra_gb=None, out=None):
        e = out.append
        Q = S["queue"]; umap = S["umap"]
        k16 = st["kind"] == "k16"
        n2 = 2 if k16 else 4
        opn = "v_mfma_f32_16x16x16_bf16" if k16 else "v_mfma_f32_16x16x32_bf16"

        AG = S.setdefault("age", {})
        mrg = self.cfg.get("mrg", 99); cap0 = self.cfg.get("cap", 2)

        def waitfor(keys):
            pos = -1
            for i, k in enumerate(Q):
                if k in keys: pos = i
            if pos < 0: return None
            while pos + 1 < len(Q) and AG[len(Q) - 2 - pos] >= mrg: pos += 1
            return len(Q) - 1 - pos, pos

        def dowait(keys):
            r = waitfor(keys)
            if r is None: return
            e(f"s_waitcnt lgkmcnt({min(15, r[0])})")
            del Q[:r[1] + 1]
            for i in list(AG):
                if i >= len(Q): del AG[i]

        def push(k):
            Q.append(k)
            for i in range(len(Q) - 1, 0, -1): AG[i] = AG[i - 1]
            AG[0] = 0

        def run(ms, loads, last_cap, pre=0):
            loads = list(loads)
            for i, (an, q, wn) in enumerate(ms):
                uk = st["keys"][q]
                dowait({("W", wn, st["n"]), ("U", uk)} | ({("W", "Fb", st["n"]), ("W", "Gb", st["n"])} if pre and i == len(ms) - pre else set()))
                d = acc(an, q, st["acc"])
                e(f"{opn} {vr(d)}, {vr(WB[wn], n2)}, {vr(UBUF[umap[uk]], n2)}, {vr(d)}")
                for j in AG: AG[j] += 1
                cap = cap0
                if len(loads) > len(ms) - last_cap - i: cap = 2
                if i + 1 < len(ms):
                    an2, q2, wn2 = ms[i + 1]
                    if waitfor({("W", wn2, st["n"]), ("U", st["keys"][q2])}) is not None: cap = min(cap, 1) if cap0 == 2 or self.cfg.get("capw", 1) else cap - 1
                else:
                    cap -= 1
                j = 0
                while cap > 0 and j < len(loads):
                    if loads[j][2] <= i:
                        t, k, _ = loads.pop(j)
                        e(t)
                        if k is not None: push(k)
                        cap -= 1
                    else:
                        j += 1
            for t, k, _ in loads:
                e(t)
                if k is not None: push(k)

        ga = [(c, q, c) for q in (4, 3, 2, 1, 0) for c in ("Fa", "Ga")]
        gs = [("F8", w, "F8"), ("G8", w, "G8")]
        if w == 0: gs.append(("X", 4, "F8"))
        if w == 1: gs.append(("X", 4, "G8"))
        gb = [(c, q, c) for q in (4, 3, 2, 1, 0) for c in ("Fb", "Gb")]
        la = [(t, k, 0) for nm in ("F8", "G8") for t, k in self.wread(w, nm, st)]
        la += [(t, k, 2) for nm in ("Fb", "Gb") for t, k in self.wread(w, nm, st)]
        run(ga + gs, la, self.cfg.get('lca', 4), self.cfg.get('wpre', 0))
        dowait({("W", "Fb", st["n"]), ("W", "Gb", st["n"])})
        assert not Q
        e("s_barrier")
        lb = []
        if nxt is not None:
            if nxt["kap"] != st["kap"]:
                e(f"v_xor_b32 v{vUA}, {UXOR:#x}, v{vUA}")
            cur = st["keys"]
            keep = set(cur) | set(nxt["keys"])
            for k in list(umap):
                if k not in keep: del umap[k]
            freeat = {b: 0 for b in range(7) if b not in umap.values()}
            for q in range(5):
                if cur[q] not in nxt["keys"]:
                    freeat[umap[cur[q]]] = 2 * (4 - q) + 1
            newm = {}
            ul = []
            for q in (4, 3, 2, 1, 0):
                k = nxt["keys"][q]
                if k in umap: continue
                if force is not None:
                    b = force(k)
                    assert b in freeat, (st["n"], k, b, umap, freeat)
                else:
                    b = min(freeat, key=lambda x: (freeat[x], x))
                t, kk = self.uread(k, b)
                ul.append((2 * (4 - q), t, kk, freeat.pop(b)))
                newm[k] = b
            fa = self.wread(w, "Fa", nxt); gaa = self.wread(w, "Ga", nxt)
            allr = [(0, t, k, 0) for t, k in fa] + [(1, t, k, 0) for t, k in gaa] + ul
            allr.sort(key=lambda x: x[0])
            lb = [(t, k, g) for _, t, k, g in allr]
        if extra_gb:
            lb += [(t, None, 6) for t in extra_gb]
        run(gb, lb, self.cfg.get('lcb', 3))
        if nxt is not None:
            for k in list(umap):
                if k not in nxt["keys"]: del umap[k]
            umap.update(newm)

    @staticmethod
    def shift_state(S, dn, dk):
        q = []
        for k in S["queue"]:
            if k[0] == "W": q.append(("W", k[1], k[2] + dn))
            else: q.append(("U", (k[1][0] + dk, k[1][1], k[1][2])))
        return dict(queue=q, umap={(k[0] + dk, k[1], k[2]): b for k, b in S["umap"].items()}, age=dict(S.get("age", {})))

    def al8(self, L):
        m = self.cfg.get("al8", 0)
        if not m: return L
        out = []; par = 0
        for x in L:
            sz = 4 if x.startswith("s_") else 8
            if sz == 8 and par != (m - 1) * 4:
                out.append("s_nop 0"); par ^= 4
            out.append(x); par = (par + sz) % 8
        if par: out.append("s_nop 0")
        return out

    def phase(self, w, n0, force, S0, hooks):
        a = self.a
        lab = f"L_c{w}_{n0}"
        Send = dict(queue=[], umap=dict(S0), age={})
        for it in range(5):
            S = dict(queue=list(Send["queue"]), umap=dict(Send["umap"]), age=dict(Send["age"]))
            body = []
            for n in range(n0, n0 + 10):
                ex = [f"s_add_u32 s{sCNT}, s{sCNT}, 1", f"s_cmp_lt_u32 s{sCNT}, {3 if hooks else 4}"] if n == n0 + 9 else None
                self.emit_step(w, STEPS[n], STEPS[n + 1], S, force, ex, body)
            chk = self.shift_state(S, -10, -1)
            assert chk["umap"] == S0
            if chk == Send: break
            Send = chk
        assert chk == Send
        a(f"s_mov_b32 s{sCNT}, 0")
        a(".p2align 3")
        a(lab + ":")
        for x in self.al8(body): a(x)
        if hooks:
            a(f"s_cbranch_scc1 {lab}_hook")
            a(f"s_cmp_lt_u32 s{sCNT}, 4")
        a(f"s_cbranch_scc1 {lab}")
        S = self.shift_state(S, 30, 3)
        return S, lab

    def compute_main(self, w):
        a = self.a
        a(".p2align 6")
        a(f"L_cw{w}:")
        fA = lambda k: (k[1] - 1) % 7
        fB = lambda k: (k[1] - 1) % 6
        st0 = STEPS[0]
        S0 = {k: fA(k) for k in st0["keys"]}
        a("s_barrier")
        self.stamp(1)
        for nm in ("Fa", "Ga"):
            for t, _ in self.wread(w, nm, st0): a(t)
        for q in (4, 3, 2, 1, 0):
            a(self.uread(st0["keys"][q], S0[st0["keys"][q]])[0])
        a("s_waitcnt lgkmcnt(0)")
        S, labA = self.phase(w, 0, fA, S0, False)
        out = []
        for n in range(40, 46):
            self.emit_step(w, STEPS[n], STEPS[n + 1], S, fB if n == 45 else None, None, out)
        if self.cfg.get("al8"): a("s_nop 0")
        for x in self.al8(out): a(x)
        self.stamp(2)
        tiles = [COL["Fa"] * 5 + q for q in (4, 3, 2, 1, 0)] + [COL["Ga"] * 5 + q for q in (4, 3, 2, 1, 0)] + [20, 21] + ([22] if w < 2 else [])
        tiles += [COL[c] * 5 + q for q in (4, 3, 2, 1, 0) for c in ("Fb", "Gb")]
        prs = [(72 + 8 * t + h, 76 + 8 * t + h) for t in tiles for h in (0, 2)]
        for i in range(0, len(prs), 4):
            for p, q in prs[i:i + 4]: a(f"v_pk_add_f32 {vr(p,2)}, {vr(p,2)}, {vr(q,2)} neg_lo:[0,1] neg_hi:[0,1]")
            for p, q in prs[i:i + 4]: a(f"v_pk_fma_f32 {vr(q,2)}, {vr(q,2)}, s[{sTWO}:{sTWO+1}], {vr(p,2)}")
        a("s_waitcnt lgkmcnt(0)")
        S0 = {k: fB(k) for k in STEPS[46]["keys"]}
        assert S["umap"] == S0
        S, labB = self.phase(w, 46, fB, S0, False)
        out = []
        for n in range(86, 92):
            self.emit_step(w, STEPS[n], STEPS[n + 1] if n < 91 else None, S, None, None, out)
        if self.cfg.get("al8"): a("s_nop 0")
        for x in self.al8(out): a(x)
        a("s_branch L_cepi")

    def epi_addr(self):
        a = self.a
        a("v_lshlrev_b32 v13, 3, v0"); a("v_lshlrev_b32 v14, 4, v0")
        a(f"s_lshl_b32 s{sT0}, s{sWV}, 10"); a(f"v_add_u32 v12, s{sT0}, v14")
        a(f"s_lshr_b32 s{sT1}, s{sWV}, 1"); a(f"s_and_b32 s{sT2}, s{sWV}, 1")
        a(f"s_lshl_b32 s{sT0}, s{sT1}, 10"); a(f"s_lshl_b32 s{sT3}, s{sT2}, 3"); a(f"s_add_u32 s{sT0}, s{sT0}, s{sT3}")
        a(f"s_add_u32 s{sT0}, s{sT0}, {EX}"); a(f"v_add_u32 v15, s{sT0}, v14")
        a(f"s_mul_i32 s{sT0}, s{sT1}, 4608"); a(f"s_lshl_b32 s{sT3}, s{sT2}, 2"); a(f"s_add_u32 s{sT0}, s{sT0}, s{sT3}")
        a(f"s_add_u32 s{sT0}, s{sT0}, {4096+8*4608}"); a(f"v_add_u32 v16, s{sT0}, v13")
        a(f"s_lshl_b32 s{sT0}, s{sWV}, 11"); a(f"s_add_u32 s{sT0}, s{sT0}, {EX}"); a(f"v_add_u32 v14, s{sT0}, v14")
        a(f"s_mul_i32 s{sT0}, s{sWV}, 9216"); a(f"s_add_u32 s{sT0}, s{sT0}, 4096"); a(f"v_add_u32 v13, s{sT0}, v13")

    @staticmethod
    def bfly_ops(prs):
        L = [(p + h, q + h, c) for p, q, c in prs for h in (0, 2)]
        return ([f"v_pk_mul_f32 {vr(q,2)}, {vr(q,2)}, s[{c}:{c+1}]" for p, q, c in L],
                [f"v_pk_fma_f32 {vr(p,2)}, {vr(p,2)}, s[{c}:{c+1}], {vr(q,2)}" for p, q, c in L],
                [f"v_pk_fma_f32 {vr(q,2)}, {vr(q,2)}, s[{sM2}:{sM2+1}], {vr(p,2)}" for p, q, c in L])

    def compute_epilogue(self):
        a = self.a; cfg = self.cfg
        a(".p2align 6")
        a("L_cepi:")
        self.stamp(3)
        if cfg.get("cprio"): a(f"s_setprio {cfg['cprio']}")
        a("v_mov_b32 v32, 0.5"); a("v_mov_b32 v33, 0.5")
        a(f"s_cmp_ge_u32 s{sWV}, 2"); a("s_cbranch_scc1 L_nox")
        for L in self.bfly_ops([(acc("X", 0, "P"), acc("X", 0, "Q"), sCX), ]):
            for x in L: a(x)
        a(f"ds_write_b128 v14, {vr(acc('X',0,'P'))}")
        a(f"ds_write_b128 v14, {vr(acc('X',0,'Q'))} offset:1024")
        a("L_nox:")
        B = lambda q: sum(self.bfly_ops([(acc(c, q, "P"), acc(c, q, "Q"), sCF if c[0] == "F" else sCG) for c in ("Fa", "Ga", "Fb", "Gb")]), [])
        pr = lambda f, g, q, wh: [(acc(f, q, wh) + h, acc(g, q, wh) + h) for h in (0, 2)]
        EF = lambda P: [f"v_exp_f32_e64 v{f+i}, v{f+i} clamp" for f, g in P for i in (0, 1)]
        EG = lambda P: [f"v_exp_f32 v{g+i}, v{g+i}" for f, g in P for i in (0, 1)]
        RC = lambda P: [f"v_rcp_f32 v{g+i}, v{g+i}" for f, g in P for i in (0, 1)]
        UP = lambda P: [f"v_pk_fma_f32 {vr(f,2)}, {vr(f,2)}, s[{sKU}:{sKU+1}], v[32:33]" for f, g in P]
        US = lambda P: [f"v_fma_f32 v{f+i}, v{f+i}, s{sKU}, 0.5" for f, g in P for i in (0, 1)]
        DP = lambda P: [f"v_pk_fma_f32 {vr(g,2)}, {vr(f,2)}, {vr(g,2)}, {vr(f,2)}" for f, g in P]
        DS = lambda P: [f"v_fma_f32 v{g+i}, v{f+i}, v{g+i}, v{f+i}" for f, g in P for i in (0, 1)]
        ZP = lambda P: [f"v_pk_fma_f32 {vr(f,2)}, {vr(f,2)}, {vr(g,2)}, {vr(g,2)} neg_lo:[1,0,0] neg_hi:[1,0,0]" for f, g in P]
        ZS = lambda P: [f"v_fma_f32 v{f+i}, -v{f+i}, v{g+i}, v{g+i}" for f, g in P for i in (0, 1)]
        CV = lambda P, o: [f"v_cvt_pk_bf16_f32 v{o+j}, v{f}, v{f+1}" for j, (f, g) in enumerate(P)]
        S0, S1 = pr("F8", "G8", 0, "P"), pr("F8", "G8", 0, "Q"); S = S0 + S1
        L = sum(self.bfly_ops([(acc("F8", 0, "P"), acc("F8", 0, "Q"), sCF), (acc("G8", 0, "P"), acc("G8", 0, "Q"), sCG)]), [])
        L += EF(S) + UP(S) + EG(S) + DP(S) + RC(S) + ZP(S) + CV(S0, 28) + ["ds_write_b64 v13, v[28:29]"] + CV(S1, 30) + ["ds_write_b64 v13, v[30:31] offset:4608"]
        for x in L: a(x)
        nb, nu, nd, nz = cfg.get("nb", 6), cfg.get("nu", 8), cfg.get("nd", 0), cfg.get("nz", 0)
        for q in range(5):
            Y = [pr("Fa", "Ga", q, wh) + pr("Fb", "Gb", q, wh) for wh in "PQ"]
            P = Y[0] + Y[1]
            L = B(q) + EF(P)
            bar = ["s_waitcnt lgkmcnt(0)", "s_barrier"] if q else []
            if q == 1:
                bar += ["ds_read_b64 v[44:45], v15", "ds_read_b64 v[46:47], v15 offset:2048"]
            L = L[:24 + nb] + bar + L[24 + nb:]
            L += UP(P) if q == 0 else UP(P[:nu]) + US(P[nu:])
            X = []
            if q == 1:
                X = [(44, 46)]
                L += EG(P[:2]) + ["s_waitcnt lgkmcnt(0)"] + EF(X) + EG(P[2:] + X) + US(X)
            else: L += EG(P)
            PX = X + P
            L += DP(P) if q == 0 else DS(PX[:len(PX) - nd]) + DP(PX[len(PX) - nd:])
            L += RC(PX)
            if X: L += ZS(X) + ZS(P[:nz]) + CV(X, 36) + ["ds_write_b32 v16, v36"] + ZP(P[nz:])
            else: L += ZP(P) if q == 0 else ZS(P[:nz]) + ZP(P[nz:])
            for y in (0, 1): L += CV(Y[y], 20 + 4 * y) + [f"ds_write_b128 v12, {vr(20+4*y)} offset:{(2*q+y)*4608}"]
            for x in L: a(x)
        a("s_waitcnt lgkmcnt(0)")
        a("s_barrier")
        self.stamp(4)
        if self.prof:
            a(f"s_cmp_lg_u32 s{sWV}, 0"); a("s_cbranch_scc1 L_cend")
            self.stamp(15, True)
            self.dump_stamps(0)
            a("L_cend:")
        a("s_endpgm")

    def compute_prologue(self):
        a = self.a
        a("L_compute:")
        a("v_lshrrev_b32 v12, 4, v0")
        a("v_bfe_u32 v13, v0, 2, 2")
        a("v_lshl_add_u32 v17, v12, 2, v13")
        a("v_lshl_add_u32 v13, v12, 3, v13")
        a("v_mul_u32_u24 v13, 576, v13"); a("v_mul_u32_u24 v17, 576, v17")
        a("v_and_b32 v14, 3, v0"); a("v_lshl_add_u32 v13, v14, 3, v13"); a("v_lshl_add_u32 v17, v14, 3, v17")
        a("v_and_b32 v14, 1, v12"); a("v_lshlrev_b32 v15, 5, v14")
        a(f"v_add_u32 v{vE}, v13, v15"); a(f"v_sub_u32 v{vO}, v13, v15")
        a(f"v_add_u32 v{vEh}, {3*SLOT}, v{vE}"); a(f"v_add_u32 v{vOh}, {3*SLOT}, v{vO}")
        a("v_and_b32 v15, 32, v0")
        a(f"v_add_u32 v{vE16}, v17, v15"); a(f"v_sub_u32 v{vO16}, v17, v15")
        a("v_and_b32 v13, 15, v0")
        a("v_lshlrev_b32 v15, 1, v12"); a("v_xor_b32 v15, v15, v13")
        a("v_lshl_add_u32 v15, v12, 4, v15"); a("v_lshlrev_b32 v15, 4, v15")
        a(f"v_add_u32 v{vUA}, {UB0}, v15")
        a("v_lshrrev_b32 v12, 1, v12")
        a("v_lshlrev_b32 v15, 1, v12"); a("v_xor_b32 v15, v15, v13")
        a("v_lshl_add_u32 v15, v12, 4, v15"); a("v_lshlrev_b32 v15, 4, v15")
        a("v_lshl_add_u32 v15, v14, 3, v15")
        a(f"v_add_u32 v{vU16}, {UB1}, v15")
        cF, cG = f2u(-LOG2E), f2u(-LOG2E / 2)
        for r, v in ((sCF, cF), (sCG, cG), (sONE, f2u(1.0)), (sM2, f2u(-2.0)), (sTWO, f2u(2.0))):
            a(f"s_mov_b32 s{r}, {v:#x}"); a(f"s_mov_b32 s{r+1}, {v:#x}")
        a(f"s_cmp_eq_u32 s{sWV}, 0"); a(f"s_cselect_b32 s{sCX}, s{sCF}, s{sCG}"); a(f"s_mov_b32 s{sCX+1}, s{sCX}")
        f32 = lambda v: struct.unpack("<f", struct.pack("<f", v))[0]
        hb = f32(BIAS / LOG2E / 2)
        ku = f2u(0.5 * 2.0 ** (2 * hb * f32(LOG2E)))
        a(f"s_mov_b32 s{sKU}, {ku:#x}"); a(f"s_mov_b32 s{sKU+1}, {ku:#x}")
        a(f"s_mov_b32 s46, {f2u(hb):#x}"); a(f"s_mov_b32 s47, {f2u(-hb):#x}")
        a(f"s_cselect_b32 s48, s46, 0"); a(f"s_cselect_b32 s49, s47, 0")
        self.stamp(7)
        self.epi_addr()
        if self.cfg.get("pro2"): self.compute_pro2()
        else:
            for r in range(72, 256):
                t, h = (r - 72) // 8, (r - 72) // 4 & 1
                a(f"v_mov_b32 v{r}, {'s%d' % (48 + h) if t == 22 else 's%d' % (46 + h) if t == 20 or (t < 20 and t // 5 in (COL['Fa'], COL['Fb'])) else 0}")
            for x in self.xaddr(sWV, 36, [(1, 0, 30), (3, 0, 31), (1, 1, 8), (2, 1, 9), (3, 1, 10), (4, 1, 11)]): a(x)
            a("v_lshrrev_b32 v36, 2, v0"); a("v_and_b32 v37, 3, v0")
            a("v_lshlrev_b32 v38, 1, v37"); a("v_xor_b32 v36, v36, v38"); a("v_lshl_add_u32 v36, v37, 4, v36"); a("v_lshlrev_b32 v36, 4, v36")
            a(f"s_lshl_b32 s{sT0}, s{sWV}, 10"); a(f"s_sub_u32 s{sT0}, {UB0+9*1024}, s{sT0}"); a(f"v_add_u32 v34, s{sT0}, v36")
            a(f"s_lshl_b32 s{sT0}, s{sWV}, 2"); a(f"s_add_u32 s{sT0}, s{sT0}, {UB0}"); a(f"v_add_u32 v35, s{sT0}, v36")
            a(f"s_mov_b32 s{sMASK}, 0xffff0000")
            self.stamp(8)
            if self.prof: a("s_waitcnt lgkmcnt(0)")
            a("s_barrier")
            a("ds_read_b32 v28, v9 offset:1280"); a("ds_read_b32 v29, v11 offset:2560")
            a("ds_read_b32 v32, v8 offset:640"); a("ds_read_b32 v33, v10 offset:1920")
            a("ds_read_b128 v[20:23], v30 offset:640"); a("ds_read_b128 v[24:27], v31 offset:1920")
            U = lambda t, p, q: [f"v_lshlrev_b32 v{t}, 16, v{p}", f"v_and_b32 v{t+1}, s{sMASK}, v{p}", f"v_lshlrev_b32 v{t+2}, 16, v{q}", f"v_and_b32 v{t+3}, s{sMASK}, v{q}"]
            S = lambda t: [f"v_sub_f32 v{t}, v{t}, v{t+2}", f"v_sub_f32 v{t+1}, v{t+1}, v{t+3}"]
            a("s_waitcnt lgkmcnt(4)")
            for x in U(40, 28, 29): a(x)
            a("s_waitcnt lgkmcnt(2)")
            for x in U(64, 32, 33) + S(40) + S(64): a(x)
            a("v_cvt_pk_bf16_f32 v40, v40, v41"); a("v_cvt_pk_bf16_f32 v41, v64, v65")
            a("s_waitcnt lgkmcnt(0)")
            for d in range(4):
                for x in U(44 + 4 * d, 20 + d, 24 + d): a(x)
                if d == 0: a("ds_write2st64_b32 v35, v40, v41 offset0:20 offset1:40")
            for d in range(4):
                for x in S(44 + 4 * d): a(x)
            for d in range(4): a(f"v_cvt_pk_bf16_f32 v{60+d}, v{44+4*d}, v{45+4*d}")
            a("ds_write_b128 v34, v[60:63]")
            a("s_waitcnt lgkmcnt(0)")
        for w in (1, 2, 3):
            a(f"s_cmp_eq_u32 s{sWV}, {w}"); a(f"s_cbranch_scc1 L_cw{w}")
        a("s_branch L_cw0")

    def compute_pro2(self):
        a = self.a
        for i in range(8): a(f"s_mov_b32 s{84+i}, s{46+i//2}")
        for r in range(72, 256, 2):
            t, h = (r - 72) // 8, (r - 72) // 4 & 1
            b = 88 + 2 * h if t == 22 else 84 + 2 * h if t == 20 or (t < 20 and t // 5 in (COL['Fa'], COL['Fb'])) else None
            if self.cfg.get("mov64", 1): a(f"v_mov_b64 v[{r}:{r+1}], {'s[%d:%d]' % (b, b+1) if b else 0}")
            else:
                for i in (0, 1): a(f"v_mov_b32 v{r+i}, {'s%d' % b if b else 0}")
        a("v_lshrrev_b32 v36, 2, v0"); a("v_and_b32 v37, 3, v0")
        a("v_lshlrev_b32 v38, 1, v37"); a("v_xor_b32 v36, v36, v38"); a("v_lshl_add_u32 v36, v37, 4, v36"); a("v_lshlrev_b32 v36, 4, v36")
        a(f"s_lshl_b32 s{sT0}, s{sWV}, 10"); a(f"s_sub_u32 s{sT0}, {UB0+4*1024}, s{sT0}"); a(f"v_add_u32 v34, s{sT0}, v36")
        a(f"s_lshl_b32 s{sT0}, s{sWV}, 2"); a(f"s_add_u32 s{sT0}, s{sT0}, {UB0}"); a(f"v_add_u32 v35, s{sT0}, v36")
        a(f"s_mov_b32 s{sMASK}, 0xffff0000")
        self.stamp(8)
        U = lambda t, p, q: [f"v_lshlrev_b32 v{t}, 16, v{p}", f"v_and_b32 v{t+1}, s{sMASK}, v{p}", f"v_lshlrev_b32 v{t+2}, 16, v{q}", f"v_and_b32 v{t+3}, s{sMASK}, v{q}"]
        S = lambda t: [f"v_sub_f32 v{t}, v{t}, v{t+2}", f"v_sub_f32 v{t+1}, v{t+1}, v{t+3}"]
        a("s_waitcnt vmcnt(2)")
        self.stamp(9)
        for d in range(4):
            for x in U(56 + 4 * d, 44 + d, 52 + d): a(x)
        for d in range(4):
            for x in S(56 + 4 * d): a(x)
        for d in range(4): a(f"v_cvt_pk_bf16_f32 v{20+d}, v{56+4*d}, v{57+4*d}")
        a("ds_write_b128 v34, v[20:23]")
        a("s_waitcnt vmcnt(0)")
        for x in U(40, 28, 29) + S(40): a(x)
        a("v_cvt_pk_bf16_f32 v40, v40, v41")
        a("ds_write_b32 v35, v40 offset:5120")
        a("s_waitcnt lgkmcnt(0)")
        self.stamp(10)

    def entry2(self):
        a = self.a; cfg = self.cfg; sXB = 39
        xm = cfg.get("xmod", "")
        a("v_lshrrev_b32 v1, 6, v0")
        a(f"s_cmp_lt_u32 s2, {NHELP}"); a("s_cbranch_scc1 L_hent")
        a(f"v_readfirstlane_b32 s{sWV}, v1")
        a("s_lshr_b32 s3, s2, 8"); a("s_cbranch_scc1 L_exit")
        assert NHELP + NMAIN == 256
        a("v_and_b32 v0, 63, v0")
        a(f"s_sub_u32 s{sGI}, s2, {NHELP}"); a("s_and_b32 s3, s2, 7"); a("s_mul_i32 s3, s3, 25"); a(f"s_lshr_b32 s{sGI}, s{sGI}, 3"); a(f"s_add_u32 s{sGI}, s{sGI}, s3")
        a("v_lshrrev_b32 v2, 3, v0"); a("v_bfe_u32 v3, v0, 2, 1"); a("v_and_b32 v4, 3, v0")
        a(f"s_cmp_ge_u32 s{sGI}, 100"); a(f"s_cselect_b32 s{sT0}, 100, 0"); a(f"s_cselect_b32 s{sT1}, 4608000, 0")
        a("v_mul_u32_u24 v2, 5760, v2"); a("v_mul_u32_u24 v3, 288, v3")
        a(f"s_sub_u32 s{sT0}, s{sGI}, s{sT0}"); a(f"s_mul_i32 s{sXB}, s{sT0}, 46080"); a(f"s_sub_u32 s{sXB}, s{sXB}, 8640")
        a("v_lshl_add_u32 v2, v4, 4, v2"); a("v_add_u32 v2, v2, v3")
        a(f"s_mov_b32 s{sX+2}, 4608000"); a(f"s_mov_b32 s{sX+3}, 0x20000")
        a(f"s_cmp_lt_u32 s{sWV}, 4"); a("s_cbranch_scc1 L_cent")
        if cfg.get("lprio0", 3): a(f"s_setprio {cfg.get('lprio0', 3)}")
        a(f"s_sub_u32 s{sLW}, s{sWV}, 4"); a(f"s_and_b32 s45, s{sWV}, 1"); a(f"s_mul_i32 m0, s{sLW}, 4608"); a(f"s_lshl_b32 s{sT0}, s45, 5")
        a("v_lshlrev_b32 v5, 4, v0"); a(f"v_xor_b32 v5, s{sT0}, v5")
        a(f"s_mov_b32 s{sW+2}, {15*MAT}"); a(f"s_mov_b32 s{sW+3}, s{sX+3}")
        a("s_waitcnt lgkmcnt(0)")
        a(f"s_mov_b32 s{sW}, s6"); a(f"s_mov_b32 s{sW+1}, s7")
        for o in (0, 1024, 2048, 3072, 3584): a(f"buffer_load_dwordx4 v5, {srd(sW)}, m0 offen offset:{o} lds")
        a(f"s_add_u32 s{sX}, s4, s{sT1}"); a(f"s_addc_u32 s{sX+1}, s5, 0")
        a(f"s_cmp_lt_u32 s{sLW}, 2"); a("s_cbranch_scc1 L_loader"); a("s_branch L_xf")
        a("L_hent:")
        a("s_lshr_b32 s3, s2, 3"); a("v_lshrrev_b32 v2, 2, v0"); a("s_lshl_b32 s3, s3, 7"); a("v_add_lshl_u32 v2, v2, s3, 7")
        a(f"v_min_u32 v2, L_code_end-{KN}-8, v2")
        a(f"global_load_dword v50, v2, s[{sPC}:{sPC+1}]")
        a("s_branch L_prod")
        a("L_cent:")
        a(f"s_mul_i32 s{sT2}, s{sWV}, 576"); a(f"s_add_u32 s{sT3}, s{sXB}, 5760"); a(f"s_add_u32 s{sT2}, s{sT2}, s{sT3}"); a(f"s_lshl2_add_u32 s{sT3}, s{sWV}, s{sT3}")
        a(f"v_add_u32 v3, s{sT2}, v2"); a(f"v_add_u32 v8, s{sT3}, v2"); a("v_add_u32 v4, 5760, v3"); a("v_add_u32 v9, 5760, v8")
        a("s_waitcnt lgkmcnt(0)")
        a(f"s_add_u32 s{sX}, s4, s{sT1}"); a(f"s_addc_u32 s{sX+1}, s5, 0")
        a("v_add_u32 v3, 576, v3"); a("v_add_u32 v4, 576, v4")
        a(f"buffer_load_dwordx4 v[44:47], v3, {srd(sX)}, 0 offen{xm}"); a(f"buffer_load_dwordx4 v[52:55], v4, {srd(sX)}, 0 offen{xm}")
        a(f"buffer_load_dword v28, v8, {srd(sX)}, 0 offen{xm}"); a(f"buffer_load_dword v29, v9, {srd(sX)}, 0 offen{xm}")
        a("L_entry_end:")
        self.stamp(6)

    def x_srd(self):
        a = self.a
        a(f"s_cmp_ge_u32 s{sGI}, 100"); a(f"s_cselect_b32 s{sT0}, 100, 0"); a(f"s_cselect_b32 s{sT1}, 4608000, 0")
        a(f"s_sub_u32 s{sT0}, s{sGI}, s{sT0}"); a(f"s_mul_i32 s{sT0}, s{sT0}, 160"); a(f"s_sub_u32 s{sT0}, s{sT0}, 30")
        a(f"s_add_u32 s{sX}, s4, s{sT1}"); a(f"s_addc_u32 s{sX+1}, s5, 0"); a(f"s_mov_b32 s{sX+2}, 4608000"); a(f"s_mov_b32 s{sX+3}, 0x20000")

    def xaddr(self, sw, t, regs):
        L = [f"v_lshrrev_b32 v{t}, 3, v0", f"v_mul_u32_u24 v{t+1}, 1280, v{t}", f"v_and_b32 v{t+2}, 7, v0", f"v_lshl_add_u32 v{t+1}, v{t+2}, 4, v{t+1}",
             f"v_and_b32 v{t}, 1, v{t}", f"v_lshlrev_b32 v{t}, 7, v{t}", f"v_xor_b32 v{t+2}, 0x80, v{t}"]
        if any(g0 for _, g0, _ in regs):
            L += [f"s_lshl_b32 s{sT0}, s{sw}, 2", f"s_add_u32 s{sT0}, s{sT0}, {STG}", f"v_add_u32 v{t+3}, s{sT0}, v{t+1}"]
            for i, g0, r in regs:
                if g0: L.append(f"{'v_sub_u32' if i & 1 else 'v_add_u32'} v{r}, v{t+3}, v{t if i in (1, 4) else t+2}")
        L += [f"s_lshl_b32 s{sT0}, s{sw}, 7", f"s_add_u32 s{sT0}, s{sT0}, {STG+128}", f"v_add_u32 v{t+3}, s{sT0}, v{t+1}",
              f"s_and_b32 s{sT0}, s{sw}, 1", f"s_lshl_b32 s{sT0}, s{sT0}, 1", f"s_sub_u32 s{sT0}, s{sT0}, 1",
              f"v_mul_i32_i24 v{t}, s{sT0}, v{t}", f"v_mul_i32_i24 v{t+2}, s{sT0}, v{t+2}"]
        for i, g0, r in regs:
            if not g0: L.append(f"{'v_sub_u32' if i & 1 else 'v_add_u32'} v{r}, v{t+3}, v{t if i in (0, 1, 4) else t+2}")
        return L

    def mk_srd(self, r, p, off, n):
        a = self.a
        if off == 0:
            a(f"s_mov_b32 s{r}, s{p}"); a(f"s_mov_b32 s{r+1}, s{p+1}")
        else:
            a(f"s_add_u32 s{r}, s{p}, {off}"); a(f"s_addc_u32 s{r+1}, s{p+1}, 0")
        a(f"s_mov_b32 s{r+2}, {n}"); a(f"s_mov_b32 s{r+3}, 0x20000")

    def lepi_addr(self):
        ZA, Z16, WA, SA, SR, GO = 216, 217, 218, 219, 220, 223
        E = ["v_lshlrev_b32 v29, 4, v0", f"s_lshl_b32 s{sT3}, s{sLW}, 10"]
        E2 = []
        b = E2.append
        b(f"s_lshr_b32 s{sT0}, s{sLW}, 1"); b(f"s_and_b32 s{sT1}, s{sLW}, 1")
        b(f"s_mul_i32 s{sT2}, s{sT0}, 4608")
        b(f"v_lshlrev_b32 v166, 4, v0"); b(f"v_add_u32 v{ZA}, s{sT2}, v166")
        b(f"s_add_u32 s{sT2}, s{sT2}, 4096"); b(f"v_lshlrev_b32 v166, 3, v0"); b(f"v_add_u32 v{Z16}, s{sT2}, v166")
        b(f"s_mul_i32 s{sT1}, s{sT1}, 160")
        b("v_lshrrev_b32 v166, 2, v0"); b("v_mul_u32_u24 v166, 288, v166")
        b("v_and_b32 v167, 3, v0"); b("v_lshl_add_u32 v166, v167, 3, v166")
        b(f"s_add_u32 s{sT2}, s{sT1}, {WO}"); b(f"v_add_u32 v{WA}, s{sT2}, v166")
        b("v_and_b32 v166, 15, v0"); b(f"v_mul_u32_u24 v166, {STROW}, v166")
        b("v_lshrrev_b32 v167, 4, v0"); b("v_lshl_add_u32 v166, v167, 3, v166")
        b(f"s_mul_i32 s{sT2}, s{sT0}, {16*STROW}"); b(f"s_add_u32 s{sT2}, s{sT2}, s{sT1}"); b(f"s_add_u32 s{sT2}, s{sT2}, {ST}")
        b(f"v_add_u32 v{SA}, s{sT2}, v166")
        for m in range(3):
            if m < 2: b(f"s_lshl_b32 s{sT0}, s{sLW}, 6"); b(f"s_add_u32 s{sT0}, s{sT0}, {256*m}")
            else: b(f"s_mov_b32 s{sT0}, 512")
            b(f"v_add_u32 v166, s{sT0}, v0")
            b("v_mul_u32_u24 v167, 3641, v166"); b("v_lshrrev_b32 v167, 16, v167")
            b("v_mul_u32_u24 v168, 18, v167"); b("v_sub_u32 v166, v166, v168"); b("v_lshlrev_b32 v166, 4, v166")
            b(f"v_mul_u32_u24 v168, {STROW}, v167"); b("v_add_u32 v168, v168, v166"); b(f"v_add_u32 v{SR+m}, {ST}, v168")
            b("v_bfe_u32 v168, v167, 1, 3"); b("v_mul_u32_u24 v168, 20, v168")
            b("v_lshrrev_b32 v169, 4, v167"); b("v_mul_u32_u24 v169, 10, v169"); b("v_add_u32 v168, v168, v169")
            b("v_and_b32 v169, 1, v167"); b("v_add_u32 v168, v168, v169")
            b("v_mul_u32_u24 v168, 288, v168"); b(f"v_add_u32 v{GO+m}, v168, v166")
        return E, E2

    def skip_unless(self, cond_reg, val, op="eq"):
        self.nlab += 1
        self.a(f"s_cmp_{op}_u32 s{cond_reg}, {val}"); self.a(f"s_cbranch_scc0 L_sk{self.nlab}")
        return f"L_sk{self.nlab}:"

    def lepi(self):
        a = self.a; cfg = self.cfg; skip_unless = self.skip_unless
        ZA, Z16, WA, SA, SR, GO = 216, 217, 218, 219, 220, 223
        self.stamp(3)
        AF = lambda i, k: 32 + 18 * i + 4 * k
        AC, BF, CV, SD = 124, 144, 164, 176
        for i in range(5):
            for k in range(5):
                a(f"ds_read_b64_tr_b16 {vr(AF(i,k),2)}, v{WA} offset:{k*9216+i*32}")
                if k < 4: a(f"ds_read_b64_tr_b16 {vr(AF(i,k)+2,2)}, v{WA} offset:{k*9216+4608+i*32}")
        a(f"s_and_b32 s{sHALF}, s{sLW}, 1")
        if cfg.get("eprio", 2): a(f"s_setprio {cfg.get('eprio', 2)}")

        epx = cfg.get("epx", 0)

        def stage_out(q):
            if epx & 4: return 0
            for j in range(3): a(f"ds_read_b128 {vr(SD+4*j)}, v{SR+j} offset:{q*STBUF}")
            return 3

        def stage_store(q):
            if epx & 2: return
            sm = self.cfg.get("stmod", " sc1 nt")
            a(f"buffer_store_dwordx4 {vr(SD)}, v{GO}, {srd(sO)}, 0 offen offset:{576*q}{sm}")
            a(f"buffer_store_dwordx4 {vr(SD+4)}, v{GO+1}, {srd(sO)}, 0 offen offset:{576*q}{sm}")
            l = skip_unless(sLW, 0)
            a(f"buffer_store_dwordx4 {vr(SD+8)}, v{GO+2}, {srd(sO)}, 0 offen offset:{576*q}{sm}")
            a(l)

        def mm(i, k):
            if epx & 1: return
            n2 = 4 if k < 4 else 2
            opn = "v_mfma_f32_16x16x32_bf16" if k < 4 else "v_mfma_f32_16x16x16_bf16"
            a(f"{opn} {vr(AC+4*i)}, {vr(AF(i,k),n2)}, {vr(BF+4*k,n2)}, {vr(AC+4*i) if k != 4 else 0}")

        def fin(i, q):
            if epx & 4: return
            a(f"v_cvt_pk_bf16_f32 v{CV+2*i}, v{AC+4*i}, v{AC+4*i+1}"); a(f"v_cvt_pk_bf16_f32 v{CV+2*i+1}, v{AC+4*i+2}, v{AC+4*i+3}")
            a(f"ds_write_b64 v{SA}, {vr(CV+2*i,2)} offset:{q*STBUF+32*i}")

        def fin_all(q):
            l = skip_unless(sHALF, 0)
            fin(4, q)
            a(l)
            for i in range(4): fin(i, q)
            return 0 if epx & 4 else 4
        KO = (4, 0, 1, 2, 3)
        for q in range(5):
            a("s_waitcnt lgkmcnt(0)")
            a("s_barrier")
            a(f"ds_read_b64 {vr(BF+16,2)}, v{Z16} offset:{q*9216}")
            for k in range(4): a(f"ds_read_b128 {vr(BF+4*k)}, v{ZA} offset:{q*9216+k*1024}")
            nr = stage_out(q - 2) if q >= 2 else 0
            nw = fin_all(q - 1) if q >= 1 else 0
            for j, k in enumerate(KO):
                a(f"s_waitcnt lgkmcnt({4-j+nr+nw})")
                for i in range(5 if k == 4 else 4): mm(i, k)
                if j == 1 and q >= 2:
                    a(f"s_waitcnt lgkmcnt({nw})")
                    stage_store(q - 2)
                if j == 2 and q == 4:
                    a("s_waitcnt lgkmcnt(0)")
                    a("s_barrier")
                    stage_out(3)
            l = skip_unless(sHALF, 0)
            for k in KO[1:]: mm(4, k)
            a(l)
        a("s_waitcnt lgkmcnt(0)")
        stage_store(3)
        for i in range(4): fin(i, 4)
        l = skip_unless(sHALF, 0)
        fin(4, 4)
        a(l)
        a("s_waitcnt lgkmcnt(0)")
        a("s_barrier")
        stage_out(4)
        a("s_waitcnt lgkmcnt(0)")
        stage_store(4)
        if self.prof:
            self.stamp(4)
            a("s_waitcnt vmcnt(0)")
            self.stamp(5)
            self.stamp(15, True)
            a(f"s_cmp_lg_u32 s{sLW}, {cfg.get('plw', 0)}"); a("s_cbranch_scc1 L_lend")
            self.dump_stamps(64)
            a("L_lend:")
        a("s_endpgm")
        a("L_spin:")
        if cfg.get("spinmax"): a(f"s_mov_b32 s{sT1}, 0")
        a("L_spin2:")
        if cfg.get("spinmax"):
            a(f"s_add_u32 s{sT1}, s{sT1}, 1"); a(f"s_cmp_ge_u32 s{sT1}, {cfg['spinmax']}"); a("s_cbranch_scc1 L_gok")
        a("global_load_dword v22, v21, s[12:13] sc1")
        a("s_waitcnt vmcnt(0)")
        a(f"v_readfirstlane_b32 s{sT0}, v22"); a(f"s_cmp_lt_u32 s{sT0}, {NPROD}"); a("s_cbranch_scc1 L_spin2")
        a("s_branch L_gok")

    def loader2(self):
        from asmlib import Ins
        a = self.a; cfg = self.cfg; skip_unless = self.skip_unless
        self.nlab = 0
        XG, DA, DK, DX = 16, 32, 42, 48
        XAr = lambda i, g0: (10 + i - 1) if g0 else 6 + (0, 1, 2, 3, 0)[i]
        UWR, UWRH, UW0, UW0H = 25, 26, 27, 28
        XP = lambda c, v, i: 32 + 24 * c + 12 * v + 4 * (i - 1)
        X = lambda c, v, i: XP(c, v, i) if 1 <= i <= 3 else XP(4, v, 1) if (c, i) == (0, 0) else 152 + 8 * v + i
        X0 = lambda c, i: 168 + 4 * c + 2 * (i - 2) if i in (2, 3) else 188 + (2 if i == 4 else 0)
        TU, TA, O = 192, 210, 226
        sP, sXM, sXB, sD = 90, 95, 39, 45
        cur = [-1]; Q = []; D = []
        st8 = dict(m0=None, soff=None)
        first = lambda k: min(s["n"] for s in STEPS if s["kap"] == k)
        dist = cfg.get("dist", 3); npro = cfg.get("npro", 3); nearly = cfg.get("nearly", 2)
        x1 = cfg.get("x1at", 1)
        xrd = {c: x1 + 1 if c == 1 else first(c - 1) for c in range(1, 5)}
        xrd[2] = cfg.get("x2at", xrd[2])
        nrd = cfg.get("nrd", 5)
        nrdc = lambda c: cfg.get("nrd%d" % c, nrd)
        xfree = {c: xrd[c] + 13 // nrdc(c) if c else 1 for c in range(5)}
        p2 = cfg.get("prof2")

        def wait(tag):
            pos = max([i for i, (t, o) in enumerate(Q) if t == tag], default=-1)
            if pos < 0: return
            a(f"s_waitcnt vmcnt({sum(1 for t, o in Q[pos + 1:] if not o)})")
            del Q[:pos + 1]

        def dwait(pred):
            pos = max([i for i, t in enumerate(D) if pred(t)], default=-1)
            if pos < 0: return
            a(f"s_waitcnt lgkmcnt({min(15, len(D)-1-pos)})")
            del D[:pos + 1]

        def setm0(reg, off):
            if st8["m0"] != (reg, off): a(f"s_add_u32 m0, s{reg}, {off}"); st8["m0"] = (reg, off)

        def setoff(key, txt):
            if st8["soff"] != key: a(txt); st8["soff"] = key

        def xdma(c, j):
            assert c < 2 or xfree[c - 2] < cur[0]
            setm0(sXM, (c & 1) * STGB + 1024 * j)
            setoff(("x", c), f"s_movk_i32 s{sOFF}, {64*c}")
            a(f"buffer_load_dwordx4 v{DX+j}, {srd(sX)}, s{sOFF} offen lds")
            Q.append((("x", c), False))

        def piece(n, i):
            st = STEPS[n]; kind = st["kind"]
            d = srd(sW) if st["src"] == "W" else srd(sG)
            sc = "" if st["src"] == "W" else " sc1"
            setm0(sM5 if kind == "k16" else sM4, st["slot"] * SLOT + 4096 * (i // 4))
            setoff(n, f"s_add_u32 s{sOFF}, s{sP}, {st['soff']}" if kind == "pair" else f"s_mov_b32 s{sOFF}, {st['soff'] + (73728 if kind == 'k16' else 0)}")
            off = f" offset:{1024*(i%4)}" if i % 4 else ""
            a(f"buffer_load_dwordx4 v{(DK if kind == 'k16' else DA)+i}, {d}, s{sOFF} offen{off}{sc} lds")
            Q.append((("w", n), False))
            assert len(Q) <= 60
        pieces = [(n, i) for n in range(92) for i in range(5 if STEPS[n]["kind"] == "k16" else 9)]

        def waddr(r, base, n, t):
            L = [f"v_lshl_add_u32 v{t}, v0, 4, s{base}", f"s_lshr_b32 s{sT0}, s{base}, 4", f"v_add_u32 v{t+1}, s{sT0}, v0", f"v_mul_u32_u24 v{t+1}, 3641, v{t+1}"]
            for i in range(n):
                L += [f"v_add_u32 v{t+2}, {64*3641*i}, v{t+1}" if i else f"v_mov_b32 v{t+2}, v{t+1}", f"v_lshrrev_b32 v{t+2}, 15, v{t+2}", f"v_and_b32 v{t+2}, 32, v{t+2}"]
                if i and i % 4 == 0: L.append(f"v_add_u32 v{t}, 4096, v{t}")
                L.append(f"v_xor_b32 v{r+i}, v{t}, v{t+2}")
            return L

        def xrows(r, n, t):
            L = []
            for j in range(1, n): L.append(f"v_add_u32 v{r+j}, {16*j}, v{r}")
            for j in range(n): L.append(f"v_mul_u32_u24 v{t+j}, 6554, v{r+j}")
            for j in range(n): L.append(f"v_lshrrev_b32 v{t+j}, 16, v{t+j}")
            for j in range(n): L.append(f"v_and_b32 v{t+j}, 2, v{t+j}")
            for j in range(n): L.append(f"v_xor_b32 v{r+j}, v{r+j}, v{t+j}")
            for j in range(n): L.append(f"v_mul_u32_u24 v{r+j}, 288, v{r+j}")
            for j in range(n): L.append(f"v_lshl_add_u32 v{r+j}, v31, 4, v{r+j}")
            return L

        def emit(x):
            if callable(x): x()
            elif isinstance(x, tuple):
                assert x[2] <= cur[0] <= x[1], (x, cur)
                a(x[0]); D.append(("w", x[1]))
            else: a(x)

        def mix(ents, ops):
            k = max(1, len(ents) - 1); j = 0
            for i, e in enumerate(ents or [lambda: None]):
                e()
                if i < k:
                    j2 = (len(ops) * (i + 1) + k - 1) // k
                    for x in ops[j:j2]: emit(x)
                    j = j2
            for x in ops[j:]: emit(x)

        def st2(n, k):
            if p2:
                r = 50 + 6 * (n & 1) + 2 * k
                a(f"s_memtime s[{r}:{r+1}]")

        def sv2(n):
            if p2 and n >= 0:
                for k in range(3): a(f"v_writelane_b32 v{246+2*k+n//64}, s{50+6*(n&1)+2*k}, {n%64}")

        def take(jobs, flat, fp, n):
            need_ = 0; cum = 0
            for j, jb in enumerate(jobs):
                rem = sum(1 for x, jj in flat[fp:] if jj == j)
                if not rem: continue
                cum += rem
                need_ = max(need_, -(-cum // max(1, jb[2] - n + 1)))
            ops = []
            while len(ops) < need_ and fp < len(flat) and jobs[flat[fp][1]][1] <= n and not (isinstance(flat[fp][0], tuple) and flat[fp][0][2] > n + 1):
                x = flat[fp][0]
                if isinstance(x, str) and any(Ins(y[0]).r & Ins(x).w for y in ops if isinstance(y, tuple)): break
                ops.append(x); fp += 1
            for j, jb in enumerate(jobs):
                if jb[2] <= n: assert not any(jj == j for x, jj in flat[fp:]), (n, j)
            return ops, fp

        def wo_dma(j):
            setm0(sT3, WO + 4096 * j)
            setoff(("wo", j), f"s_add_u32 s{sOFF}, s{sT3}, {4096*j}")
            if j == 10: l = skip_unless(sLW, 0)
            a(f"buffer_load_dwordx4 v29, {srd(sWO)}, s{sOFF} offen lds")
            Q.append(("wo", j == 10))
            if j == 10: a(l)

        def misc(regs):
            L = []
            for r, p, n in regs:
                L += [f"s_mov_b32 s{r}, s{p}", f"s_mov_b32 s{r+1}, s{p+1}", f"s_mov_b32 s{r+2}, {n}", f"s_mov_b32 s{r+3}, 0x20000"]
            return L + [f"s_mul_i32 s{sT0}, s{sGI}, 46080", (lambda: (a(f"s_add_u32 s{sO}, s10, s{sT0}"), a(f"s_addc_u32 s{sO+1}, s11, 0"))),
                        f"s_mov_b32 s{sO+2}, 46080", f"s_mov_b32 s{sO+3}, 0x20000"]

        def run(name, jobs, ent, head, tail):
            flat = [(x, j) for j, jb in enumerate(jobs) for x in jb[0]]
            fp = 0; pend = []
            for n in range(92):
                st2(n, 0)
                cur[0] = n
                ents = ent(n)
                ops, fp = take(jobs, flat, fp, n)
                pend.sort(key=lambda x: (x[2] > n, x[1]))
                wr = set().union(*[Ins(x).w for x in ops if isinstance(x, str)])
                av = [x for x in pend if x[2] <= n]
                now = [x for x in pend if Ins(x[0]).r & wr or x[1] <= n]
                k = max([1] + [i + 1 - (x[1] - n) for i, x in enumerate(av)])
                for x in av:
                    if len(now) < k and x not in now: now.append(x)
                for x in now: pend.remove(x)
                for i, y in enumerate(ops):
                    if isinstance(y, tuple): assert not any(Ins(y[0]).r & Ins(x).w for x in ops[i:] if isinstance(x, str))
                pend.extend(x for x in ops if isinstance(x, tuple))
                ops = [x for x in ops if not isinstance(x, tuple)]
                if cfg.get("verbose"): print(name, "interval", n, "ents", len(ents), "reads", len(head[n]), "ops", len(ops), "writes", [x[1] for x in now])
                for x in now[:1]: emit(x)
                for f in head[n]: f()
                g2 = cfg.get("gap2", 4)
                mix(ents, ops[:g2] + now[1:] + ops[g2:] if not any(Ins(y[0]).r & Ins(x).w for y in now[1:] for x in ops[:g2] if isinstance(x, str)) else now[1:] + ops)
                sv2(n - 1)
                st2(n, 1)
                wait(("w", n + 1))
                for f in tail[n]: f()
                if n == 91: wait("wo"); assert not Q and not pend
                assert all(x[1] > n for x in pend), (n, pend)
                dwait(lambda t: t[0] == "w" and t[1] <= n)
                st2(n, 2)
                a("s_barrier")
            if p2:
                a("s_waitcnt lgkmcnt(0)"); sv2(91)
                a(f"s_add_u32 s{sG}, s14, 0x200000"); a(f"s_addc_u32 s{sG+1}, s15, 0"); a(f"s_mov_b32 s{sG+2}, 0x200000"); a(f"s_mov_b32 s{sG+3}, 0x20000")
                a(f"s_lshl_b32 s{sT0}, s2, 2"); a(f"s_add_u32 s{sT0}, s{sT0}, s{sLW}"); a(f"s_lshl_b32 s{sT0}, s{sT0}, 11")
                a("v_lshlrev_b32 v166, 2, v0")
                for k in range(6): a(f"buffer_store_dword v{246+k}, v166, {srd(sG)}, s{sT0} offen offset:{256*k}")

        def pre_end():
            self.stamp(12)
            if cfg.get("lprio0", 3) != cfg.get("lprio", 0): a(f"s_setprio {cfg.get('lprio', 0)}")
            a("s_barrier")
            self.stamp(1)
        mk = lambda: {n: [] for n in range(92)}
        E, E2 = self.lepi_addr()

        pro2 = cfg.get("pro2")
        xl = mk(); head = mk(); tail = mk()
        if pro2:
            xfree[0] = -2
            a("L_loader:")
            assert sD == 45
            Q0 = [(("w", 0), False)] * 5
            Q[:] = Q0
            a(f"s_mul_i32 s{sM4}, s{sD}, 9216")
            L = waddr(DA, sM4, 9, 60)
            ops = ["v_lshrrev_b32 v29, 2, v0", "v_and_b32 v31, 3, v0",
                   f"s_mul_i32 s{sT2}, s{sD}, 96", f"v_add_u32 v{DX}, s{sT2}, v29"] + xrows(DX, 6, 64) + [f"v_add_u32 v{DX+j}, s{sXB}, v{DX+j}" for j in range(6)]
            ops += [f"s_mul_i32 s{sXM}, s{sD}, 6144", f"s_add_u32 s{sXM}, s{sXM}, {STG}"]
            w1l = cfg.get("w1l", 1)
            if w1l:
                for x in ops: a(x)
                ops = []
            k0 = len(L) if w1l == 2 else 8
            for x in L[:k0]: a(x)
            L = L[k0:]
            self.stamp(7)
            for i in range(9):
                piece(1, i)
                k = 5 if i % 4 == 3 else 4
                for x in L[:k]: a(x)
                L = L[k:]
            assert not L
            self.stamp(8)
            pp = 9 * nearly
            mix([lambda p=p: piece(*p) for p in pieces[18:pp]], ops)
            x1i = cfg.get("x1i", -1)
            for j in range(6):
                if x1i < 0: xdma(1, j)
                else: xl[x1i + j // cfg.get("x1r", 3)].append(lambda j=j: xdma(1, j))
            for p in pieces[pp:9 * npro]: piece(*p)
            pp = [max(pp, 9 * npro)]
            self.stamp(11)
            wait(("w", 0))
            pre_end()
        else:
            a("L_loader:")
            if cfg.get("lprio0", 3): a(f"s_setprio {cfg.get('lprio0', 3)}")
            a(f"s_sub_u32 s{sLW}, s{sWV}, 4")
            a("v_lshrrev_b32 v29, 2, v0"); a("v_and_b32 v31, 3, v0")
            a(f"s_mul_i32 s{sT2}, s{sLW}, 48"); a(f"v_add_u32 v{XG}, s{sT2}, v29")
            for x in xrows(XG, 3, 152): a(x)
            a(f"s_mul_i32 s{sXM}, s{sLW}, 3072"); a(f"s_add_u32 s{sXM}, s{sXM}, {STG}")
            a(f"s_and_b32 s{sD}, s{sLW}, 1")
            a("s_waitcnt lgkmcnt(0)")
            self.stamp(6)
            self.x_srd()
            a(f"s_mul_i32 s{sXB}, s{sT0}, 288")
            for j in range(3): a(f"v_add_u32 v{XG+j}, s{sXB}, v{XG+j}")
            for j in range(3):
                setm0(sXM, 1024 * j)
                a(f"buffer_load_dwordx4 v{XG+j}, {srd(sX)}, 0 offen lds"); Q.append((("x", 0), False))
            self.stamp(7)
            a(f"s_cmp_ge_u32 s{sLW}, 2"); a("s_cbranch_scc1 L_xf")
            Q0 = list(Q)

            self.mk_srd(sW, 6, 0, 15 * MAT)
            a(f"s_mul_i32 s{sM4}, s{sD}, 9216")
            L = waddr(DA, sM4, 9, 60)
            for x in L[:8]: a(x)
            L = L[8:]
            for i in range(9):
                piece(0, i)
                if i < 8:
                    k = 5 if i % 4 == 3 else 4
                    for x in L[:k]: a(x)
                    L = L[k:]
            assert not L
            self.stamp(8)
            ops = [f"s_mul_i32 s{sT2}, s{sD}, 96", f"v_add_u32 v{DX}, s{sT2}, v29"] + xrows(DX, 6, 60) + [f"v_add_u32 v{DX+j}, s{sXB}, v{DX+j}" for j in range(6)]
            ops += [f"s_mul_i32 s{sXM}, s{sD}, 6144", f"s_add_u32 s{sXM}, s{sXM}, {STG}"]
            pp = 9 * nearly
            mix([lambda p=p: piece(*p) for p in pieces[9:pp]], ops)
            st8["m0"] = None
            for j in range(6): xdma(1, j)
            self.stamp(9)
            wait(("x", 0))
            self.stamp(10)
            a("s_barrier")
            for p in pieces[pp:9 * npro]: piece(*p)
            pp = [max(pp, 9 * npro)]
            self.stamp(11)
            wait(("w", 0))
            pre_end()
        jobs = [(misc(((sG, 14, 10 * MAT), (sWO, 8, 41472))) + [f"s_add_u32 s{sP}, s{sD}, 1", f"s_mul_i32 s{sP}, s{sP}, 73728", f"s_lshl_b32 s{sM5}, s{sD}, 12", "v_mov_b32 v21, 0"]
                 + waddr(DK, sM5, 5, 60), 2, 25), (E, 85, 86), (E2, 86, 91)]
        for c in range(1, 5):
            tail[xrd[c] - 1].append(lambda c=c: wait(("x", c)))
            if c > 1:
                n1 = xrd[c] - cfg.get("xe", 3); n0 = max(xfree[c - 2] + 1, n1 - 9 if c > 2 else 0, xrd[c - 1] - cfg.get("xe", 3) + 1)
                if c == 2 and "x2i" in cfg: n0 = cfg["x2i"]; n1 = cfg.get("x2e", xrd[c] - 2)
                for j in range(6): xl[n0 + j * (n1 - n0 + 1) // 6].append(lambda c=c, j=j: xdma(c, j))
        npoll = cfg.get("npoll", 33)

        def poll():
            a("global_load_dword v22, v21, s[12:13] sc1"); Q.append(("poll", False))

        def check():
            wait("poll")
            a(f"v_readfirstlane_b32 s{sT0}, v22"); a(f"s_cmp_lt_u32 s{sT0}, {NPROD}"); a("s_cbranch_scc1 L_spin"); a("L_gok:")
        xl[npoll].append(poll); tail[npoll + 4].append(check)
        for j in range(11): xl[87 + (j + 1) // 4].append(lambda j=j: wo_dma(j))

        def ent(n):
            ents = []
            while pp[0] < len(pieces) and pieces[pp[0]][0] <= n + dist and len(ents) < cfg.get("rate", 11):
                ents.append(lambda p=pieces[pp[0]]: piece(*p)); pp[0] += 1
            assert pp[0] == len(pieces) or pieces[pp[0]][0] > n + 1
            return ents + xl[n]
        run("dma", jobs, ent, head, tail)
        a("s_branch L_lepi")

        a(".p2align 6")
        a("L_xf:")
        Q[:] = Q0; D[:] = []; st8.update(m0=None, soff=None); cur[0] = -1
        xiss = set()

        def xread(c, v, i):
            if v == 2: a(f"ds_read_b64 {vr(X0(c,i),2)}, v{XAr(i,1)} offset:{(c&1)*STGB+640*i}")
            else: a(f"ds_read_b128 {vr(X(c,v,i))}, v{XAr(i,0)} offset:{(c&1)*STGB+640*i+256*v}")
            assert cur[0] <= xfree[c]
            D.append(("xr", c, v, i)); xiss.add((c, v, i))

        def xw(c, v, *ii):
            def f():
                assert all((c, v, i) in xiss for i in ii), (c, v, ii)
                dwait(lambda t: t[0] == "xr" and t[1:3] == (c, v) and t[3] in ii)
            return f

        def frag_job(srcs, outs, nd=4, ob=0):
            U = []; A = []; C = []
            for d in range(nd):
                tu = TU + (8 * d if len(srcs) == 4 else 6 * (d % 3)); ta = TA + 8 * (d % 2)
                u = []
                for k, r in enumerate(srcs):
                    u += [f"v_lshlrev_b32 v{tu+2*k}, 16, v{r+d}", f"v_and_b32 v{tu+2*k+1}, s{sMASK}, v{r+d}"]
                ad = []; cv = []
                for k, (op, i, j, _) in enumerate(outs):
                    ad += [f"{op} v{ta+2*k+h}, v{tu+2*i+h}, v{tu+2*j+h}" for h in (0, 1)]
                    cv.append(f"v_cvt_pk_bf16_f32 v{O+ob+nd*k+d}, v{ta+2*k}, v{ta+2*k+1}")
                U.append(u); A.append(ad); C.append(cv)
            L = list(U[0])
            for d in range(nd):
                if d + 1 < nd: L += U[d + 1]
                L += A[d]
                if d: L += C[d - 1]
            L += C[nd - 1]
            return L, [wt(O + ob + nd * k) for k, (_, _, _, wt) in enumerate(outs) if wt]
        SUB, ADD = "v_sub_f32", "v_add_f32"

        def jobs_of(kap):
            c = kap % 5; ub = (UB1 if kap & 1 else UB0) - UB1
            f = first(kap); l = f - 1
            e0 = first(kap - 1) if kap else -1
            half = c == 4
            wr, w0 = (UWRH, UW0H) if half else (UWR, UW0)
            W4 = lambda v, idx, dl: (lambda o: (f"ds_write_b128 v{wr}, {vr(o)} offset:{ub+idx*1024+2048*(1-v)}", dl, e0))
            W2 = lambda i0, i1: (f"ds_write2st64_b64 v{w0}, {vr(O+16,2)}, {vr(O+18,2)} offset0:{(ub+i0*1024)//512} offset1:{(ub+i1*1024)//512}", l, e0)
            J = lambda w, v, ii, outs: (lambda L, W: (w + L, W))(*frag_job([X(c, v, i) for i in ii], outs, 4, 8 * v))
            if kap == 0 and pro2:
                vw = lambda t: (lambda: wait(t))
                Lg, _ = frag_job([X0(c, 1), X0(c, 3)], [(SUB, 0, 1, None)], 2, 16)
                return ([J([vw("o%d" % v)], v, (1, 3), [(SUB, 0, 1, W4(v, 10, 2 - 2 * v))]) for v in (1, 0)]
                        + [([vw("g")] + Lg, [(f"ds_write_b64 v{w0}, {vr(O+16,2)} offset:{ub+10*1024}", 4, e0)])]
                        + [J([vw("e%d" % v)], v, (0, 2), [(SUB, 0, 1, W4(v, 15, 7 - 2 * v))]) for v in (1, 0)])
            if kap == 0:
                return [J([xw(c, v, 2, 4)], v, (2, 4), [(SUB, 0, 1, W4(v, 5, l))]) for v in (0, 1)] + [J([xw(c, v, 0)], v, (0, 2), [(SUB, 0, 1, W4(v, 15, f + 5))]) for v in (0, 1)]
            if kap < 5:
                d10, d15 = (l, l) if half else (f, f + 5)
                Ja = [J([xw(c, v, 0, 2, 4)], v, (0, 2, 4), [(SUB, 1, 2, W4(v, 5, l)), (SUB, 0, 1, W4(v, 15, d15))]) for v in (0, 1)]
                Jb = [J([xw(c, v, 1, 3)], v, (1, 3), [(SUB, 0, 1, W4(v, 10, d10))]) for v in (0, 1)]
                if kap == 1 and "tg1" in cfg:
                    Ja = [J([xw(c, v, 0, 2, 4)], v, (0, 2, 4), [(SUB, 1, 2, W4(v, 5, l)), (SUB, 0, 1, W4(v, 15, f + 7 - 2 * v))]) for v in (0, 1)]
                    Jb = [J([xw(c, v, 1, 3)], v, (1, 3), [(SUB, 0, 1, W4(v, 10, f + 2 - 2 * v))]) for v in (1, 0)]
                Lg, _ = frag_job([X0(c, 2), X0(c, 4), X0(c, 1), X0(c, 3)], [(SUB, 0, 1, None), (SUB, 2, 3, None)], 2, 16)
                return Ja + [([xw(c, 2, 1, 2, 3, 4)] + Lg, [W2(5, 10)])] + Jb
            d10, d14, d19 = (l, f + 2, f + 2) if half else (f, f + 4, f + 5)
            Ja = [J([], v, (2, 3), [(ADD, 0, 1, W4(v, 5, l)), (SUB, 1, 0, W4(v, 14, d14))]) for v in (0, 1)]
            Jb = [J([], v, (1, 2), [(ADD, 0, 1, W4(v, 10, d10)), (SUB, 1, 0, W4(v, 19, d19))]) for v in (0, 1)]
            Lg, _ = frag_job([X0(c, 2), X0(c, 3)], [(ADD, 0, 1, None), (SUB, 1, 0, None)], 2, 16)
            return Ja + [(Lg, [W2(5, 14)])] + Jb

        if pro2:
            a(f"s_mul_i32 s{sT1}, s{sD}, 576"); a(f"s_lshl3_add_u32 s{sT0}, s{sD}, s{sXB}"); a(f"s_add_u32 s{sT1}, s{sT1}, s{sXB}")
            a(f"v_add_u32 v3, s{sT1}, v2"); a(f"v_add_u32 v2, s{sT0}, v2")
            R = lambda v, i: (X(0, v, i), 4, 3, 2880 * i + 576 + 1152 * v)
            G = lambda i: (X0(0, i), 2, 2, 2880 * i)
            LD = [("o1",) + R(1, 1), ("o1",) + R(1, 3), ("o0",) + R(0, 1), ("o0",) + R(0, 3), ("g",) + G(1), ("g",) + G(3),
                  ("e1",) + R(1, 2), ("e1",) + R(1, 0), ("e0",) + R(0, 2), ("e0",) + R(0, 0), ("g2",) + G(2)]
            nl0 = cfg.get("nl0", 6)
            def ld0(j):
                tg, r, n, b, o = LD[j]
                a(f"buffer_load_dwordx{n} {vr(r, n)}, v{14+j}, {srd(sX)}, 0 offen{cfg.get('xmod', '') if j < 6 else ''}"); Q.append((tg, False))
            for j, (tg, r, n, b, o) in enumerate(LD):
                a(f"v_add_u32 v{14+j}, {o}, v{b}")
                if j < nl0: ld0(j)
            self.stamp(7)
            a("v_lshrrev_b32 v29, 2, v0"); a("v_and_b32 v31, 3, v0")
        for x in [f"s_mov_b32 s{sMASK}, 0xffff0000",
                  "v_lshlrev_b32 v167, 1, v31", "v_xor_b32 v166, v29, v167",
                  "v_lshl_add_u32 v166, v31, 4, v166", "v_lshlrev_b32 v166, 4, v166",
                  f"s_lshl_b32 s{sT0}, s{sLW}, 10", f"s_sub_u32 s{sT0}, {UB1-1024}, s{sT0}", f"v_add_u32 v{UWR}, s{sT0}, v166",
                  f"s_lshl_b32 s{sT0}, s{sD}, 3", f"s_add_u32 s{sT1}, s{sT0}, {UB1}", f"v_add_u32 v{UW0}, s{sT1}, v166",
                  "v_and_b32 v167, 2, v31", "v_lshlrev_b32 v167, 9, v167",
                  f"v_sub_u32 v{UW0H}, v{UW0}, v167", f"v_sub_u32 v{UWRH}, v{UWR}, v167"]: a(x)
        for x in self.xaddr(sD, 166, [(i, 0, XAr(i, 0)) for i in range(4)]): a(x)
        a(f"s_lshl_b32 s{sT2}, s{sD}, 1")
        for x in self.xaddr(sT2, 166, [(i, 1, XAr(i, 1)) for i in (1, 2, 3, 4)]): a(x)
        for x in misc(((sWO, 8, 41472),)): emit(x)
        if pro2:
            self.stamp(9)
            wait(("w", 0))
            pre_end()
            jobs = []; xl = mk(); head = mk(); tail = mk()
            J0 = jobs_of(0)
            head[0].append(lambda: [emit(x) for x in J0[0][0] + J0[0][1]])
            e0 = cfg.get("ld0at", 1)
            for j in range(nl0, 11): xl[e0 + (j - nl0) // cfg.get("ld0r", 2)].append(lambda j=j: ld0(j))
            for (L, W), (t0, t1) in zip(J0[1:], ((1, 1), (1, 2), (e0 + 1, e0 + 2), (e0 + 2, e0 + 3))): jobs.append((L + W, t0, t1))
            tail[8].append(lambda: wait("g2"))
        else:
            self.stamp(9)
            wait(("x", 0))
            self.stamp(10)
            a("s_barrier")
            J0 = jobs_of(0)
            for v in (0, 1):
                for i in (2, 4): xread(0, v, i)
            for L, W in J0[:2]:
                for x in L + W: emit(x)
            self.stamp(11)
            dwait(lambda t: t[0] == "w")
            pre_end()
            jobs = []; xl = mk(); head = mk(); tail = mk()
            for j, (v, i) in enumerate([(0, 0), (1, 0), (0, 1), (0, 3), (1, 1), (1, 3), (2, 2), (2, 3)]): head[j // 4].append(lambda v=v, i=i: xread(0, v, i))
            for L, W in J0[2:]: jobs.append((L + W, 0, cfg.get("tg0", 2)))
        XRD = [(0, 2), (0, 4), (0, 0), (1, 2), (1, 4), (1, 0), (2, 2), (2, 4), (2, 1), (2, 3), (0, 1), (0, 3), (1, 1), (1, 3)]
        for c in range(1 if pro2 else 0, 5): tail[xfree[c]].append(lambda c=c: dwait(lambda t: t[0] == "xr" and t[1] == c))
        for kap in range(1, 10):
            f = first(kap - 1); l = first(kap) - 1
            if kap < 5:
                r = xrd[kap]
                if kap == 4: jobs.append((["v_and_b32 v30, 2, v0", "v_lshlrev_b32 v30, 4, v30"] + [f"v_sub_u32 v{r}, v{r}, v30" for r in range(6, 14)], 23, 29))
                for j, (v, i) in enumerate(XRD[:10] + XRD[12:] + XRD[10:12] if kap == 1 and "tg1" in cfg else XRD): head[r + j // nrdc(kap)].append(lambda c=kap, v=v, i=i: xread(c, v, i))
                st_ = r + cfg.get("xst", 0)
            else: st_ = f - 1 if kap >= 6 else 37
            tg = {1: tuple(int(ch, 16) for ch in str(cfg.get("tg1", "56789"))), 4: (31, 33, 34, 36, 37), 5: (39, 41, 42, 44, 45), 9: (77, 79, 80, 82, 83)}.get(kap, (l - 4, l - 3, l - 2, l - 1, l - 1 if kap < 5 else l - 1))
            for (L, W), t in zip(jobs_of(kap), tg): jobs.append((L + W, st_, t))
        jobs += [(E, 85, 86), (E2, 86, 91)]
        for j in range(11): xl[87 + (j + 1) // 4].append(lambda j=j: wo_dma(j))
        run("xf", jobs, lambda n: xl[n], head, tail)
        a("L_lepi:")
        self.wat = set()
        self.lepi()

    def producer(self):
        a = self.a; cfg = self.cfg
        a("L_prod:")
        if cfg.get("pro2"): a(f"v_readfirstlane_b32 s{sWV}, v1"); a("v_and_b32 v0, 63, v0")
        if cfg.get("hexit"): a("s_endpgm")
        a(f"s_lshr_b32 s{sT3}, s2, 3")
        a(f"s_lshl_b32 s{sT0}, s{sWV}, 6"); a(f"v_add_u32 v40, s{sT0}, v0")
        a("v_and_b32 v41, 255, v40")
        if not cfg.get("cpre") and not cfg.get("pro2"):
            a(f"s_cmp_lt_u32 s{sWV}, 4"); a("s_cbranch_scc1 L_pnocode")
            NL = f"((L_code_end-{KN})/128/7+1)"
            a(f"s_mul_i32 s{sT0}, s{sT3}, {NL}"); a(f"v_min_u32 v42, {NL}-1, v41"); a(f"v_add_u32 v42, s{sT0}, v42")
            a("v_lshlrev_b32 v42, 7, v42"); a(f"v_min_u32 v42, L_code_end-{KN}-4, v42")
            a(f"global_load_dword v50, v42, s[{sPC}:{sPC+1}]")
            a("L_pnocode:")
        a(f"s_mul_i32 s{sT1}, s{sT3}, 206"); a(f"v_min_u32 v41, 205, v41"); a(f"v_add_u32 v41, s{sT1}, v41")
        a("v_mul_u32_u24 v42, 29128, v41"); a("v_lshrrev_b32 v42, 22, v42")
        a("v_mul_u32_u24 v43, 64512, v42"); a("v_lshl_add_u32 v41, v41, 7, v43")
        a("v_cmp_le_u32 vcc, 5, v42")
        a("v_mov_b32 v43, 0"); a(f"v_mov_b32 v44, {5*MAT}")
        a("v_cndmask_b32 v43, v43, v44, vcc"); a("v_add_u32 v41, v41, v43")
        a("s_mul_i32 s3, s2, 464"); a("v_add_u32 v1, s3, v40")
        a("s_add_u32 s3, s3, 464"); a("s_min_u32 s3, s3, 25920")
        a("v_cmp_gt_u32 vcc, s3, v1")
        a("v_lshlrev_b32 v1, 4, v1"); a(f"v_mov_b32 v2, {OOB:#x}")
        a("v_cndmask_b32 v1, v2, v1, vcc")
        a(f"s_mov_b32 s{sMASK}, 0xffff0000")
        a(f"s_mov_b32 s{sT0}, {5*MAT}"); a(f"s_mov_b32 s{sT1}, {10*MAT}")
        a("s_waitcnt lgkmcnt(0)")
        self.mk_srd(sW, 6, 0, 15 * MAT)
        hm = cfg.get("hmod", "")
        def seq(q):
            n = 0
            for ch in q:
                if ch == ".": a("s_waitcnt vmcnt(0)"); continue
                if ch in "Acd":
                    self.nlab += 1; a(f"s_cmp_ge_u32 s{sWV}, 4"); a(f"s_cbranch_scc1 L_sk{self.nlab}")
                    if ch != "A": a(f"s_mov_b32 s3, {SLOT * (1 if ch == 'c' else 2)}")
                    a(f"buffer_load_dword v50, v41, {srd(sW)}, {0 if ch == 'A' else 's3'} offen{hm}"); a(f"L_sk{self.nlab}:")
                    continue
                r, d, so = dict(B=(45, sX, 0), D=(46, sX, 0), C=(41, sW, f"s{sT2}"), F=(41, sW, f"s{sT3}"), O=(47, sWO, 0))[ch]
                a(f"buffer_load_dword v50, v{r}, {srd(d)}, {so} offen{hm}"); n += 1
            return n
        self.nlab = 5000
        seq(cfg.get("hs0", "A"))
        self.mk_srd(sG, 14, 0, 10 * MAT); self.mk_srd(sX, 4, 0, 2 * 4608000); self.mk_srd(sWO, 8, 0, 41472)
        a(f"v_mul_u32_u24 v42, 7, v40"); a(f"v_add_u32 v42, s{sT3}, v42")
        a("v_mul_u32_u24 v43, 10923, v42"); a("v_lshrrev_b32 v43, 20, v43")
        a("v_mul_u32_u24 v44, 96, v43"); a("v_sub_u32 v44, v42, v44")
        a("v_cmp_gt_u32 vcc, 2400, v42")
        a(f"v_mul_u32_u24 v43, {46080 if cfg.get('xmap', 1) else 8*46080}, v43"); a("v_lshrrev_b32 v45, 1, v44"); a("v_mul_u32_u24 v45, 1152, v45"); a("v_add_u32 v43, v43, v45")
        a(f"s_and_b32 s{sT2}, s2, 7"); a(f"s_mul_i32 s{sT2}, s{sT2}, {25*46080 if cfg.get('xmap', 1) else 46080}"); a(f"s_sub_u32 s{sT2}, s{sT2}, {32*288}")
        a(f"v_add_u32 v43, s{sT2}, v43"); a("v_and_b32 v44, 1, v44")
        a("v_lshl_add_u32 v45, v44, 8, v43"); a("v_add_u32 v45, 384, v45"); a("v_cndmask_b32 v45, v2, v45, vcc")
        a("v_mul_u32_u24 v44, 896, v44"); a("v_add_u32 v46, v43, v44"); a("v_add_u32 v46, 128, v46"); a("v_cndmask_b32 v46, v2, v46, vcc")
        a(f"s_mul_i32 s{sT2}, s{sT3}, 47"); a("v_min_u32 v47, 46, v40"); a(f"v_add_u32 v47, s{sT2}, v47"); a("v_lshlrev_b32 v47, 7, v47")
        a(f"s_mul_i32 s{sT2}, s{sT3}, 926"); a(f"v_add_u32 v48, s{sT2}, v40"); a("v_min_u32 v49, 413, v40"); a(f"v_add_u32 v49, s{sT2}, v49")
        a("v_lshlrev_b32 v48, 7, v48"); a("v_lshlrev_b32 v49, 7, v49"); a("v_add_u32 v49, 0x10000, v49")
        a(f"s_lshr_b32 s{sT2}, s{sWV}, 2"); a(f"s_mul_i32 s{sT2}, s{sT2}, {SLOT}"); a(f"s_add_u32 s{sT2}, s{sT2}, {SLOT}")
        a(f"s_add_u32 s{sT3}, s{sT2}, {2*SLOT}")
        seq(cfg.get("hs1", ".CO."))
        if not cfg.get("noprod"):
            a(f"buffer_load_dwordx4 v[4:7], v1, {srd(sW)}, 0 offen")
            a(f"buffer_load_dwordx4 v[8:11], v1, {srd(sW)}, s{sT0} offen")
            a(f"buffer_load_dwordx4 v[12:15], v1, {srd(sW)}, s{sT1} offen")
        nt = seq(cfg.get("hs2", "D"))
        a(f"s_waitcnt vmcnt({nt})")
        for d in range(4):
            for j, s in enumerate((4, 8, 12)):
                a(f"v_lshlrev_b32 v{24+2*j}, 16, v{s+d}"); a(f"v_and_b32 v{25+2*j}, s{sMASK}, v{s+d}")
            a("v_add_f32 v24, v24, v28"); a("v_add_f32 v25, v25, v29")
            a("v_add_f32 v28, v24, v26"); a("v_add_f32 v29, v25, v27")
            a("v_sub_f32 v24, v24, v26"); a("v_sub_f32 v25, v25, v27")
            a(f"v_cvt_pk_bf16_f32 v{16+d}, v28, v29"); a(f"v_cvt_pk_bf16_f32 v{20+d}, v24, v25")
        if not cfg.get("noprod"):
            a(f"buffer_store_dwordx4 v[16:19], v1, {srd(sG)}, 0 offen sc1")
            a(f"buffer_store_dwordx4 v[20:23], v1, {srd(sG)}, s{sT0} offen sc1")
        a("s_waitcnt vmcnt(0)")
        a("s_barrier")
        a("v_mov_b32 v1, 0"); a("v_mov_b32 v2, 1")
        a(f"s_cmp_lg_u32 s{sWV}, 0"); a("s_cbranch_scc1 L_pnoat")
        a("s_mov_b64 exec, 1")
        if not cfg.get("hnoatom"): a("global_atomic_add v3, v1, v2, s[12:13] sc0 sc1")
        a("s_mov_b64 exec, -1")
        a("s_waitcnt vmcnt(0)")
        a("L_pnoat:")
        seq(cfg.get("hs3", "F"))
        a(f"s_cmp_lg_u32 s{sWV}, 0"); a("s_cbranch_scc1 L_pwait")
        a("s_waitcnt vmcnt(0)")
        a("L_ppoll:")
        if cfg.get("hnopoll"): a("s_branch L_pwait")
        if cfg.get("spinmax"): a(f"s_mov_b32 s{sT1}, 0")
        a("L_ppoll2:")
        if cfg.get("spinmax"):
            a(f"s_add_u32 s{sT1}, s{sT1}, 1"); a(f"s_cmp_ge_u32 s{sT1}, {cfg['spinmax']}"); a("s_cbranch_scc1 L_pwait")
        a("global_load_dword v3, v1, s[12:13] sc1")
        a("s_waitcnt vmcnt(0)")
        a(f"v_readfirstlane_b32 s{sT0}, v3"); a(f"s_cmp_lt_u32 s{sT0}, {NPROD}"); a("s_cbranch_scc1 L_ppoll2")
        a("L_pwait:")
        a("s_barrier")
        if cfg.get("hg", 1):
            a(f"buffer_load_dword v50, v48, {srd(sG)}, 0 offen sc1")
            a(f"buffer_load_dword v50, v49, {srd(sG)}, 0 offen sc1")
        a("s_waitcnt vmcnt(0)")
        a("L_exit:")
        a("s_endpgm")

    def build(self):
        a = self.a
        a(f"s_getpc_b64 s[{sPC}:{sPC+1}]")
        if self.prof:
            a(f"s_memtime s[{sTS}:{sTS+1}]"); a(f"s_memrealtime s[{sTS+14}:{sTS+15}]")
        a("s_load_dwordx8 s[4:11], s[0:1], 0")
        a("s_load_dwordx4 s[12:15], s[0:1], 32")
        if self.cfg.get("pro2"): self.entry2()
        else:
            cp = self.cfg.get("cpre", 0)
            if cp:
                a(f"s_cmp_ge_u32 s2, {NHELP if cp < 3 else 16}"); a("s_cbranch_scc1 L_nocp")
                if cp == 2:
                    a("s_lshr_b32 s3, s2, 3"); a("v_lshrrev_b32 v1, 2, v0"); a("s_lshl_b32 s3, s3, 7"); a("v_add_lshl_u32 v1, v1, s3, 7")
                else:
                    a("s_bfe_u32 s3, s2, 0x10003"); a("s_lshl_b32 s3, s3, 9"); a("v_add_lshl_u32 v1, v0, s3, 7")
                a(f"v_min_u32 v1, L_code_end-{KN}-8, v1")
                a(f"global_load_dword v50, v1, s[{sPC}:{sPC+1}]")
                a("L_nocp:")
            else:
                a(f"s_sub_u32 s{sPC}, s{sPC}, 4"); a(f"s_subb_u32 s{sPC+1}, s{sPC+1}, 0")
            a("v_lshrrev_b32 v1, 6, v0")
            a(f"s_sub_u32 s{sGI}, s2, {NHELP}")
            if self.cfg.get("xmap", 1):
                a(f"s_and_b32 s3, s2, 7"); a(f"s_mul_i32 s3, s3, 25"); a(f"s_lshr_b32 s{sGI}, s{sGI}, 3"); a(f"s_add_u32 s{sGI}, s{sGI}, s3")
            a(f"v_readfirstlane_b32 s{sWV}, v1")
            a("v_and_b32 v0, 63, v0")
            a(f"s_cmp_lt_u32 s2, {NHELP}"); a("s_cbranch_scc1 L_prod")
            a(f"s_cmp_ge_u32 s2, {NHELP+NMAIN}"); a("s_cbranch_scc1 L_exit")
            a(f"s_cmp_ge_u32 s{sWV}, 4"); a("s_cbranch_scc1 L_loader")
        self.compute_prologue()
        self.producer()
        a(".p2align 6")
        self.loader2()
        for w in range(4): self.compute_main(w)
        self.compute_epilogue()
        a("L_code_end:")
        nn = a.fix(verbose=self.cfg.get("verbose", False))
        hdr = open("standalone__autoregressive_conv_wavenet__speech.s.ref").read().split("\n")
        i0 = next(i for i, x in enumerate(hdr) if x.startswith("; @launch"))
        i1 = next(i for i, x in enumerate(hdr) if x.startswith(KN + ":"))
        i2 = next(i for i, x in enumerate(hdr) if x.startswith(".section .rodata"))
        hdr[i0] = f"; @launch grid=({NHELP+NMAIN},1,1) block=(512,1,1) lds={LDS}"
        txt = "\n".join(hdr[:i1 + 1]) + "\n" + a.text() + "\n".join(hdr[i2:]) + "\n"
        return txt, nn


if __name__ == "__main__":
    assert all((i * 3641) >> 20 == i // 288 for i in range(1152))
    assert all((i * 10923) >> 20 == i // 96 for i in range(2400))
    assert all((i * 3641) >> 16 == i // 18 for i in range(640))
    assert all((i * 29128) >> 22 == i // 144 for i in range(1500))
    assert all((i * 6554) >> 16 == i // 10 for i in range(192))
    out = sys.argv[1]
    cfg = {}
    for x in sys.argv[2:]:
        k, v = x.split("=", 1)
        try: v = int(v)
        except ValueError: pass
        cfg[k] = v
    cfg = dict(dict(cap=1, mrg=4, wpre=1, nrd=3), **cfg)
    g1 = Gen(prof=bool(cfg.get("prof", 0)), cfg=cfg)
    txt, nn = g1.build()
    open(out, "w").write(txt)
    print(out, "lines", txt.count("\n"), "hazard nops", nn)
```
